```python
import torch

def _softmax(x, axis=-1):
    return torch.softmax(x, dim=axis)
def _gelu(x):
    return torch.nn.functional.gelu(x, approximate="tanh")
def _silu(x):
    return torch.nn.functional.silu(x)
def _sigmoid(x):
    return torch.sigmoid(x)
def _layernorm(x, axis=-1, eps=1e-5):
    m = x.mean(dim=axis, keepdim=True)
    v = x.var(dim=axis, keepdim=True, unbiased=False)
    return (x - m) / torch.sqrt(v + eps)
def _scatter_add(tgt, idx, src, axis=0):
    return tgt.clone().index_add_(axis, idx, src)
def _segment_sum(src, seg, n):
    out = torch.zeros((n,) + src.shape[1:], dtype=src.dtype)
    return out.index_add_(0, seg, src)
def _pad(x, pw):
    flat = tuple(v for pair in reversed(pw) for v in pair)
    return torch.nn.functional.pad(x, flat)

kernel_name = 'gated_mix__sliding_block__geglu_ffn__prompt'

def setup_inputs():

    _w = (lambda a: (lambda t: t.to(torch.bfloat16) if t.is_floating_point() else t)(torch.as_tensor(a)))
    def _A_setup():
        B, S, D = 1, 2048, 1024
        return {
            "x": _w((lambda *s: torch.randn(*s, dtype=torch.bfloat16) * 0.05)(B, S, D)),
            "wqkv": _w((lambda *s: torch.randn(*s, dtype=torch.bfloat16) * 1.6)(D, 3 * D)),
            "wo": _w((lambda *s: torch.randn(*s, dtype=torch.bfloat16) * 0.1)(D, D)),
        }
    _A_in = _A_setup()

    def _B_setup():
        B, S, D, F = 1, 2048, 1024, 3584
        return {
            "x": _w((lambda *s: torch.randn(*s, dtype=torch.bfloat16) * 0.05)(B, S, D)),
            "w_gate": _w((lambda *s: torch.randn(*s, dtype=torch.bfloat16) * 0.4)(D, F)),
            "w_up": _w((lambda *s: torch.randn(*s, dtype=torch.bfloat16) * 0.4)(D, F)),
            "w_down": _w((lambda *s: torch.randn(*s, dtype=torch.bfloat16) * 0.4)(F, D)),
        }
    _B_in = _B_setup()

    return {
        "A_x": _A_in["x"],
        "A_wqkv": _A_in["wqkv"],
        "A_wo": _A_in["wo"],
        "B_x": _B_in["x"],
        "B_w_gate": _B_in["w_gate"],
        "B_w_up": _B_in["w_up"],
        "B_w_down": _B_in["w_down"],
        "gate_w": _w((lambda *s: torch.randn(*s, dtype=torch.bfloat16) * 0.05)(1024) * 16.0),
    }

def reference(A_x, A_wqkv, A_wo, B_x, B_w_gate, B_w_up, B_w_down, gate_w):
    def _A_ref(x, wqkv, wo):
        B, S, D = x.shape
        H = 32; Dh = D // H; W = 256
        qkv = (lambda x, *d: x.permute(*d))((x @ wqkv).reshape(B, S, 3, H, Dh), 2, 0, 3, 1, 4)
        q, k, v = qkv[0], qkv[1], qkv[2]
        scores = torch.einsum("bhqd,bhkd->bhqk", q, k) * (Dh ** -0.5)
        idx = torch.arange(S)
        mask = (idx[:, None] - idx[None, :] >= 0) & (idx[:, None] - idx[None, :] < W)
        scores = torch.where(mask[None, None], scores, -1e9)
        p = _softmax(scores, axis=-1)
        o = torch.einsum("bhqk,bhkd->bhqd", p, v)
        return (lambda x, *d: x.permute(*d))(o, 0, 2, 1, 3).reshape(B, S, D) @ wo

    def _B_ref(x, w_gate, w_up, w_down):
        return (_gelu(x @ w_gate) * (x @ w_up)) @ w_down

    x = A_x
    g = _sigmoid((x * gate_w).sum(-1, keepdims=True))
    a = _A_ref(x, A_wqkv, A_wo)
    b = _B_ref(x, B_w_gate, B_w_up, B_w_down)
    return g * a + (1 - g) * b
```

```python
import sys, struct

NAME = "gated_mix__sliding_block__geglu_ffn__prompt"

A2_OFF = 0
NKB = 144
QKV_OFF = 0x1400000
G_OFF = 0x2400000
WS_BYTES = 0x10000000

def f2u(x):
    return struct.unpack("<I", struct.pack("<f", x))[0]

class Gen:
    def __init__(self):
        self.lines = []
        self.lq = []
        self.vq = []
        self.nlab = 0
    def e(self, s):
        self.lines.append("    " + s)
    def c(self, s):
        self.lines.append("    ; " + s)
    def label(self, s):
        self.lines.append(s + ":")
    def newlab(self, p="L"):
        self.nlab += 1
        return "%s_%d" % (p, self.nlab)
    def raw(self, s):
        self.lines.append(s)
    def lds(self, s, tag):
        self.e(s); self.lq.append(tag)
    def vm(self, s, tag):
        self.e(s); self.vq.append(tag)
    def _need(self, q, tags):
        last = -1
        for i, t in enumerate(q):
            if t in tags:
                last = i
        if last < 0:
            return None
        return len(q) - 1 - last, last
    def need(self, ltags=(), vtags=()):
        w = []
        r = self._need(self.lq, set(ltags))
        if r is not None:
            n, last = r
            if n > 15:
                n = 15
                last = len(self.lq) - 1 - 15
            self.lq = self.lq[last + 1:]
            w.append("lgkmcnt(%d)" % n)
        r = self._need(self.vq, set(vtags))
        if r is not None:
            n, last = r
            if n > 63:
                n = 63
                last = len(self.vq) - 1 - 63
            self.vq = self.vq[last + 1:]
            w.insert(0, "vmcnt(%d)" % n)
        if w:
            self.e("s_waitcnt " + " ".join(w))
    def waitall(self):
        self.e("s_waitcnt vmcnt(0) lgkmcnt(0)")
        self.lq = []; self.vq = []

def vr(a, n=1):
    return "v%d" % a if n == 1 else "v[%d:%d]" % (a, a + n - 1)
def sr(a, n=1):
    return "s%d" % a if n == 1 else "s[%d:%d]" % (a, a + n - 1)

def kd(name, vgpr, sgpr, accum):
    return """.section .rodata,"a"
.p2align 6
.amdhsa_kernel %s
  .amdhsa_next_free_vgpr %d
  .amdhsa_next_free_sgpr %d
  .amdhsa_accum_offset %d
  .amdhsa_group_segment_fixed_size 0
  .amdhsa_kernarg_size 88
  .amdhsa_user_sgpr_count 2
  .amdhsa_user_sgpr_kernarg_segment_ptr 1
  .amdhsa_system_sgpr_workgroup_id_x 1
.end_amdhsa_kernel
.text
""" % (name, vgpr, sgpr, accum)

def kstart(g, name):
    g.raw(".globl %s" % name)
    g.raw(".p2align 8")
    g.raw(".type %s,@function" % name)
    g.label(name)

LOG2E = 1.4426950408889634
GK1 = -2.0 * LOG2E * 0.7978845608028654
GK2 = GK1 * 0.044715

def round_pair(g, a, tmp):
    g.e("v_cvt_pk_bf16_f32 %s, %s, %s" % (vr(tmp), vr(a), vr(a + 1)))
    g.e("v_lshlrev_b32 %s, 16, %s" % (vr(a), vr(tmp)))
    g.e("v_and_b32 %s, 0xffff0000, %s" % (vr(a + 1), vr(tmp)))

def gen_k1(g):
    name = "k1_gemm1_kernel"
    kstart(g, name)
    NST = 32
    D = 4
    WSL = 8
    XBASE = 81920
    vXo = 2
    vWp = 4
    vWs = 10
    vXrd = 13
    vWrd = 14
    vL16 = 24
    XF = 32
    WF = 64
    ACC = 96
    def acc(t, rg): return ACC + (t * 4 + rg) * 4
    sX, sQ, sG, sU, sWS = 4, 6, 8, 10, 12
    sRB, sCB, sW, sWM, sWN = 14, 15, 16, 17, 18
    sXm0, sWm0, sWm0h = 19, 20, 21
    sN1, sColF, sColQA, sColQB = 22, 23, 24, 25
    sT = 26
    SRD = 40
    g.e("s_cmp_ge_u32 s2, 256")
    g.e("s_cbranch_scc1 K1_END")
    g.e("s_load_dwordx2 %s, s[0:1], 0" % sr(sX, 2))
    g.e("s_load_dwordx2 %s, s[0:1], 8" % sr(sQ, 2))
    g.e("s_load_dwordx4 %s, s[0:1], 32" % sr(sG, 4))
    g.e("s_load_dwordx2 %s, s[0:1], 80" % sr(sWS, 2))
    g.e("s_and_b32 %s, s2, 7" % sr(sT))
    g.e("s_lshr_b32 %s, s2, 3" % sr(sT + 1))
    g.e("s_lshl_b32 %s, %s, 2" % (sr(sCB), sr(sT)))
    g.e("s_and_b32 %s, %s, 3" % (sr(sT + 2), sr(sT + 1)))
    g.e("s_add_u32 %s, %s, %s" % (sr(sCB), sr(sCB), sr(sT + 2)))
    g.e("s_lshr_b32 %s, %s, 2" % (sr(sRB), sr(sT + 1)))
    g.e("v_lshrrev_b32 v1, 6, v0")
    g.e("v_and_b32 v0, 63, v0")
    g.e("v_readfirstlane_b32 %s, v1" % sr(sW))
    g.e("s_and_b32 %s, %s, 3" % (sr(sWM), sr(sW)))
    g.e("s_lshr_b32 %s, %s, 2" % (sr(sWN), sr(sW)))
    g.e("v_lshlrev_b32 %s, 4, v0" % vr(vL16))
    g.e("s_lshl_b32 %s, %s, 11" % (sr(sXm0), sr(sW)))
    g.e("s_add_u32 %s, %s, %d" % (sr(sXm0), sr(sXm0), XBASE))
    g.e("s_lshl_b32 %s, %s, 10" % (sr(sWm0), sr(sW)))
    g.e("s_lshl_b32 %s, %s, 9" % (sr(sWm0h), sr(sW)))
    g.e("s_mul_i32 %s, %s, 160" % (sr(sColF), sr(sCB)))
    g.e("s_mul_i32 %s, %s, 320" % (sr(sColQA), sr(sCB)))
    g.e("s_sub_u32 %s, %s, %d" % (sr(sColQA), sr(sColQA), 320 * 23 - 192))
    g.e("s_add_u32 %s, %s, 160" % (sr(sColQB), sr(sColQA)))
    g.e("s_mov_b32 %s, 0" % sr(sN1))
    g.e("s_cmp_eq_u32 %s, 22" % sr(sCB))
    g.e("s_cselect_b32 %s, -64, %s" % (sr(sColQA), sr(sColQA)))
    g.e("s_cselect_b32 %s, 32, %s" % (sr(sColQB), sr(sColQB)))
    g.e("s_cselect_b32 %s, 8, %s" % (sr(sN1), sr(sN1)))
    g.e("s_cmp_lt_u32 %s, 22" % sr(sCB))
    g.e("s_cselect_b32 %s, 20, %s" % (sr(sN1), sr(sN1)))
    t0, t1, t2, t3, t4, t5, t6, t7, t8, t9 = range(XF, XF + 10)
    g.e("v_lshrrev_b32 %s, 2, v0" % vr(t0))
    g.e("v_lshrrev_b32 %s, 4, v0" % vr(t1))
    g.e("v_and_b32 %s, 2, %s" % (vr(t1), vr(t1)))
    g.e("v_and_b32 %s, 3, v0" % vr(t2))
    g.e("v_xor_b32 %s, %s, %s" % (vr(t2), vr(t2), vr(t1)))
    g.e("s_lshl_b32 %s, %s, 8" % (sr(sT), sr(sRB)))
    g.e("s_lshl_b32 %s, %s, 5" % (sr(sT + 1), sr(sW)))
    g.e("s_add_u32 %s, %s, %s" % (sr(sT), sr(sT), sr(sT + 1)))
    g.e("v_add_u32 %s, %s, %s" % (vr(t0), sr(sT), vr(t0)))
    g.e("v_lshlrev_b32 %s, 11, %s" % (vr(t0), vr(t0)))
    g.e("v_lshl_add_u32 %s, %s, 4, %s" % (vr(vXo), vr(t2), vr(t0)))
    g.e("v_add_u32 %s, 0x8000, %s" % (vr(vXo + 1), vr(vXo)))
    g.e("v_and_b32 %s, 15, v0" % vr(t0))
    g.e("v_lshrrev_b32 %s, 4, v0" % vr(t1))
    g.e("v_lshrrev_b32 %s, 2, %s" % (vr(t2), vr(t0)))
    g.e("v_and_b32 %s, 2, %s" % (vr(t2), vr(t2)))
    g.e("v_xor_b32 %s, %s, %s" % (vr(t2), vr(t2), vr(t1)))
    g.e("v_lshlrev_b32 %s, 6, %s" % (vr(t3), vr(t0)))
    g.e("v_lshl_add_u32 %s, %s, 4, %s" % (vr(t3), vr(t2), vr(t3)))
    g.e("s_lshl_b32 %s, %s, 12" % (sr(sT), sr(sWM)))
    g.e("s_add_u32 %s, %s, %d" % (sr(sT), sr(sT), XBASE))
    g.e("v_add_u32 %s, %s, %s" % (vr(vXrd), sr(sT), vr(t3)))
    g.e("v_lshrrev_b32 %s, 2, %s" % (vr(t2), vr(t0)))
    g.e("v_lshl_add_u32 %s, %s, 3, %s" % (vr(t2), vr(t1), vr(t2)))
    g.e("v_mul_u32_u24 %s, 640, %s" % (vr(t2), vr(t2)))
    g.e("v_and_b32 %s, 3, %s" % (vr(t3), vr(t0)))
    g.e("v_lshl_add_u32 %s, %s, 3, %s" % (vr(t2), vr(t3), vr(t2)))
    g.e("v_bfe_u32 %s, %s, 3, 1" % (vr(t3), vr(t0)))
    g.e("v_and_b32 %s, 1, %s" % (vr(t4), vr(t1)))
    g.e("v_lshl_or_b32 %s, %s, 1, %s" % (vr(t3), vr(t4), vr(t3)))
    g.e("s_mul_i32 %s, %s, 6" % (sr(sT), sr(sWN)))
    g.e("s_add_u32 %s, %s, 4" % (sr(sT + 1), sr(sWN)))
    for j in range(5):
        for hf in range(2):
            if j < 4:
                g.e("s_add_u32 %s, %s, %d" % (sr(sT + 2), sr(sT), j + 10 * hf))
            else:
                g.e("s_add_u32 %s, %s, %d" % (sr(sT + 2), sr(sT + 1), 10 * hf))
            g.e("v_xor_b32 %s, %s, %s" % (vr(t4), sr(sT + 2), vr(t3)))
            g.e("v_lshl_add_u32 %s, %s, 5, %s" % (vr(vWrd + j + 5 * hf), vr(t4), vr(t2)))
    g.e("s_waitcnt lgkmcnt(0)")
    for n in range(3):
        if n < 2:
            g.e("s_lshl_b32 %s, %s, 6" % (sr(sT), sr(sW)))
            g.e("s_add_u32 %s, %s, %d" % (sr(sT), sr(sT), 512 * n))
            g.e("v_add_u32 %s, %s, v0" % (vr(t0), sr(sT)))
        else:
            g.e("s_lshl_b32 %s, %s, 5" % (sr(sT), sr(sW)))
            g.e("s_add_u32 %s, %s, 1024" % (sr(sT), sr(sT)))
            g.e("v_and_b32 %s, 31, v0" % vr(t0))
            g.e("v_add_u32 %s, %s, %s" % (vr(t0), sr(sT), vr(t0)))
        g.e("v_mul_u32_u24 %s, 52429, %s" % (vr(t1), vr(t0)))
        g.e("v_lshrrev_b32 %s, 21, %s" % (vr(t1), vr(t1)))
        g.e("v_mul_u32_u24 %s, 40, %s" % (vr(t2), vr(t1)))
        g.e("v_sub_u32 %s, %s, %s" % (vr(t2), vr(t0), vr(t2)))
        g.e("v_bfe_u32 %s, %s, 1, 1" % (vr(t3), vr(t1)))
        g.e("v_lshrrev_b32 %s, 2, %s" % (vr(t4), vr(t1)))
        g.e("v_and_b32 %s, 2, %s" % (vr(t4), vr(t4)))
        g.e("v_or_b32 %s, %s, %s" % (vr(t3), vr(t3), vr(t4)))
        g.e("v_lshlrev_b32 %s, 1, %s" % (vr(t3), vr(t3)))
        g.e("v_xor_b32 %s, %s, %s" % (vr(t2), vr(t2), vr(t3)))
        g.e("v_cmp_le_u32 vcc, 20, %s" % vr(t2))
        g.e("v_subrev_u32 %s, 20, %s" % (vr(t3), vr(t2)))
        g.e("s_nop 1")
        g.e("v_cndmask_b32 %s, %s, %s, vcc" % (vr(t2), vr(t2), vr(t3)))
        g.e("v_mov_b32 %s, %s" % (vr(t3), sr(sG)))
        g.e("v_mov_b32 %s, %s" % (vr(t4), sr(sU)))
        g.e("v_cndmask_b32 %s, %s, %s, vcc" % (vr(t3), vr(t3), vr(t4)))
        g.e("v_mov_b32 %s, %s" % (vr(t4), sr(sG + 1)))
        g.e("v_mov_b32 %s, %s" % (vr(t5), sr(sU + 1)))
        g.e("v_cndmask_b32 %s, %s, %s, vcc" % (vr(t4), vr(t4), vr(t5)))
        g.e("v_mov_b32 %s, %s" % (vr(t5), sr(sColQA)))
        g.e("v_mov_b32 %s, %s" % (vr(t6), sr(sColQB)))
        g.e("v_cndmask_b32 %s, %s, %s, vcc" % (vr(t5), vr(t5), vr(t6)))
        g.e("v_cmp_gt_u32 vcc, %s, %s" % (sr(sN1), vr(t2)))
        g.e("v_mov_b32 %s, %s" % (vr(t6), sr(sQ)))
        g.e("v_mov_b32 %s, %s" % (vr(t7), sr(sQ + 1)))
        g.e("v_cndmask_b32 %s, %s, %s, vcc" % (vr(t3), vr(t6), vr(t3)))
        g.e("v_cndmask_b32 %s, %s, %s, vcc" % (vr(t4), vr(t7), vr(t4)))
        g.e("v_mov_b32 %s, %s" % (vr(t6), sr(sColF)))
        g.e("v_cndmask_b32 %s, %s, %s, vcc" % (vr(t5), vr(t5), vr(t6)))
        g.e("v_mov_b32 %s, 6144" % vr(t6))
        g.e("v_mov_b32 %s, 7168" % vr(t7))
        g.e("v_cndmask_b32 %s, %s, %s, vcc" % (vr(t6), vr(t6), vr(t7)))
        g.e("v_lshl_add_u32 %s, %s, 3, %s" % (vr(t5), vr(t2), vr(t5)))
        g.e("v_mul_u32_u24 %s, %s, %s" % (vr(t7), vr(t1), vr(t6)))
        g.e("v_lshl_add_u32 %s, %s, 1, %s" % (vr(t7), vr(t5), vr(t7)))
        g.e("v_add_co_u32 %s, vcc, %s, %s" % (vr(vWp + 2 * n), vr(t3), vr(t7)))
        g.e("v_addc_co_u32 %s, vcc, 0, %s, vcc" % (vr(vWp + 2 * n + 1), vr(t4)))
        g.e("v_lshlrev_b32 %s, 5, %s" % (vr(vWs + n), vr(t6)))
    g.e("s_mov_b32 %s, %s" % (sr(SRD), sr(sWS)))
    g.e("s_and_b32 %s, %s, 0xffff" % (sr(SRD + 1), sr(sWS + 1)))
    g.e("s_mov_b32 %s, 0x%x" % (sr(SRD + 2), WS_BYTES))
    g.e("s_mov_b32 %s, 0x00020000" % sr(SRD + 3))

    def dma(st, idx):
        slot = st % 4
        tag = ("dma", st)
        if idx < 2:
            g.e("s_add_u32 m0, %s, %d" % (sr(sXm0), slot * 16384 + idx * 1024 - st * 64))
            g.e("s_nop 0")
            g.vm("global_load_lds_dwordx4 %s, %s offset:%d" % (vr(vXo + idx), sr(sX, 2), st * 64), tag)
        elif idx < 4:
            n = idx - 2
            g.e("s_add_u32 m0, %s, %d" % (sr(sWm0), slot * 20480 + n * 8192))
            g.e("s_nop 0")
            g.vm("global_load_lds_dwordx4 %s, off" % vr(vWp + 2 * n, 2), tag)
            g.e("v_add_co_u32 %s, vcc, %s, %s" % (vr(vWp + 2 * n), vr(vWp + 2 * n), vr(vWs + n)))
            g.e("v_addc_co_u32 %s, vcc, 0, %s, vcc" % (vr(vWp + 2 * n + 1), vr(vWp + 2 * n + 1)))
        else:
            n = 2
            g.e("s_add_u32 m0, %s, %d" % (sr(sWm0h), slot * 20480 + 16384))
            g.e("s_mov_b32 exec_hi, 0")
            g.vm("global_load_lds_dwordx4 %s, off" % vr(vWp + 2 * n, 2), tag)
            g.e("s_mov_b32 exec_hi, -1")
            g.e("v_add_co_u32 %s, vcc, %s, %s" % (vr(vWp + 2 * n), vr(vWp + 2 * n), vr(vWs + n)))
            g.e("v_addc_co_u32 %s, vcc, 0, %s, vcc" % (vr(vWp + 2 * n + 1), vr(vWp + 2 * n + 1)))
    def wread(f):
        s, t = divmod(f, 10)
        reg = WF + 4 * (f % WSL)
        off = (s % 4) * 20480
        g.lds("ds_read_b64_tr_b16 %s, %s offset:%d" % (vr(reg, 2), vr(vWrd + t), off), ("w", f))
        g.lds("ds_read_b64_tr_b16 %s, %s offset:%d" % (vr(reg + 2, 2), vr(vWrd + t), off + 2560), ("w", f))
    def xread(s, rg):
        reg = XF + 16 * (s % 2) + 4 * rg
        g.lds("ds_read_b128 %s, %s offset:%d" % (vr(reg, 4), vr(vXrd), (s % 4) * 16384 + rg * 1024), ("x", s))

    for st in range(3):
        for idx in range(5):
            dma(st, idx)
    g.need(vtags=[("dma", 0)])
    g.e("s_barrier")
    for rg in range(4):
        xread(0, rg)
    for f in range(D):
        wread(f)
    for s in range(NST):
        g.c("---- stage %d" % s)
        if s + 1 < NST:
            g.need(vtags=[("dma", s + 1)])
            g.e("s_barrier")
        for gi in range(10):
            if gi < 5 and s + 3 < NST:
                dma(s + 3, gi)
            f = s * 10 + gi + D
            if f < NST * 10:
                wread(f)
            if 2 <= gi < 6 and s + 1 < NST:
                xread(s + 1, gi - 2)
            g.need(ltags=[("w", s * 10 + gi), ("x", s)])
            wreg = WF + 4 * ((s * 10 + gi) % WSL)
            for rg in range(4):
                xreg = XF + 16 * (s % 2) + 4 * rg
                a = acc(gi, rg)
                cin = "0" if s == 0 else vr(a, 4)
                g.e("v_mfma_f32_16x16x32_bf16 %s, %s, %s, %s" % (vr(a, 4), vr(wreg, 4), vr(xreg, 4), cin))
    g.c("---- epilogue")
    sK1, sK2, sOne = 44, 46, 48
    vK1 = 26
    g.e("s_mov_b32 %s, 0x%x" % (sr(sK2), f2u(GK2)))
    g.e("s_mov_b32 %s, 0x%x" % (sr(sK2 + 1), f2u(GK2)))
    g.e("s_mov_b32 %s, 1.0" % sr(sOne))
    g.e("s_mov_b32 %s, 1.0" % sr(sOne + 1))
    g.e("v_mov_b32 %s, 0x%x" % (vr(vK1), f2u(GK1)))
    g.e("v_mov_b32 %s, 0x%x" % (vr(vK1 + 1), f2u(GK1)))
    sM0, sB, sDA, sDB, sJA = 50, 51, 52, 53, 54
    g.e("s_lshl_b32 %s, %s, 4" % (sr(sM0), sr(sRB)))
    g.e("s_lshl_b32 %s, %s, 2" % (sr(sT), sr(sWM)))
    g.e("s_add_u32 %s, %s, %s" % (sr(sM0), sr(sM0), sr(sT)))
    vL16s = 25
    g.e("s_lshl_b32 %s, %s, 3" % (sr(sT), sr(sWN)))
    g.e("v_add_u32 %s, %s, %s" % (vr(vL16s), sr(sT), vr(vL16)))
    g.e("s_nop 7")
    TMP = 32
    for u in range(3):
        lq, ldone = g.newlab("K1_Q"), g.newlab("K1_D")
        if u < 2:
            g.e("s_mul_i32 %s, %s, 3" % (sr(sB), sr(sWN)))
            g.e("s_add_u32 %s, %s, %d" % (sr(sB), sr(sB), u))
        else:
            g.e("s_mov_b32 %s, 2" % sr(sB))
        g.e("s_lshl_b32 %s, %s, 2" % (sr(sT), sr(sB)))
        g.e("s_cmp_lt_u32 %s, %s" % (sr(sT), sr(sN1)))
        g.e("s_cbranch_scc0 %s" % lq)
        g.e("s_mul_i32 %s, %s, 5" % (sr(sT), sr(sCB)))
        g.e("s_add_u32 %s, %s, %s" % (sr(sT), sr(sT), sr(sB)))
        g.e("s_add_u32 %s, %s, 32" % (sr(sT), sr(sT)))
        g.e("s_mul_i32 %s, %s, %d" % (sr(sDA), sr(sM0), NKB))
        g.e("s_add_u32 %s, %s, %s" % (sr(sDA), sr(sDA), sr(sT)))
        g.e("s_lshl_b32 %s, %s, 10" % (sr(sDA), sr(sDA)))
        tiles = [2 * u, 2 * u + 1] if u < 2 else [4]
        for rg in range(4):
            outb = TMP + 8 * (rg % 2)
            k = 0
            for t in tiles:
                for pr in range(2):
                    ga = acc(t, rg) + 2 * pr
                    ua = acc(t + 5, rg) + 2 * pr
                    tm = TMP + 16 + 8 * (k % 2)
                    round_pair(g, ga, tm)
                    round_pair(g, ua, tm + 1)
                    g.e("v_pk_mul_f32 %s, %s, %s" % (vr(tm + 2, 2), vr(ga, 2), vr(ga, 2)))
                    g.e("v_pk_fma_f32 %s, %s, %s, %s" % (vr(tm + 2, 2), vr(tm + 2, 2), sr(sK2, 2), vr(vK1, 2)))
                    g.e("v_pk_mul_f32 %s, %s, %s" % (vr(tm + 2, 2), vr(tm + 2, 2), vr(ga, 2)))
                    g.e("v_exp_f32 %s, %s" % (vr(tm + 2), vr(tm + 2)))
                    g.e("v_exp_f32 %s, %s" % (vr(tm + 3), vr(tm + 3)))
                    g.e("s_nop 0")
                    g.e("v_pk_add_f32 %s, %s, %s" % (vr(tm + 2, 2), vr(tm + 2, 2), sr(sOne, 2)))
                    g.e("v_rcp_f32 %s, %s" % (vr(tm + 2), vr(tm + 2)))
                    g.e("v_rcp_f32 %s, %s" % (vr(tm + 3), vr(tm + 3)))
                    g.e("s_nop 0")
                    g.e("v_pk_mul_f32 %s, %s, %s" % (vr(ga, 2), vr(tm + 2, 2), vr(ga, 2)))
                    round_pair(g, ga, tm)
                    g.e("v_pk_mul_f32 %s, %s, %s" % (vr(ga, 2), vr(ga, 2), vr(ua, 2)))
                    g.e("v_cvt_pk_bf16_f32 %s, %s, %s" % (vr(outb + k), vr(ga), vr(ga + 1)))
                    k += 1
            if u < 2:
                g.e("buffer_store_dwordx4 %s, %s, %s, %s offen" % (vr(outb, 4), vr(vL16), sr(SRD, 4), sr(sDA)))
            else:
                g.e("buffer_store_dwordx2 %s, %s, %s, %s offen" % (vr(outb, 2), vr(vL16s), sr(SRD, 4), sr(sDA)))
            if rg < 3:
                g.e("s_add_u32 %s, %s, %d" % (sr(sDA), sr(sDA), NKB * 1024))
        g.e("s_branch %s" % ldone)
        g.label(lq)
        for (sc, sd) in ((sColQA, sDA), (sColQB, sDB)):
            g.e("s_ashr_i32 %s, %s, 5" % (sr(sT), sr(sc)))
            g.e("s_add_u32 %s, %s, %s" % (sr(sT), sr(sT), sr(sB)))
            g.e("s_lshl_b32 %s, %s, 7" % (sr(sT), sr(sT)))
            g.e("s_add_u32 %s, %s, %s" % (sr(sT), sr(sT), sr(sM0)))
            g.e("s_lshl_b32 %s, %s, 10" % (sr(sT), sr(sT)))
            g.e("s_add_u32 %s, %s, 0x%x" % (sr(sd), sr(sT), QKV_OFF))
        n = 0
        for rg in range(4):
            for hf, sd in ((0, sDA), (1, sDB)):
                outb = TMP + 4 * (n % 8)
                n += 1
                k = 0
                for t in tiles:
                    for pr in range(2):
                        a = acc(t + 5 * hf, rg) + 2 * pr
                        g.e("v_cvt_pk_bf16_f32 %s, %s, %s" % (vr(outb + k), vr(a), vr(a + 1)))
                        k += 1
                if u < 2:
                    g.e("buffer_store_dwordx4 %s, %s, %s, %s offen offset:%d" % (vr(outb, 4), vr(vL16), sr(SRD, 4), sr(sd), rg * 1024))
                else:
                    g.e("buffer_store_dwordx2 %s, %s, %s, %s offen offset:%d" % (vr(outb, 2), vr(vL16s), sr(SRD, 4), sr(sd), rg * 1024))
        g.label(ldone)
        if u < 2:
            g.e("s_nop 1")
    g.label("K1_END")
    g.e("s_endpgm")
    return name

def gen_k2(g):
    name = "k2_attn_kernel"
    kstart(g, name)
    g.lq = []; g.vq = []
    sWS, sX, sGW = 4, 6, 8
    sHd, sQB, sW, sT = 10, 11, 12, 13
    SRD = 20
    sMk = 24
    sNneg = 32
    sC, sL2 = 34, 36
    g.e("s_cmp_ge_u32 s2, 544")
    g.e("s_cbranch_scc1 K2_END")
    g.e("s_load_dwordx2 %s, s[0:1], 80" % sr(sWS, 2))
    g.e("s_load_dwordx2 %s, s[0:1], 0" % sr(sX, 2))
    g.e("s_load_dwordx2 %s, s[0:1], 56" % sr(sGW, 2))
    g.e("v_lshrrev_b32 v1, 6, v0")
    g.e("v_and_b32 v0, 63, v0")
    g.e("v_readfirstlane_b32 %s, v1" % sr(sW))
    vL16 = 2
    g.e("v_lshlrev_b32 %s, 4, v0" % vr(vL16))
    g.e("s_waitcnt lgkmcnt(0)")
    g.e("s_mov_b32 %s, %s" % (sr(SRD), sr(sWS)))
    g.e("s_and_b32 %s, %s, 0xffff" % (sr(SRD + 1), sr(sWS + 1)))
    g.e("s_mov_b32 %s, 0x%x" % (sr(SRD + 2), WS_BYTES))
    g.e("s_mov_b32 %s, 0x00020000" % sr(SRD + 3))
    g.e("s_cmp_ge_u32 s2, 512")
    g.e("s_cbranch_scc1 K2_GATE")
    g.e("s_and_b32 %s, s2, 31" % sr(sHd))
    g.e("s_lshr_b32 %s, s2, 5" % sr(sQB))
    g.e("s_lshl_b32 %s, %s, 3" % (sr(sT), sr(sQB)))
    g.e("s_add_u32 %s, %s, %s" % (sr(sT), sr(sT), sr(sW)))
    g.e("s_sub_u32 %s, %s, 16" % (sr(sT), sr(sT)))
    g.e("s_lshl_b32 %s, %s, 17" % (sr(sT + 1), sr(sHd)))
    g.e("s_add_u32 %s, %s, 0x%x" % (sr(sT + 1), sr(sT + 1), QKV_OFF + 32 * 128 * 1024))
    g.e("s_lshl_b32 %s, %s, 10" % (sr(sT + 4), sr(sW)))
    for i in range(6):
        g.e("s_add_u32 %s, %s, %d" % (sr(sT + 2), sr(sT), 4 * i))
        g.e("s_max_i32 %s, %s, 0" % (sr(sT + 2), sr(sT + 2)))
        g.e("s_lshl_b32 %s, %s, 10" % (sr(sT + 2), sr(sT + 2)))
        g.e("s_add_u32 %s, %s, %s" % (sr(sT + 2), sr(sT + 2), sr(sT + 1)))
        g.e("s_add_u32 %s, %s, 0x%x" % (sr(sT + 3), sr(sT + 2), 32 * 128 * 1024))
        g.e("s_add_u32 m0, %s, %d" % (sr(sT + 4), 4096 * i))
        g.e("s_nop 0")
        g.e("buffer_load_dwordx4 %s, %s, %s offen lds" % (vr(vL16), sr(SRD, 4), sr(sT + 2)))
        g.e("s_add_u32 m0, %s, %d" % (sr(sT + 4), 24576 + 4096 * i))
        g.e("s_nop 0")
        g.e("buffer_load_dwordx4 %s, %s, %s offen lds" % (vr(vL16), sr(SRD, 4), sr(sT + 3)))
    QF = 4
    g.e("s_lshl_b32 %s, %s, 3" % (sr(sT), sr(sQB)))
    g.e("s_lshl_b32 %s, %s, 1" % (sr(sT + 2), sr(sW)))
    g.e("s_add_u32 %s, %s, %s" % (sr(sT + 5), sr(sT), sr(sT + 2)))
    g.e("s_lshl_b32 %s, %s, 7" % (sr(sT + 2), sr(sHd)))
    g.e("s_add_u32 %s, %s, %s" % (sr(sT + 2), sr(sT + 2), sr(sT + 5)))
    g.e("s_lshl_b32 %s, %s, 10" % (sr(sT + 2), sr(sT + 2)))
    g.e("s_add_u32 %s, %s, 0x%x" % (sr(sT + 2), sr(sT + 2), QKV_OFF))
    g.e("buffer_load_dwordx4 %s, %s, %s, %s offen" % (vr(QF, 4), vr(vL16), sr(SRD, 4), sr(sT + 2)))
    g.e("buffer_load_dwordx4 %s, %s, %s, %s offen offset:1024" % (vr(QF + 4, 4), vr(vL16), sr(SRD, 4), sr(sT + 2)))
    g.e("s_sub_u32 %s, 16, %s" % (sr(sNneg), sr(sT + 5)))
    g.e("s_max_i32 %s, %s, 0" % (sr(sNneg), sr(sNneg)))
    vI, vQ4, vNI, vKrd, vVrd = 12, 13, 14, 15, 16
    g.e("v_and_b32 %s, 15, v0" % vr(vI))
    g.e("v_lshrrev_b32 %s, 4, v0" % vr(vQ4))
    g.e("v_lshlrev_b32 %s, 2, %s" % (vr(17), vr(vQ4)))
    for r in range(4):
        g.e("v_add_u32 %s, %d, %s" % (vr(18), r, vr(17)))
        g.e("v_cmp_gt_u32 %s, %s, %s" % (sr(sMk + 2 * r, 2), vr(18), vr(vI)))
    g.e("v_mov_b32 %s, 0xff800000" % vr(vNI))
    g.e("s_lshl_b32 %s, %s, 11" % (sr(sT), sr(sW)))
    g.e("v_add_u32 %s, %s, %s" % (vr(vKrd), sr(sT), vr(vL16)))
    g.e("v_and_b32 %s, 3, %s" % (vr(18), vr(vI)))
    g.e("v_lshlrev_b32 %s, 4, %s" % (vr(18), vr(18)))
    g.e("v_add_u32 %s, %s, %s" % (vr(18), vr(18), vr(17)))
    g.e("v_lshrrev_b32 %s, 2, %s" % (vr(19), vr(vI)))
    g.e("v_add_u32 %s, %s, %s" % (vr(18), vr(18), vr(19)))
    g.e("v_lshlrev_b32 %s, 4, %s" % (vr(18), vr(18)))
    g.e("s_add_u32 %s, %s, 24576" % (sr(sT), sr(sT)))
    g.e("v_add_u32 %s, %s, %s" % (vr(vVrd), sr(sT), vr(18)))
    g.e("s_mov_b32 %s, 0x%x" % (sr(sC), f2u(32 ** -0.5)))
    g.e("s_mov_b32 %s, 0x%x" % (sr(sC + 1), f2u(32 ** -0.5)))
    g.e("s_mov_b32 %s, 0x%x" % (sr(sL2), f2u(LOG2E)))
    g.e("s_mov_b32 %s, 0x%x" % (sr(sL2 + 1), f2u(LOG2E)))
    g.e("s_waitcnt vmcnt(0)")
    g.e("s_barrier")
    KF = 20
    SA = 52
    SB = 120
    VF = 188
    OA = 220
    TM = 236
    def S(grp, t):
        return SA + 4 * t if grp == 0 else SB + 4 * (t - 1)
    def kread(t):
        g.lds("ds_read_b128 %s, %s offset:%d" % (vr(KF + 4 * (t % 8), 4), vr(vKrd), t * 1024), ("k", t))
    for t in range(6):
        kread(t)
    for t in range(18):
        if t + 6 < 18:
            kread(t + 6)
        g.need(ltags=[("k", t)])
        kreg = KF + 4 * (t % 8)
        if t <= 16:
            g.e("v_mfma_f32_16x16x32_bf16 %s, %s, %s, 0" % (vr(S(0, t), 4), vr(kreg, 4), vr(QF, 4)))
        if t >= 1:
            g.e("v_mfma_f32_16x16x32_bf16 %s, %s, %s, 0" % (vr(S(1, t), 4), vr(kreg, 4), vr(QF + 4, 4)))
    def vread(j, d):
        n = j * 2 + d
        reg = VF + 4 * (n % 8)
        g.lds("ds_read_b64_tr_b16 %s, %s offset:%d" % (vr(reg, 2), vr(vVrd), (2 * j) * 1024 + 8 * d), ("v", n))
        g.lds("ds_read_b64_tr_b16 %s, %s offset:%d" % (vr(reg + 2, 2), vr(vVrd), (2 * j + 1) * 1024 + 8 * d), ("v", n))
    for n in range(6):
        vread(n // 2, n % 2)
    g.e("s_nop 7")
    for (grp, t, gt) in ((0, 0, True), (0, 16, False), (1, 1, True), (1, 17, False)):
        for r in range(4):
            a = S(grp, t) + r
            if gt:
                g.e("v_cndmask_b32 %s, %s, %s, %s" % (vr(a), vr(vNI), vr(a), sr(sMk + 2 * r, 2)))
            else:
                g.e("v_cndmask_b32 %s, %s, %s, %s" % (vr(a), vr(a), vr(vNI), sr(sMk + 2 * r, 2)))
    for t in range(16):
        g.e("s_cmp_le_u32 %s, %d" % (sr(sNneg), t))
        g.e("s_cbranch_scc1 K2_NEGDONE")
        for r in range(4):
            g.e("v_mov_b32 %s, %s" % (vr(S(0, t) + r), vr(vNI)))
        if t >= 1:
            for r in range(4):
                g.e("v_mov_b32 %s, %s" % (vr(S(1, t) + r), vr(vNI)))
    g.label("K2_NEGDONE")
    for grp in range(2):
        base = SA if grp == 0 else SB
        m0_, m1_ = TM, TM + 1
        g.e("v_max3_f32 %s, %s, %s, %s" % (vr(m0_), vr(base), vr(base + 1), vr(base + 2)))
        g.e("v_max3_f32 %s, %s, %s, %s" % (vr(m1_), vr(base + 3), vr(base + 4), vr(base + 5)))
        i = 6
        tog = 0
        while i + 1 < 68:
            mm = m0_ if tog == 0 else m1_
            g.e("v_max3_f32 %s, %s, %s, %s" % (vr(mm), vr(mm), vr(base + i), vr(base + i + 1)))
            i += 2; tog ^= 1
        g.e("v_max_f32 %s, %s, %s" % (vr(m0_), vr(m0_), vr(m1_)))
        g.e("v_mov_b32 %s, %s" % (vr(m1_), vr(m0_)))
        g.e("s_nop 1")
        g.e("v_permlane32_swap_b32 %s, %s" % (vr(m0_), vr(m1_)))
        g.e("v_max_f32 %s, %s, %s" % (vr(m0_), vr(m0_), vr(m1_)))
        g.e("v_mov_b32 %s, %s" % (vr(m1_), vr(m0_)))
        g.e("s_nop 1")
        g.e("v_permlane16_swap_b32 %s, %s" % (vr(m0_), vr(m1_)))
        g.e("v_max_f32 %s, %s, %s" % (vr(m0_), vr(m0_), vr(m1_)))
        g.e("v_mov_b32 %s, %s" % (vr(m1_), vr(m0_)))
        round_pair(g, m0_, TM + 2)
        g.e("v_pk_mul_f32 %s, %s, %s" % (vr(m0_, 2), vr(m0_, 2), sr(sC, 2)))
        round_pair(g, m0_, TM + 2)
        g.e("v_pk_mul_f32 %s, %s, %s" % (vr(m0_, 2), vr(m0_, 2), sr(sL2, 2)))
        g.e("v_sub_f32 %s, 0, %s" % (vr(m0_), vr(m0_)))
        g.e("v_sub_f32 %s, 0, %s" % (vr(m1_), vr(m1_)))
        sm = TM + 4
        for p in range(34):
            a = base + 2 * p
            tm = TM + 8 + (p % 4)
            round_pair(g, a, tm)
            g.e("v_pk_mul_f32 %s, %s, %s" % (vr(a, 2), vr(a, 2), sr(sC, 2)))
            round_pair(g, a, tm)
            g.e("v_pk_fma_f32 %s, %s, %s, %s" % (vr(a, 2), vr(a, 2), sr(sL2, 2), vr(m0_, 2)))
            g.e("v_exp_f32 %s, %s" % (vr(a), vr(a)))
            g.e("v_exp_f32 %s, %s" % (vr(a + 1), vr(a + 1)))
            if p >= 1:
                pa = base + 2 * (p - 1)
                ss = sm + 2 * ((p - 1) % 2)
                if p - 1 < 2:
                    g.e("v_mov_b32 %s, %s" % (vr(ss), vr(pa)))
                    g.e("v_mov_b32 %s, %s" % (vr(ss + 1), vr(pa + 1)))
                else:
                    g.e("v_pk_add_f32 %s, %s, %s" % (vr(ss, 2), vr(ss, 2), vr(pa, 2)))
        g.e("s_nop 0")
        pa = base + 2 * 33
        g.e("v_pk_add_f32 %s, %s, %s" % (vr(sm + 2, 2), vr(sm + 2, 2), vr(pa, 2)))
        g.e("v_pk_add_f32 %s, %s, %s" % (vr(sm, 2), vr(sm, 2), vr(sm + 2, 2)))
        g.e("v_add_f32 %s, %s, %s" % (vr(sm), vr(sm), vr(sm + 1)))
        g.e("v_mov_b32 %s, %s" % (vr(sm + 1), vr(sm)))
        g.e("s_nop 1")
        g.e("v_permlane32_swap_b32 %s, %s" % (vr(sm), vr(sm + 1)))
        g.e("v_add_f32 %s, %s, %s" % (vr(sm), vr(sm), vr(sm + 1)))
        g.e("v_mov_b32 %s, %s" % (vr(sm + 1), vr(sm)))
        g.e("s_nop 1")
        g.e("v_permlane16_swap_b32 %s, %s" % (vr(sm), vr(sm + 1)))
        g.e("v_add_f32 %s, %s, %s" % (vr(sm), vr(sm), vr(sm + 1)))
        g.e("v_rcp_f32 %s, %s" % (vr(sm), vr(sm)))
        g.e("s_nop 0")
        g.e("v_mov_b32 %s, %s" % (vr(sm + 1), vr(sm)))
        for p in range(34):
            a = base + 2 * p
            g.e("v_pk_mul_f32 %s, %s, %s" % (vr(a, 2), vr(a, 2), vr(sm, 2)))
        for ti in range(17):
            a = base + 4 * ti
            g.e("v_cvt_pk_bf16_f32 %s, %s, %s" % (vr(a), vr(a), vr(a + 1)))
            g.e("v_cvt_pk_bf16_f32 %s, %s, %s" % (vr(a + 1), vr(a + 2), vr(a + 3)))
    for j in range(9):
        a = SA + 8 * j
        if j < 8:
            g.e("v_mov_b32 %s, %s" % (vr(a + 2), vr(a + 4)))
            g.e("v_mov_b32 %s, %s" % (vr(a + 3), vr(a + 5)))
        else:
            g.e("v_mov_b32 %s, 0" % vr(a + 2))
            g.e("v_mov_b32 %s, 0" % vr(a + 3))
    for j in range(9):
        a = SB + 8 * j
        g.e("v_mov_b32 %s, %s" % (vr(a + 2), vr(a)))
        g.e("v_mov_b32 %s, %s" % (vr(a + 3), vr(a + 1)))
        if j > 0:
            g.e("v_mov_b32 %s, %s" % (vr(a), vr(a - 4)))
            g.e("v_mov_b32 %s, %s" % (vr(a + 1), vr(a - 3)))
        else:
            g.e("v_mov_b32 %s, 0" % vr(a))
            g.e("v_mov_b32 %s, 0" % vr(a + 1))
    g.e("s_nop 1")
    for n in range(18):
        j, d = n // 2, n % 2
        if n + 6 < 18:
            vread((n + 6) // 2, (n + 6) % 2)
        g.need(ltags=[("v", n)])
        vreg = VF + 4 * (n % 8)
        for grp in range(2):
            o = OA + 8 * grp + 4 * d
            pf = (SA if grp == 0 else SB) + 8 * j
            cin = "0" if j == 0 else vr(o, 4)
            g.e("v_mfma_f32_16x16x32_bf16 %s, %s, %s, %s" % (vr(o, 4), vr(vreg, 4), vr(pf, 4), cin))
    g.e("s_mul_i32 %s, %s, %d" % (sr(sT), sr(sT + 5), NKB))
    g.e("s_add_u32 %s, %s, %s" % (sr(sT), sr(sT), sr(sHd)))
    g.e("s_lshl_b32 %s, %s, 10" % (sr(sT), sr(sT)))
    g.e("s_add_u32 %s, %s, %d" % (sr(sT + 1), sr(sT), NKB * 1024))
    g.e("s_nop 7")
    for grp in range(2):
        o = OA + 8 * grp
        for k in range(4):
            g.e("v_cvt_pk_bf16_f32 %s, %s, %s" % (vr(TM + 4 * grp + k), vr(o + 2 * k), vr(o + 2 * k + 1)))
        g.e("buffer_store_dwordx4 %s, %s, %s, %s offen" % (vr(TM + 4 * grp, 4), vr(vL16), sr(SRD, 4), sr(sT + grp)))
    g.e("s_endpgm")
    g.label("K2_GATE")
    g.e("s_sub_u32 %s, s2, 512" % sr(sT))
    g.e("s_lshl_b32 %s, %s, 6" % (sr(sT), sr(sT)))
    g.e("s_lshl_b32 %s, %s, 4" % (sr(sT + 1), sr(sW)))
    g.e("s_add_u32 %s, %s, %s" % (sr(sT), sr(sT), sr(sT + 1)))
    g.e("s_lshl_b32 %s, %s, 11" % (sr(sT + 1), sr(sT)))
    g.e("v_lshlrev_b32 v3, 5, v0")
    g.e("v_add_u32 v4, %s, v3" % sr(sT + 1))
    g.e("global_load_dwordx4 v[8:11], v3, %s" % sr(sGW, 2))
    g.e("global_load_dwordx4 v[12:15], v3, %s offset:16" % sr(sGW, 2))
    GW = 16
    XR = 32
    for r in range(16):
        if r % 2 == 0 and r > 0:
            g.e("v_add_u32 v4, 4096, v4")
        g.e("global_load_dwordx4 %s, v4, %s offset:%d" % (vr(XR + 8 * r, 4), sr(sX, 2), (r % 2) * 2048))
        g.e("global_load_dwordx4 %s, v4, %s offset:%d" % (vr(XR + 8 * r + 4, 4), sr(sX, 2), (r % 2) * 2048 + 16))
    g.e("s_waitcnt vmcnt(32)")
    for k in range(8):
        g.e("v_lshlrev_b32 %s, 16, %s" % (vr(GW + 2 * k), vr(8 + k)))
        g.e("v_and_b32 %s, 0xffff0000, %s" % (vr(GW + 2 * k + 1), vr(8 + k)))
    RS = 160
    for r in range(16):
        g.e("s_waitcnt vmcnt(%d)" % (30 - 2 * r))
        for k in range(8):
            x = XR + 8 * r + k
            a = 176 + 2 * (k % 4)
            g.e("v_and_b32 %s, 0xffff0000, %s" % (vr(a + 1), vr(x)))
            g.e("v_lshlrev_b32 %s, 16, %s" % (vr(a), vr(x)))
            g.e("v_pk_mul_f32 %s, %s, %s" % (vr(a, 2), vr(a, 2), vr(GW + 2 * k, 2)))
            round_pair(g, a, 184 + (k % 4))
            if k == 0:
                g.e("v_mov_b32 v188, %s" % vr(a))
                g.e("v_mov_b32 v189, %s" % vr(a + 1))
            else:
                g.e("v_pk_add_f32 v[188:189], v[188:189], %s" % vr(a, 2))
        g.e("v_add_f32 %s, v188, v189" % vr(RS + r))
    for r in range(16):
        a = RS + r
        g.e("s_nop 1")
        g.e("v_add_f32_dpp %s, %s, %s quad_perm:[1,0,3,2] row_mask:0xf bank_mask:0xf" % (vr(a), vr(a), vr(a)))
        g.e("s_nop 1")
        g.e("v_add_f32_dpp %s, %s, %s quad_perm:[2,3,0,1] row_mask:0xf bank_mask:0xf" % (vr(a), vr(a), vr(a)))
        g.e("s_nop 1")
        g.e("v_add_f32_dpp %s, %s, %s row_half_mirror row_mask:0xf bank_mask:0xf" % (vr(a), vr(a), vr(a)))
        g.e("s_nop 1")
        g.e("v_add_f32_dpp %s, %s, %s row_mirror row_mask:0xf bank_mask:0xf" % (vr(a), vr(a), vr(a)))
        g.e("v_mov_b32 v190, %s" % vr(a))
        g.e("s_nop 1")
        g.e("v_permlane32_swap_b32 %s, v190" % vr(a))
        g.e("v_add_f32 %s, %s, v190" % (vr(a), vr(a)))
        g.e("v_mov_b32 v190, %s" % vr(a))
        g.e("s_nop 1")
        g.e("v_permlane16_swap_b32 %s, v190" % vr(a))
        g.e("v_add_f32 %s, %s, v190" % (vr(a), vr(a)))
    g.e("v_mov_b32 v191, %s" % vr(RS))
    for r in range(1, 16):
        g.e("v_cmp_eq_u32 vcc, %d, v0" % r)
        g.e("s_nop 1")
        g.e("v_cndmask_b32 v191, v191, %s, vcc" % vr(RS + r))
    g.e("v_mov_b32 v192, 0")
    g.e("v_cvt_pk_bf16_f32 v193, v191, v192")
    g.e("v_lshlrev_b32 v191, 16, v193")
    g.e("v_mul_f32 v192, 0x%x, v191" % f2u(-LOG2E))
    g.e("v_exp_f32 v192, v192")
    g.e("s_nop 0")
    g.e("v_add_f32 v192, 1.0, v192")
    g.e("v_rcp_f32 v192, v192")
    g.e("s_nop 0")
    g.e("v_mov_b32 v193, 0")
    g.e("v_cvt_pk_bf16_f32 v193, v192, v193")
    g.e("v_lshlrev_b32 v192, 16, v193")
    g.e("v_lshlrev_b32 v193, 2, v0")
    g.e("s_lshl_b32 %s, %s, 2" % (sr(sT + 1), sr(sT)))
    g.e("s_add_u32 %s, %s, 0x%x" % (sr(sT + 1), sr(sT + 1), G_OFF))
    g.e("v_cmp_gt_u32 vcc, 16, v0")
    g.e("s_and_saveexec_b64 %s, vcc" % sr(sMk, 2))
    g.e("buffer_store_dword v192, v193, %s, %s offen" % (sr(SRD, 4), sr(sT + 1)))
    g.label("K2_END")
    g.e("s_endpgm")
    return name

def gen_k3(g):
    name = "k3_gemm2_kernel"
    kstart(g, name)
    g.lq = []; g.vq = []
    NST = 72
    RING = 6
    WLDS = 98304
    sWS, sWo, sWd, sOut = 4, 6, 8, 10
    sRB, sCB, sW, sWM, sWN, sT = 12, 13, 14, 15, 16, 17
    sXb, sWb = 24, 26
    sXm0, sWm0 = 28, 29
    SRDO = 32
    SRD = 36
    g.e("s_cmp_ge_u32 s2, 256")
    g.e("s_cbranch_scc1 K3_END")
    g.e("s_load_dwordx2 %s, s[0:1], 80" % sr(sWS, 2))
    g.e("s_load_dwordx2 %s, s[0:1], 16" % sr(sWo, 2))
    g.e("s_load_dwordx2 %s, s[0:1], 48" % sr(sWd, 2))
    g.e("s_load_dwordx2 %s, s[0:1], 64" % sr(sOut, 2))
    g.e("s_and_b32 %s, s2, 7" % sr(sT))
    g.e("s_lshr_b32 %s, s2, 3" % sr(sT + 1))
    g.e("s_lshr_b32 %s, %s, 1" % (sr(sRB), sr(sT)))
    g.e("s_lshl_b32 %s, %s, 2" % (sr(sRB), sr(sRB)))
    g.e("s_and_b32 %s, %s, 3" % (sr(sT + 2), sr(sT + 1)))
    g.e("s_add_u32 %s, %s, %s" % (sr(sRB), sr(sRB), sr(sT + 2)))
    g.e("s_and_b32 %s, %s, 1" % (sr(sCB), sr(sT)))
    g.e("s_lshl_b32 %s, %s, 3" % (sr(sCB), sr(sCB)))
    g.e("s_lshr_b32 %s, %s, 2" % (sr(sT + 2), sr(sT + 1)))
    g.e("s_add_u32 %s, %s, %s" % (sr(sCB), sr(sCB), sr(sT + 2)))
    g.e("v_lshrrev_b32 v1, 6, v0")
    g.e("v_and_b32 v0, 63, v0")
    g.e("v_readfirstlane_b32 %s, v1" % sr(sW))
    g.e("s_and_b32 %s, %s, 1" % (sr(sWM), sr(sW)))
    g.e("s_lshr_b32 %s, %s, 1" % (sr(sWN), sr(sW)))
    vXo = 2
    vWo = 4
    vXrd = 6
    vWrd = 8
    vG = 10
    vOo = 14
    t0, t1, t2, t3, t4 = 16, 17, 18, 19, 20
    XF = 24
    WF = 56
    ACA = 72
    ACB = 104
    TM = 136
    g.e("s_lshl_b32 %s, %s, 3" % (sr(sT), sr(sRB)))
    g.e("s_lshl_b32 %s, %s, 1" % (sr(sT + 1), sr(sW)))
    g.e("s_add_u32 %s, %s, %s" % (sr(sT), sr(sT), sr(sT + 1)))
    g.e("s_mul_i32 %s, %s, %d" % (sr(sT), sr(sT), NKB * 1024))
    g.e("v_lshlrev_b32 %s, 4, v0" % vr(t0))
    g.e("v_add_u32 %s, %s, %s" % (vr(vXo), sr(sT), vr(t0)))
    g.e("v_add_u32 %s, %d, %s" % (vr(vXo + 1), NKB * 1024, vr(vXo)))
    g.e("s_lshl_b32 %s, %s, 13" % (sr(sT), sr(sWM)))
    g.e("v_add_u32 %s, %s, %s" % (vr(vXrd), sr(sT), vr(t0)))
    g.e("v_add_u32 %s, %d, %s" % (vr(vXrd + 1), 3 * 16384, vr(vXrd)))
    g.e("v_lshrrev_b32 %s, 3, v0" % vr(t1))
    g.e("v_and_b32 %s, 6, %s" % (vr(t2), vr(t1)))
    g.e("v_and_b32 %s, 7, v0" % vr(t3))
    g.e("v_xor_b32 %s, %s, %s" % (vr(t3), vr(t3), vr(t2)))
    g.e("s_lshl_b32 %s, %s, 4" % (sr(sT), sr(sW)))
    g.e("v_add_u32 %s, %s, %s" % (vr(t1), sr(sT), vr(t1)))
    g.e("v_lshlrev_b32 %s, 11, %s" % (vr(t1), vr(t1)))
    g.e("v_lshl_add_u32 %s, %s, 4, %s" % (vr(t1), vr(t3), vr(t1)))
    g.e("s_lshl_b32 %s, %s, 7" % (sr(sT), sr(sCB)))
    g.e("v_add_u32 %s, %s, %s" % (vr(vWo), sr(sT), vr(t1)))
    g.e("v_add_u32 %s, %d, %s" % (vr(vWo + 1), 8 * 2048, vr(vWo)))
    g.e("v_and_b32 %s, 15, v0" % vr(t0))
    g.e("v_lshrrev_b32 %s, 4, v0" % vr(t1))
    g.e("v_lshrrev_b32 %s, 2, %s" % (vr(t2), vr(t0)))
    g.e("v_lshl_add_u32 %s, %s, 2, %s" % (vr(t2), vr(t1), vr(t2)))
    g.e("v_bfe_u32 %s, %s, 1, 2" % (vr(t3), vr(t2)))
    g.e("v_lshlrev_b32 %s, 7, %s" % (vr(t2), vr(t2)))
    g.e("v_and_b32 %s, 3, %s" % (vr(t4), vr(t0)))
    g.e("v_lshl_add_u32 %s, %s, 3, %s" % (vr(t2), vr(t4), vr(t2)))
    g.e("v_add_u32 %s, %d, %s" % (vr(t2), WLDS, vr(t2)))
    for tl in range(2):
        g.e("s_lshl_b32 %s, %s, 1" % (sr(sT), sr(sWN)))
        g.e("s_add_u32 %s, %s, %d" % (sr(sT), sr(sT), tl))
        g.e("v_xor_b32 %s, %s, %s" % (vr(t4), sr(sT), vr(t3)))
        g.e("v_lshl_add_u32 %s, %s, 5, %s" % (vr(vWrd + tl), vr(t4), vr(t2)))
    g.e("s_lshl_b32 %s, %s, 7" % (sr(sT), sr(sRB)))
    g.e("s_lshl_b32 %s, %s, 6" % (sr(sT + 1), sr(sWM)))
    g.e("s_add_u32 %s, %s, %s" % (sr(sT), sr(sT), sr(sT + 1)))
    g.e("v_add_u32 %s, %s, %s" % (vr(t2), sr(sT), vr(t0)))
    g.e("v_lshlrev_b32 %s, 2, %s" % (vr(t4), vr(t2)))
    g.e("v_lshlrev_b32 %s, 11, %s" % (vr(t2), vr(t2)))
    g.e("v_lshl_add_u32 %s, %s, 3, %s" % (vr(t2), vr(t1), vr(t2)))
    g.e("s_lshl_b32 %s, %s, 7" % (sr(sT), sr(sCB)))
    g.e("s_lshl_b32 %s, %s, 6" % (sr(sT + 1), sr(sWN)))
    g.e("s_add_u32 %s, %s, %s" % (sr(sT), sr(sT), sr(sT + 1)))
    g.e("v_add_u32 %s, %s, %s" % (vr(vOo), sr(sT), vr(t2)))
    g.e("s_lshl_b32 %s, %s, 12" % (sr(sXm0), sr(sW)))
    g.e("s_lshl_b32 %s, %s, 11" % (sr(sWm0), sr(sW)))
    g.e("s_add_u32 %s, %s, %d" % (sr(sWm0), sr(sWm0), WLDS))
    g.e("s_waitcnt lgkmcnt(0)")
    g.e("s_mov_b32 %s, %s" % (sr(SRD), sr(sWS)))
    g.e("s_and_b32 %s, %s, 0xffff" % (sr(SRD + 1), sr(sWS + 1)))
    g.e("s_mov_b32 %s, 0x%x" % (sr(SRD + 2), WS_BYTES))
    g.e("s_mov_b32 %s, 0x00020000" % sr(SRD + 3))
    g.e("s_mov_b32 %s, %s" % (sr(SRDO), sr(sOut)))
    g.e("s_and_b32 %s, %s, 0xffff" % (sr(SRDO + 1), sr(sOut + 1)))
    g.e("s_mov_b32 %s, 0x400000" % sr(SRDO + 2))
    g.e("s_mov_b32 %s, 0x00020000" % sr(SRDO + 3))
    g.e("s_mov_b64 %s, %s" % (sr(sXb, 2), sr(sWS, 2)))
    g.e("s_mov_b64 %s, %s" % (sr(sWb, 2), sr(sWo, 2)))
    g.e("s_mov_b32 %s, 0x%x" % (sr(sT), G_OFF))
    for rg in range(4):
        g.vm("buffer_load_dword %s, %s, %s, %s offen offset:%d" % (vr(vG + rg), vr(t4), sr(SRD, 4), sr(sT), rg * 64), ("g",))

    def dma(st, idx):
        slot = st % RING
        tag = ("dma", st)
        if idx < 4:
            m, kb = idx // 2, idx % 2
            g.e("s_add_u32 m0, %s, %d" % (sr(sXm0), slot * 16384 + m * 2048))
            g.e("s_nop 0")
            g.vm("global_load_lds_dwordx4 %s, %s offset:%d" % (vr(vXo + m), sr(sXb, 2), kb * 1024), tag)
            if idx == 3:
                g.e("s_add_u32 %s, %s, 2048" % (sr(sXb), sr(sXb)))
                g.e("s_addc_u32 %s, %s, 0" % (sr(sXb + 1), sr(sXb + 1)))
        else:
            i = idx - 4
            g.e("s_add_u32 m0, %s, %d" % (sr(sWm0), slot * 8192 + i * 1024))
            g.e("s_nop 0")
            g.vm("global_load_lds_dwordx4 %s, %s" % (vr(vWo + i), sr(sWb, 2)), tag)
            if i == 1:
                if st == 15:
                    g.e("s_mov_b64 %s, %s" % (sr(sWb, 2), sr(sWd, 2)))
                else:
                    g.e("s_add_u32 %s, %s, %d" % (sr(sWb), sr(sWb), 64 * 2048))
                    g.e("s_addc_u32 %s, %s, 0" % (sr(sWb + 1), sr(sWb + 1)))
    def fread(n):
        st, kb = divmod(n, 2)
        slot = st % RING
        xb = vXrd + (slot // 3)
        for rg in range(4):
            g.lds("ds_read_b128 %s, %s offset:%d" % (vr(XF + 16 * (n % 2) + 4 * rg, 4), vr(xb), (slot % 3) * 16384 + (rg * 2 + kb) * 1024), ("f", n))
        for tl in range(2):
            reg = WF + 8 * (n % 2) + 4 * tl
            off = slot * 8192 + kb * 4096
            g.lds("ds_read_b64_tr_b16 %s, %s offset:%d" % (vr(reg, 2), vr(vWrd + tl), off), ("f", n))
            g.lds("ds_read_b64_tr_b16 %s, %s offset:%d" % (vr(reg + 2, 2), vr(vWrd + tl), off + 2048), ("f", n))
    for st in range(RING - 1):
        for idx in range(6):
            dma(st, idx)
    g.need(vtags=[("dma", 0)])
    g.e("s_barrier")
    fread(0)
    for s in range(NST):
        g.c("---- stage %d" % s)
        if s + 1 < NST:
            g.need(vtags=[("dma", s + 1)])
            g.e("s_barrier")
        for kb in range(2):
            n = 2 * s + kb
            if s + RING - 1 < NST:
                for idx in range(3 * kb, 3 * kb + 3):
                    dma(s + RING - 1, idx)
            if n + 1 < 2 * NST:
                fread(n + 1)
            g.need(ltags=[("f", n)])
            AC = ACA if n < 32 else ACB
            first = (n == 0 or n == 32)
            for rg in range(4):
                for tl in range(2):
                    a = AC + (rg * 2 + tl) * 4
                    cin = "0" if first else vr(a, 4)
                    g.e("v_mfma_f32_16x16x32_bf16 %s, %s, %s, %s" % (vr(a, 4), vr(WF + 8 * (n % 2) + 4 * tl, 4), vr(XF + 16 * (n % 2) + 4 * rg, 4), cin))
    g.c("---- epilogue")
    g.e("s_nop 7")
    for rg in range(4):
        gp, op = TM, TM + 2
        g.e("v_mov_b32 %s, %s" % (vr(gp), vr(vG + rg)))
        g.e("v_mov_b32 %s, %s" % (vr(gp + 1), vr(vG + rg)))
        g.e("v_sub_f32 %s, 1.0, %s" % (vr(op), vr(vG + rg)))
        g.e("v_sub_f32 %s, 1.0, %s" % (vr(op + 1), vr(vG + rg)))
        round_pair(g, op, TM + 4)
        for tl in range(2):
            ob = TM + 8 + 2 * ((rg * 2 + tl) % 4)
            for pr in range(2):
                a = ACA + (rg * 2 + tl) * 4 + 2 * pr
                b = ACB + (rg * 2 + tl) * 4 + 2 * pr
                round_pair(g, a, TM + 5)
                round_pair(g, b, TM + 6)
                g.e("v_pk_mul_f32 %s, %s, %s" % (vr(a, 2), vr(a, 2), vr(gp, 2)))
                g.e("v_pk_mul_f32 %s, %s, %s" % (vr(b, 2), vr(b, 2), vr(op, 2)))
                round_pair(g, a, TM + 5)
                round_pair(g, b, TM + 6)
                g.e("v_pk_add_f32 %s, %s, %s" % (vr(a, 2), vr(a, 2), vr(b, 2)))
                g.e("v_cvt_pk_bf16_f32 %s, %s, %s" % (vr(ob + pr), vr(a), vr(a + 1)))
            g.e("s_mov_b32 %s, %d" % (sr(sT), rg * 16 * 2048))
            g.e("buffer_store_dwordx2 %s, %s, %s, %s offen offset:%d" % (vr(ob, 2), vr(vOo), sr(SRDO, 4), sr(sT), tl * 32))
    g.label("K3_END")
    g.e("s_endpgm")
    return name

def main():
    hdr = []
    ref = open("cdna_kernels/%s.s.ref" % NAME).read().splitlines()
    for l in ref:
        if l.startswith(";") and "@launch" not in l:
            hdr.append(l)
        elif not l.startswith(";"):
            break
    hdr.append("; @launch kernel=k1_gemm1_kernel grid=(256,1,1) block=(512,1,1) lds=147456")
    hdr.append("; @launch kernel=k2_attn_kernel grid=(544,1,1) block=(256,1,1) lds=49152")
    hdr.append("; @launch kernel=k3_gemm2_kernel grid=(256,1,1) block=(256,1,1) lds=147456")
    g = Gen()
    g.raw('.amdgcn_target "amdgcn-amd-amdhsa--gfx950"')
    g.raw(".text")
    k1 = gen_k1(g)
    k2 = gen_k2(g)
    k3 = gen_k3(g)
    out = "\n".join(hdr) + "\n" + "\n".join(g.lines) + "\n"
    out += kd(k1, 256, 64, 256)
    out += kd(k2, 256, 48, 256)
    out += kd(k3, 160, 48, 160)
    path = sys.argv[1] if len(sys.argv) > 1 else "cdna_kernels/%s.s" % NAME
    open(path, "w").write(out)

if __name__ == "__main__":
    main()
```

```python
import sys, struct

NAME = "gated_mix__sliding_block__geglu_ffn__prompt"

A2_OFF = 0
NKB = 144
QKV_OFF = 0x1400000
G_OFF = 0x2400000
WS_BYTES = 0x10000000

def f2u(x):
    return struct.unpack("<I", struct.pack("<f", x))[0]

class Gen:
    def __init__(self):
        self.lines = []
        self.lq = []
        self.vq = []
        self.nlab = 0
    def e(self, s):
        self.lines.append("    " + s)
    def c(self, s):
        self.lines.append("    ; " + s)
    def label(self, s):
        self.lines.append(s + ":")
    def newlab(self, p="L"):
        self.nlab += 1
        return "%s_%d" % (p, self.nlab)
    def raw(self, s):
        self.lines.append(s)
    def lds(self, s, tag):
        self.e(s); self.lq.append(tag)
    def vm(self, s, tag):
        self.e(s); self.vq.append(tag)
    def _need(self, q, tags):
        last = -1
        for i, t in enumerate(q):
            if t in tags:
                last = i
        if last < 0:
            return None
        return len(q) - 1 - last, last
    def need(self, ltags=(), vtags=()):
        w = []
        r = self._need(self.lq, set(ltags))
        if r is not None:
            n, last = r
            if n > 15:
                n = 15
                last = len(self.lq) - 1 - 15
            self.lq = self.lq[last + 1:]
            w.append("lgkmcnt(%d)" % n)
        r = self._need(self.vq, set(vtags))
        if r is not None:
            n, last = r
            if n > 63:
                n = 63
                last = len(self.vq) - 1 - 63
            self.vq = self.vq[last + 1:]
            w.insert(0, "vmcnt(%d)" % n)
        if w:
            self.e("s_waitcnt " + " ".join(w))
    def waitall(self):
        self.e("s_waitcnt vmcnt(0) lgkmcnt(0)")
        self.lq = []; self.vq = []

def vr(a, n=1):
    return "v%d" % a if n == 1 else "v[%d:%d]" % (a, a + n - 1)
def sr(a, n=1):
    return "s%d" % a if n == 1 else "s[%d:%d]" % (a, a + n - 1)

def kd(name, vgpr, sgpr, accum):
    return """.section .rodata,"a"
.p2align 6
.amdhsa_kernel %s
  .amdhsa_next_free_vgpr %d
  .amdhsa_next_free_sgpr %d
  .amdhsa_accum_offset %d
  .amdhsa_group_segment_fixed_size 0
  .amdhsa_kernarg_size 88
  .amdhsa_user_sgpr_count 2
  .amdhsa_user_sgpr_kernarg_segment_ptr 1
  .amdhsa_system_sgpr_workgroup_id_x 1
.end_amdhsa_kernel
.text
""" % (name, vgpr, sgpr, accum)

import os
STAMP = bool(os.environ.get("STAMP"))
ABL = os.environ.get("ABL", "").split(",")
def stamp_begin(g):
    if not STAMP: return
    g.nst = 1
    g.e("s_memtime s[70:71]")
    g.e("s_memrealtime s[98:99]")
def stamp(g):
    if not STAMP: return
    g.e("s_memtime s[%d:%d]" % (70 + 2 * g.nst, 71 + 2 * g.nst))
    g.nst += 1
def stamp_end(g, tmpv=0):
    if not STAMP: return
    lab = g.newlab("STP")
    stamp(g)
    g.e("s_waitcnt vmcnt(0) lgkmcnt(0)")
    stamp(g)
    g.e("s_memrealtime s[96:97]")
    g.e("s_load_dwordx2 s[100:101], s[0:1], 72")
    g.e("s_waitcnt lgkmcnt(0)")
    g.e("s_cmp_ge_u32 s2, 4")
    g.e("s_cbranch_scc1 %s" % lab)
    g.e("v_readfirstlane_b32 s94, v1" if False else "s_nop 0")
    g.e("s_mov_b64 exec, 1")
    g.e("s_lshl_b32 s94, s2, 5")
    g.e("v_mov_b32 %s, s94" % vr(tmpv + 2))
    g.e("s_sub_u32 s96, s96, s98")
    g.e("v_mov_b32 %s, s96" % vr(tmpv))
    g.e("global_store_dword %s, %s, s[100:101]" % (vr(tmpv + 2), vr(tmpv)))
    for i in range(1, g.nst):
        g.e("s_sub_u32 s96, s%d, s70" % (70 + 2 * i))
        g.e("v_mov_b32 %s, s96" % vr(tmpv))
        g.e("global_store_dword %s, %s, s[100:101] offset:%d" % (vr(tmpv + 2), vr(tmpv), 4 * i))
    g.label(lab)

def kstart(g, name):
    g.raw(".globl %s" % name)
    g.raw(".p2align 8")
    g.raw(".type %s,@function" % name)
    g.label(name)

LOG2E = 1.4426950408889634
GK1 = -2.0 * LOG2E * 0.7978845608028654
GK2 = GK1 * 0.044715

def round_pair(g, a, tmp=None):
    g.e("v_cvt_pk_bf16_f32 %s, 0, %s" % (vr(a), vr(a)))
    g.e("v_cvt_pk_bf16_f32 %s, 0, %s" % (vr(a + 1), vr(a + 1)))

def gen_k1(g):
    name = "k1_gemm1_kernel"
    kstart(g, name)
    NST = 32
    D = 4
    WSL = 8
    XBASE = 81920
    vXo = 2
    vWp = 4
    vWs = 10
    vXrd = 13
    vWrd = 14
    vL16 = 24
    XF = 32
    WF = 64
    ACC = 96
    def acc(t, rg): return ACC + (t * 4 + rg) * 4
    sX, sQ, sG, sU, sWS = 4, 6, 8, 10, 12
    sRB, sCB, sW, sWM, sWN = 14, 15, 16, 17, 18
    sXm0, sWm0, sWm0h = 19, 20, 21
    sN1, sColF, sColQA, sColQB = 22, 23, 24, 25
    sT = 26
    SRD = 40
    g.e("s_cmp_ge_u32 s2, 256")
    g.e("s_cbranch_scc1 K1_END")
    stamp_begin(g)
    g.e("s_load_dwordx2 %s, s[0:1], 0" % sr(sX, 2))
    g.e("s_load_dwordx2 %s, s[0:1], 8" % sr(sQ, 2))
    g.e("s_load_dwordx4 %s, s[0:1], 32" % sr(sG, 4))
    g.e("s_load_dwordx2 %s, s[0:1], 80" % sr(sWS, 2))
    g.e("s_and_b32 %s, s2, 7" % sr(sT))
    g.e("s_lshr_b32 %s, s2, 3" % sr(sT + 1))
    g.e("s_lshl_b32 %s, %s, 2" % (sr(sCB), sr(sT)))
    g.e("s_and_b32 %s, %s, 3" % (sr(sT + 2), sr(sT + 1)))
    g.e("s_add_u32 %s, %s, %s" % (sr(sCB), sr(sCB), sr(sT + 2)))
    g.e("s_lshr_b32 %s, %s, 2" % (sr(sRB), sr(sT + 1)))
    g.e("v_lshrrev_b32 v1, 6, v0")
    g.e("v_and_b32 v0, 63, v0")
    g.e("v_readfirstlane_b32 %s, v1" % sr(sW))
    g.e("s_and_b32 %s, %s, 3" % (sr(sWM), sr(sW)))
    g.e("s_lshr_b32 %s, %s, 2" % (sr(sWN), sr(sW)))
    g.e("v_lshlrev_b32 %s, 4, v0" % vr(vL16))
    g.e("s_lshl_b32 %s, %s, 11" % (sr(sXm0), sr(sW)))
    g.e("s_add_u32 %s, %s, %d" % (sr(sXm0), sr(sXm0), XBASE))
    g.e("s_lshl_b32 %s, %s, 10" % (sr(sWm0), sr(sW)))
    g.e("s_lshl_b32 %s, %s, 9" % (sr(sWm0h), sr(sW)))
    g.e("s_mul_i32 %s, %s, 160" % (sr(sColF), sr(sCB)))
    g.e("s_mul_i32 %s, %s, 320" % (sr(sColQA), sr(sCB)))
    g.e("s_sub_u32 %s, %s, %d" % (sr(sColQA), sr(sColQA), 320 * 23 - 192))
    g.e("s_add_u32 %s, %s, 160" % (sr(sColQB), sr(sColQA)))
    g.e("s_mov_b32 %s, 0" % sr(sN1))
    g.e("s_cmp_eq_u32 %s, 22" % sr(sCB))
    g.e("s_cselect_b32 %s, -64, %s" % (sr(sColQA), sr(sColQA)))
    g.e("s_cselect_b32 %s, 32, %s" % (sr(sColQB), sr(sColQB)))
    g.e("s_cselect_b32 %s, 8, %s" % (sr(sN1), sr(sN1)))
    g.e("s_cmp_lt_u32 %s, 22" % sr(sCB))
    g.e("s_cselect_b32 %s, 20, %s" % (sr(sN1), sr(sN1)))
    t0, t1, t2, t3, t4, t5, t6, t7, t8, t9 = range(XF, XF + 10)
    g.e("v_lshrrev_b32 %s, 2, v0" % vr(t0))
    g.e("v_lshrrev_b32 %s, 4, v0" % vr(t1))
    g.e("v_and_b32 %s, 2, %s" % (vr(t1), vr(t1)))
    g.e("v_and_b32 %s, 3, v0" % vr(t2))
    g.e("v_xor_b32 %s, %s, %s" % (vr(t2), vr(t2), vr(t1)))
    g.e("s_lshl_b32 %s, %s, 8" % (sr(sT), sr(sRB)))
    g.e("s_lshl_b32 %s, %s, 5" % (sr(sT + 1), sr(sW)))
    g.e("s_add_u32 %s, %s, %s" % (sr(sT), sr(sT), sr(sT + 1)))
    g.e("v_add_u32 %s, %s, %s" % (vr(t0), sr(sT), vr(t0)))
    g.e("v_lshlrev_b32 %s, 11, %s" % (vr(t0), vr(t0)))
    g.e("v_lshl_add_u32 %s, %s, 4, %s" % (vr(vXo), vr(t2), vr(t0)))
    g.e("v_add_u32 %s, 0x8000, %s" % (vr(vXo + 1), vr(vXo)))
    g.e("v_and_b32 %s, 15, v0" % vr(t0))
    g.e("v_lshrrev_b32 %s, 4, v0" % vr(t1))
    g.e("v_lshrrev_b32 %s, 2, %s" % (vr(t2), vr(t0)))
    g.e("v_and_b32 %s, 2, %s" % (vr(t2), vr(t2)))
    g.e("v_xor_b32 %s, %s, %s" % (vr(t2), vr(t2), vr(t1)))
    g.e("v_lshlrev_b32 %s, 6, %s" % (vr(t3), vr(t0)))
    g.e("v_lshl_add_u32 %s, %s, 4, %s" % (vr(t3), vr(t2), vr(t3)))
    g.e("s_lshl_b32 %s, %s, 12" % (sr(sT), sr(sWM)))
    g.e("s_add_u32 %s, %s, %d" % (sr(sT), sr(sT), XBASE))
    g.e("v_add_u32 %s, %s, %s" % (vr(vXrd), sr(sT), vr(t3)))
    g.e("v_lshrrev_b32 %s, 2, %s" % (vr(t2), vr(t0)))
    g.e("v_lshl_add_u32 %s, %s, 3, %s" % (vr(t2), vr(t1), vr(t2)))
    g.e("v_mul_u32_u24 %s, 640, %s" % (vr(t2), vr(t2)))
    g.e("v_and_b32 %s, 3, %s" % (vr(t3), vr(t0)))
    g.e("v_lshl_add_u32 %s, %s, 3, %s" % (vr(t2), vr(t3), vr(t2)))
    g.e("v_bfe_u32 %s, %s, 3, 1" % (vr(t3), vr(t0)))
    g.e("v_and_b32 %s, 1, %s" % (vr(t4), vr(t1)))
    g.e("v_lshl_or_b32 %s, %s, 1, %s" % (vr(t3), vr(t4), vr(t3)))
    g.e("s_mul_i32 %s, %s, 6" % (sr(sT), sr(sWN)))
    g.e("s_add_u32 %s, %s, 4" % (sr(sT + 1), sr(sWN)))
    for j in range(5):
        for hf in range(2):
            if j < 4:
                g.e("s_add_u32 %s, %s, %d" % (sr(sT + 2), sr(sT), j + 10 * hf))
            else:
                g.e("s_add_u32 %s, %s, %d" % (sr(sT + 2), sr(sT + 1), 10 * hf))
            g.e("v_xor_b32 %s, %s, %s" % (vr(t4), sr(sT + 2), vr(t3)))
            g.e("v_lshl_add_u32 %s, %s, 5, %s" % (vr(vWrd + j + 5 * hf), vr(t4), vr(t2)))
    g.e("s_waitcnt lgkmcnt(0)")
    for n in range(3):
        if n < 2:
            g.e("s_lshl_b32 %s, %s, 6" % (sr(sT), sr(sW)))
            g.e("s_add_u32 %s, %s, %d" % (sr(sT), sr(sT), 512 * n))
            g.e("v_add_u32 %s, %s, v0" % (vr(t0), sr(sT)))
        else:
            g.e("s_lshl_b32 %s, %s, 5" % (sr(sT), sr(sW)))
            g.e("s_add_u32 %s, %s, 1024" % (sr(sT), sr(sT)))
            g.e("v_and_b32 %s, 31, v0" % vr(t0))
            g.e("v_add_u32 %s, %s, %s" % (vr(t0), sr(sT), vr(t0)))
        g.e("v_mul_u32_u24 %s, 52429, %s" % (vr(t1), vr(t0)))
        g.e("v_lshrrev_b32 %s, 21, %s" % (vr(t1), vr(t1)))
        g.e("v_mul_u32_u24 %s, 40, %s" % (vr(t2), vr(t1)))
        g.e("v_sub_u32 %s, %s, %s" % (vr(t2), vr(t0), vr(t2)))
        g.e("v_bfe_u32 %s, %s, 1, 1" % (vr(t3), vr(t1)))
        g.e("v_lshrrev_b32 %s, 2, %s" % (vr(t4), vr(t1)))
        g.e("v_and_b32 %s, 2, %s" % (vr(t4), vr(t4)))
        g.e("v_or_b32 %s, %s, %s" % (vr(t3), vr(t3), vr(t4)))
        g.e("v_lshlrev_b32 %s, 1, %s" % (vr(t3), vr(t3)))
        g.e("v_xor_b32 %s, %s, %s" % (vr(t2), vr(t2), vr(t3)))
        g.e("v_cmp_le_u32 vcc, 20, %s" % vr(t2))
        g.e("v_subrev_u32 %s, 20, %s" % (vr(t3), vr(t2)))
        g.e("s_nop 1")
        g.e("v_cndmask_b32 %s, %s, %s, vcc" % (vr(t2), vr(t2), vr(t3)))
        g.e("v_mov_b32 %s, %s" % (vr(t3), sr(sG)))
        g.e("v_mov_b32 %s, %s" % (vr(t4), sr(sU)))
        g.e("v_cndmask_b32 %s, %s, %s, vcc" % (vr(t3), vr(t3), vr(t4)))
        g.e("v_mov_b32 %s, %s" % (vr(t4), sr(sG + 1)))
        g.e("v_mov_b32 %s, %s" % (vr(t5), sr(sU + 1)))
        g.e("v_cndmask_b32 %s, %s, %s, vcc" % (vr(t4), vr(t4), vr(t5)))
        g.e("v_mov_b32 %s, %s" % (vr(t5), sr(sColQA)))
        g.e("v_mov_b32 %s, %s" % (vr(t6), sr(sColQB)))
        g.e("v_cndmask_b32 %s, %s, %s, vcc" % (vr(t5), vr(t5), vr(t6)))
        g.e("v_cmp_gt_u32 vcc, %s, %s" % (sr(sN1), vr(t2)))
        g.e("v_mov_b32 %s, %s" % (vr(t6), sr(sQ)))
        g.e("v_mov_b32 %s, %s" % (vr(t7), sr(sQ + 1)))
        g.e("v_cndmask_b32 %s, %s, %s, vcc" % (vr(t3), vr(t6), vr(t3)))
        g.e("v_cndmask_b32 %s, %s, %s, vcc" % (vr(t4), vr(t7), vr(t4)))
        g.e("v_mov_b32 %s, %s" % (vr(t6), sr(sColF)))
        g.e("v_cndmask_b32 %s, %s, %s, vcc" % (vr(t5), vr(t5), vr(t6)))
        g.e("v_mov_b32 %s, 6144" % vr(t6))
        g.e("v_mov_b32 %s, 7168" % vr(t7))
        g.e("v_cndmask_b32 %s, %s, %s, vcc" % (vr(t6), vr(t6), vr(t7)))
        g.e("v_lshl_add_u32 %s, %s, 3, %s" % (vr(t5), vr(t2), vr(t5)))
        g.e("v_mul_u32_u24 %s, %s, %s" % (vr(t7), vr(t1), vr(t6)))
        g.e("v_lshl_add_u32 %s, %s, 1, %s" % (vr(t7), vr(t5), vr(t7)))
        g.e("v_add_co_u32 %s, vcc, %s, %s" % (vr(vWp + 2 * n), vr(t3), vr(t7)))
        g.e("v_addc_co_u32 %s, vcc, 0, %s, vcc" % (vr(vWp + 2 * n + 1), vr(t4)))
        g.e("v_lshlrev_b32 %s, 5, %s" % (vr(vWs + n), vr(t6)))
    g.e("s_mov_b32 %s, %s" % (sr(SRD), sr(sWS)))
    g.e("s_and_b32 %s, %s, 0xffff" % (sr(SRD + 1), sr(sWS + 1)))
    g.e("s_mov_b32 %s, 0x%x" % (sr(SRD + 2), WS_BYTES))
    g.e("s_mov_b32 %s, 0x00020000" % sr(SRD + 3))

    def dma(st, idx):
        slot = st % 4
        tag = ("dma", st)
        if "samek" in ABL:
            if idx < 2:
                g.e("s_add_u32 m0, %s, %d" % (sr(sXm0), slot * 16384 + idx * 1024))
                g.e("s_nop 0")
                g.vm("global_load_lds_dwordx4 %s, %s" % (vr(vXo + idx), sr(sX, 2)), tag)
            elif idx < 4:
                n = idx - 2
                g.e("s_add_u32 m0, %s, %d" % (sr(sWm0), slot * 20480 + n * 8192))
                g.e("s_nop 0")
                g.vm("global_load_lds_dwordx4 %s, off" % vr(vWp + 2 * n, 2), tag)
            else:
                g.e("s_add_u32 m0, %s, %d" % (sr(sWm0h), slot * 20480 + 16384))
                g.e("s_mov_b32 exec_hi, 0")
                g.vm("global_load_lds_dwordx4 %s, off" % vr(vWp + 4, 2), tag)
                g.e("s_mov_b32 exec_hi, -1")
            return
        if idx < 2:
            g.e("s_add_u32 m0, %s, %d" % (sr(sXm0), slot * 16384 + idx * 1024 - st * 64))
            g.e("s_nop 0")
            g.vm("global_load_lds_dwordx4 %s, %s offset:%d" % (vr(vXo + idx), sr(sX, 2), st * 64), tag)
        elif idx < 4:
            n = idx - 2
            g.e("s_add_u32 m0, %s, %d" % (sr(sWm0), slot * 20480 + n * 8192))
            g.e("s_nop 0")
            g.vm("global_load_lds_dwordx4 %s, off" % vr(vWp + 2 * n, 2), tag)
            g.e("v_add_co_u32 %s, vcc, %s, %s" % (vr(vWp + 2 * n), vr(vWp + 2 * n), vr(vWs + n)))
            g.e("v_addc_co_u32 %s, vcc, 0, %s, vcc" % (vr(vWp + 2 * n + 1), vr(vWp + 2 * n + 1)))
        else:
            n = 2
            g.e("s_add_u32 m0, %s, %d" % (sr(sWm0h), slot * 20480 + 16384))
            g.e("s_mov_b32 exec_hi, 0")
            g.vm("global_load_lds_dwordx4 %s, off" % vr(vWp + 2 * n, 2), tag)
            g.e("s_mov_b32 exec_hi, -1")
            g.e("v_add_co_u32 %s, vcc, %s, %s" % (vr(vWp + 2 * n), vr(vWp + 2 * n), vr(vWs + n)))
            g.e("v_addc_co_u32 %s, vcc, 0, %s, vcc" % (vr(vWp + 2 * n + 1), vr(vWp + 2 * n + 1)))
    def wread(f):
        s, t = divmod(f, 10)
        reg = WF + 4 * (f % WSL)
        off = (s % 4) * 20480
        g.lds("ds_read_b64_tr_b16 %s, %s offset:%d" % (vr(reg, 2), vr(vWrd + t), off), ("w", f))
        g.lds("ds_read_b64_tr_b16 %s, %s offset:%d" % (vr(reg + 2, 2), vr(vWrd + t), off + 2560), ("w", f))
    def xread(s, rg):
        reg = XF + 16 * (s % 2) + 4 * rg
        g.lds("ds_read_b128 %s, %s offset:%d" % (vr(reg, 4), vr(vXrd), (s % 4) * 16384 + rg * 1024), ("x", s))

    stamp(g)
    for st in range(3):
        for idx in range(5):
            dma(st, idx)
    g.need(vtags=[("dma", 0)])
    g.e("s_barrier")
    stamp(g)
    for rg in range(4):
        xread(0, rg)
    for f in range(D):
        wread(f)
    for s in range(NST):
        g.c("---- stage %d" % s)
        if s + 1 < NST:
            g.need(vtags=[("dma", s + 1)])
            if "nobar" not in ABL:
                g.e("s_barrier")
        for gi in range(10):
            if gi < 5 and s + 3 < NST and "nodma" not in ABL and not ("noxdma" in ABL and gi < 2) and not ("nowdma" in ABL and gi >= 2):
                dma(s + 3, gi)
            f = s * 10 + gi + D
            if f < NST * 10 and "nolds" not in ABL:
                wread(f)
            if 2 <= gi < 6 and s + 1 < NST and "nolds" not in ABL:
                xread(s + 1, gi - 2)
            g.need(ltags=[("w", s * 10 + gi), ("x", s)])
            if "nomfma" in ABL and s > 0:
                continue
            wreg = WF + 4 * ((s * 10 + gi) % WSL)
            for rg in range(4):
                xreg = XF + 16 * (s % 2) + 4 * rg
                a = acc(gi, rg)
                cin = "0" if s == 0 else vr(a, 4)
                g.e("v_mfma_f32_16x16x32_bf16 %s, %s, %s, %s" % (vr(a, 4), vr(wreg, 4), vr(xreg, 4), cin))
    g.c("---- epilogue")
    stamp(g)
    sK1, sK2, sOne = 44, 46, 48
    vK1 = 26
    g.e("s_mov_b32 %s, 0x%x" % (sr(sK2), f2u(GK2)))
    g.e("s_mov_b32 %s, 0x%x" % (sr(sK2 + 1), f2u(GK2)))
    g.e("s_mov_b32 %s, 1.0" % sr(sOne))
    g.e("s_mov_b32 %s, 1.0" % sr(sOne + 1))
    g.e("v_mov_b32 %s, 0x%x" % (vr(vK1), f2u(GK1)))
    g.e("v_mov_b32 %s, 0x%x" % (vr(vK1 + 1), f2u(GK1)))
    sM0, sB, sDA, sDB, sJA = 50, 51, 52, 53, 54
    g.e("s_lshl_b32 %s, %s, 4" % (sr(sM0), sr(sRB)))
    g.e("s_lshl_b32 %s, %s, 2" % (sr(sT), sr(sWM)))
    g.e("s_add_u32 %s, %s, %s" % (sr(sM0), sr(sM0), sr(sT)))
    vL16s = 25
    g.e("s_lshl_b32 %s, %s, 3" % (sr(sT), sr(sWN)))
    g.e("v_add_u32 %s, %s, %s" % (vr(vL16s), sr(sT), vr(vL16)))
    g.e("s_nop 7")
    TMP = 32
    for u in range(3):
        lq, ldone = g.newlab("K1_Q"), g.newlab("K1_D")
        if u < 2:
            g.e("s_mul_i32 %s, %s, 3" % (sr(sB), sr(sWN)))
            g.e("s_add_u32 %s, %s, %d" % (sr(sB), sr(sB), u))
        else:
            g.e("s_mov_b32 %s, 2" % sr(sB))
        g.e("s_lshl_b32 %s, %s, 2" % (sr(sT), sr(sB)))
        g.e("s_cmp_lt_u32 %s, %s" % (sr(sT), sr(sN1)))
        g.e("s_cbranch_scc0 %s" % lq)
        g.e("s_mul_i32 %s, %s, 5" % (sr(sT), sr(sCB)))
        g.e("s_add_u32 %s, %s, %s" % (sr(sT), sr(sT), sr(sB)))
        g.e("s_add_u32 %s, %s, 32" % (sr(sT), sr(sT)))
        g.e("s_mul_i32 %s, %s, %d" % (sr(sDA), sr(sM0), NKB))
        g.e("s_add_u32 %s, %s, %s" % (sr(sDA), sr(sDA), sr(sT)))
        g.e("s_lshl_b32 %s, %s, 10" % (sr(sDA), sr(sDA)))
        tiles = [2 * u, 2 * u + 1] if u < 2 else [4]
        for rg in range(4):
            outb = TMP + 8 * (rg % 2)
            k = 0
            for t in tiles:
                for pr in range(2):
                    ga = acc(t, rg) + 2 * pr
                    ua = acc(t + 5, rg) + 2 * pr
                    tm = TMP + 16 + 8 * (k % 2)
                    round_pair(g, ga, tm)
                    round_pair(g, ua, tm + 1)
                    g.e("v_pk_mul_f32 %s, %s, %s" % (vr(tm + 2, 2), vr(ga, 2), vr(ga, 2)))
                    g.e("v_pk_fma_f32 %s, %s, %s, %s" % (vr(tm + 2, 2), vr(tm + 2, 2), sr(sK2, 2), vr(vK1, 2)))
                    g.e("v_pk_mul_f32 %s, %s, %s" % (vr(tm + 2, 2), vr(tm + 2, 2), vr(ga, 2)))
                    g.e("v_exp_f32 %s, %s" % (vr(tm + 2), vr(tm + 2)))
                    g.e("v_exp_f32 %s, %s" % (vr(tm + 3), vr(tm + 3)))
                    g.e("s_nop 0")
                    g.e("v_pk_add_f32 %s, %s, %s" % (vr(tm + 2, 2), vr(tm + 2, 2), sr(sOne, 2)))
                    g.e("v_rcp_f32 %s, %s" % (vr(tm + 2), vr(tm + 2)))
                    g.e("v_rcp_f32 %s, %s" % (vr(tm + 3), vr(tm + 3)))
                    g.e("s_nop 0")
                    g.e("v_pk_mul_f32 %s, %s, %s" % (vr(ga, 2), vr(tm + 2, 2), vr(ga, 2)))
                    round_pair(g, ga, tm)
                    g.e("v_pk_mul_f32 %s, %s, %s" % (vr(ga, 2), vr(ga, 2), vr(ua, 2)))
                    g.e("v_cvt_pk_bf16_f32 %s, %s, %s" % (vr(outb + k), vr(ga), vr(ga + 1)))
                    k += 1
            if u < 2:
                g.e("buffer_store_dwordx4 %s, %s, %s, %s offen" % (vr(outb, 4), vr(vL16), sr(SRD, 4), sr(sDA)))
            else:
                g.e("buffer_store_dwordx2 %s, %s, %s, %s offen" % (vr(outb, 2), vr(vL16s), sr(SRD, 4), sr(sDA)))
            if rg < 3:
                g.e("s_add_u32 %s, %s, %d" % (sr(sDA), sr(sDA), NKB * 1024))
        g.e("s_branch %s" % ldone)
        g.label(lq)
        for (sc, sd) in ((sColQA, sDA), (sColQB, sDB)):
            g.e("s_ashr_i32 %s, %s, 5" % (sr(sT), sr(sc)))
            g.e("s_add_u32 %s, %s, %s" % (sr(sT), sr(sT), sr(sB)))
            g.e("s_lshl_b32 %s, %s, 7" % (sr(sT), sr(sT)))
            g.e("s_add_u32 %s, %s, %s" % (sr(sT), sr(sT), sr(sM0)))
            g.e("s_lshl_b32 %s, %s, 10" % (sr(sT), sr(sT)))
            g.e("s_add_u32 %s, %s, 0x%x" % (sr(sd), sr(sT), QKV_OFF))
        n = 0
        for rg in range(4):
            for hf, sd in ((0, sDA), (1, sDB)):
                outb = TMP + 4 * (n % 8)
                n += 1
                k = 0
                for t in tiles:
                    for pr in range(2):
                        a = acc(t + 5 * hf, rg) + 2 * pr
                        g.e("v_cvt_pk_bf16_f32 %s, %s, %s" % (vr(outb + k), vr(a), vr(a + 1)))
                        k += 1
                if u < 2:
                    g.e("buffer_store_dwordx4 %s, %s, %s, %s offen offset:%d" % (vr(outb, 4), vr(vL16), sr(SRD, 4), sr(sd), rg * 1024))
                else:
                    g.e("buffer_store_dwordx2 %s, %s, %s, %s offen offset:%d" % (vr(outb, 2), vr(vL16s), sr(SRD, 4), sr(sd), rg * 1024))
        g.label(ldone)
        if u < 2:
            g.e("s_nop 1")
    stamp_end(g)
    g.label("K1_END")
    g.e("s_endpgm")
    return name

def gen_k2(g):
    name = "k2_attn_kernel"
    kstart(g, name)
    g.lq = []; g.vq = []
    sWS, sX, sGW = 4, 6, 8
    sHd, sQB, sW, sT = 10, 11, 12, 13
    SRD = 20
    sMk = 24
    sNneg = 32
    sC, sL2 = 34, 36
    g.e("s_cmp_ge_u32 s2, 512")
    g.e("s_cbranch_scc1 K2_END")
    stamp_begin(g)
    g.e("s_load_dwordx2 %s, s[0:1], 80" % sr(sWS, 2))
    g.e("s_load_dwordx2 %s, s[0:1], 0" % sr(sX, 2))
    g.e("s_load_dwordx2 %s, s[0:1], 56" % sr(sGW, 2))
    g.e("v_lshrrev_b32 v1, 6, v0")
    g.e("v_and_b32 v0, 63, v0")
    g.e("v_readfirstlane_b32 %s, v1" % sr(sW))
    vL16 = 2
    g.e("v_lshlrev_b32 %s, 4, v0" % vr(vL16))
    g.e("s_waitcnt lgkmcnt(0)")
    g.e("s_mov_b32 %s, %s" % (sr(SRD), sr(sWS)))
    g.e("s_and_b32 %s, %s, 0xffff" % (sr(SRD + 1), sr(sWS + 1)))
    g.e("s_mov_b32 %s, 0x%x" % (sr(SRD + 2), WS_BYTES))
    g.e("s_mov_b32 %s, 0x00020000" % sr(SRD + 3))
    sRow = 38
    g.e("s_lshl_b32 %s, s2, 2" % sr(sRow))
    g.e("s_add_u32 %s, %s, %s" % (sr(sRow), sr(sRow), sr(sW)))
    g.e("s_lshl_b32 %s, %s, 11" % (sr(sT), sr(sRow)))
    g.e("v_lshlrev_b32 v3, 5, v0")
    g.e("v_add_u32 v20, %s, v3" % sr(sT))
    g.e("global_load_dwordx4 v[60:63], v3, %s" % sr(sGW, 2))
    g.e("global_load_dwordx4 v[64:67], v3, %s offset:16" % sr(sGW, 2))
    g.e("global_load_dwordx4 v[68:71], v20, %s" % sr(sX, 2))
    g.e("global_load_dwordx4 v[72:75], v20, %s offset:16" % sr(sX, 2))
    g.e("s_and_b32 %s, s2, 31" % sr(sHd))
    g.e("s_lshr_b32 %s, s2, 5" % sr(sQB))
    g.e("s_lshl_b32 %s, %s, 3" % (sr(sT), sr(sQB)))
    g.e("s_add_u32 %s, %s, %s" % (sr(sT), sr(sT), sr(sW)))
    g.e("s_sub_u32 %s, %s, 16" % (sr(sT), sr(sT)))
    g.e("s_lshl_b32 %s, %s, 17" % (sr(sT + 1), sr(sHd)))
    g.e("s_add_u32 %s, %s, 0x%x" % (sr(sT + 1), sr(sT + 1), QKV_OFF + 32 * 128 * 1024))
    g.e("s_lshl_b32 %s, %s, 10" % (sr(sT + 4), sr(sW)))
    for i in range(6):
        g.e("s_add_u32 %s, %s, %d" % (sr(sT + 2), sr(sT), 4 * i))
        g.e("s_max_i32 %s, %s, 0" % (sr(sT + 2), sr(sT + 2)))
        g.e("s_lshl_b32 %s, %s, 10" % (sr(sT + 2), sr(sT + 2)))
        g.e("s_add_u32 %s, %s, %s" % (sr(sT + 2), sr(sT + 2), sr(sT + 1)))
        g.e("s_add_u32 %s, %s, 0x%x" % (sr(sT + 3), sr(sT + 2), 32 * 128 * 1024))
        g.e("s_add_u32 m0, %s, %d" % (sr(sT + 4), 4096 * i))
        g.e("s_nop 0")
        g.e("buffer_load_dwordx4 %s, %s, %s offen lds" % (vr(vL16), sr(SRD, 4), sr(sT + 2)))
        g.e("s_add_u32 m0, %s, %d" % (sr(sT + 4), 24576 + 4096 * i))
        g.e("s_nop 0")
        g.e("buffer_load_dwordx4 %s, %s, %s offen lds" % (vr(vL16), sr(SRD, 4), sr(sT + 3)))
    QF = 4
    g.e("s_lshl_b32 %s, %s, 3" % (sr(sT), sr(sQB)))
    g.e("s_lshl_b32 %s, %s, 1" % (sr(sT + 2), sr(sW)))
    g.e("s_add_u32 %s, %s, %s" % (sr(sT + 5), sr(sT), sr(sT + 2)))
    g.e("s_lshl_b32 %s, %s, 7" % (sr(sT + 2), sr(sHd)))
    g.e("s_add_u32 %s, %s, %s" % (sr(sT + 2), sr(sT + 2), sr(sT + 5)))
    g.e("s_lshl_b32 %s, %s, 10" % (sr(sT + 2), sr(sT + 2)))
    g.e("s_add_u32 %s, %s, 0x%x" % (sr(sT + 2), sr(sT + 2), QKV_OFF))
    g.e("buffer_load_dwordx4 %s, %s, %s, %s offen" % (vr(QF, 4), vr(vL16), sr(SRD, 4), sr(sT + 2)))
    g.e("buffer_load_dwordx4 %s, %s, %s, %s offen offset:1024" % (vr(QF + 4, 4), vr(vL16), sr(SRD, 4), sr(sT + 2)))
    g.e("s_sub_u32 %s, 16, %s" % (sr(sNneg), sr(sT + 5)))
    g.e("s_max_i32 %s, %s, 0" % (sr(sNneg), sr(sNneg)))
    vI, vQ4, vNI, vKrd, vVrd = 12, 13, 14, 15, 16
    g.e("v_and_b32 %s, 15, v0" % vr(vI))
    g.e("v_lshrrev_b32 %s, 4, v0" % vr(vQ4))
    g.e("v_lshlrev_b32 %s, 2, %s" % (vr(17), vr(vQ4)))
    for r in range(4):
        g.e("v_add_u32 %s, %d, %s" % (vr(18), r, vr(17)))
        g.e("v_cmp_gt_u32 %s, %s, %s" % (sr(sMk + 2 * r, 2), vr(18), vr(vI)))
    g.e("v_mov_b32 %s, 0xff800000" % vr(vNI))
    g.e("s_lshl_b32 %s, %s, 11" % (sr(sT), sr(sW)))
    g.e("v_add_u32 %s, %s, %s" % (vr(vKrd), sr(sT), vr(vL16)))
    g.e("v_and_b32 %s, 3, %s" % (vr(18), vr(vI)))
    g.e("v_lshlrev_b32 %s, 4, %s" % (vr(18), vr(18)))
    g.e("v_add_u32 %s, %s, %s" % (vr(18), vr(18), vr(17)))
    g.e("v_lshrrev_b32 %s, 2, %s" % (vr(19), vr(vI)))
    g.e("v_add_u32 %s, %s, %s" % (vr(18), vr(18), vr(19)))
    g.e("v_lshlrev_b32 %s, 4, %s" % (vr(18), vr(18)))
    g.e("s_add_u32 %s, %s, 24576" % (sr(sT), sr(sT)))
    g.e("v_add_u32 %s, %s, %s" % (vr(vVrd), sr(sT), vr(18)))
    g.e("s_mov_b32 %s, 0x%x" % (sr(sC), f2u(32 ** -0.5)))
    g.e("s_mov_b32 %s, 0x%x" % (sr(sC + 1), f2u(32 ** -0.5)))
    g.e("s_mov_b32 %s, 0x%x" % (sr(sL2), f2u(LOG2E)))
    g.e("s_mov_b32 %s, 0x%x" % (sr(sL2 + 1), f2u(LOG2E)))
    g.e("s_waitcnt vmcnt(0)")
    g.e("s_barrier")
    KF = 20
    SA = 52
    SB = 120
    VF = 188
    OA = 220
    TM = 236
    def S(grp, t):
        return SA + 4 * t if grp == 0 else SB + 4 * (t - 1)
    def kread(t):
        g.lds("ds_read_b128 %s, %s offset:%d" % (vr(KF + 4 * (t % 8), 4), vr(vKrd), t * 1024), ("k", t))
    for t in range(6):
        kread(t)
    for k in range(8):
        a = 76 + 4 * (k % 2)
        g.e("v_lshlrev_b32 %s, 16, %s" % (vr(a), vr(60 + k)))
        g.e("v_and_b32 %s, 0xffff0000, %s" % (vr(a + 1), vr(60 + k)))
        g.e("v_lshlrev_b32 %s, 16, %s" % (vr(a + 2), vr(68 + k)))
        g.e("v_and_b32 %s, 0xffff0000, %s" % (vr(a + 3), vr(68 + k)))
        g.e("v_pk_mul_f32 %s, %s, %s" % (vr(a, 2), vr(a, 2), vr(a + 2, 2)))
        round_pair(g, a)
        if k == 0:
            g.e("v_mov_b32 v84, %s" % vr(a))
            g.e("v_mov_b32 v85, %s" % vr(a + 1))
        else:
            g.e("v_pk_add_f32 v[84:85], v[84:85], %s" % vr(a, 2))
    g.e("v_add_f32 v84, v84, v85")
    g.e("s_nop 1")
    g.e("v_add_f32_dpp v84, v84, v84 quad_perm:[1,0,3,2] row_mask:0xf bank_mask:0xf")
    g.e("s_nop 1")
    g.e("v_add_f32_dpp v84, v84, v84 quad_perm:[2,3,0,1] row_mask:0xf bank_mask:0xf")
    g.e("s_nop 1")
    g.e("v_add_f32_dpp v84, v84, v84 row_half_mirror row_mask:0xf bank_mask:0xf")
    g.e("s_nop 1")
    g.e("v_add_f32_dpp v84, v84, v84 row_mirror row_mask:0xf bank_mask:0xf")
    g.e("v_mov_b32 v85, v84")
    g.e("s_nop 1")
    g.e("v_permlane32_swap_b32 v84, v85")
    g.e("v_add_f32 v84, v84, v85")
    g.e("v_mov_b32 v85, v84")
    g.e("s_nop 1")
    g.e("v_permlane16_swap_b32 v84, v85")
    g.e("v_add_f32 v84, v84, v85")
    g.e("v_cvt_pk_bf16_f32 v84, 0, v84")
    g.e("v_mul_f32 v84, 0x%x, v84" % f2u(-LOG2E))
    g.e("v_exp_f32 v84, v84")
    g.e("s_nop 0")
    g.e("v_add_f32 v84, 1.0, v84")
    g.e("v_rcp_f32 v84, v84")
    g.e("s_lshl_b32 %s, %s, 2" % (sr(sT), sr(sRow)))
    g.e("v_cvt_pk_bf16_f32 v84, 0, v84")
    g.e("v_mov_b32 v85, 0")
    g.e("s_add_u32 %s, %s, 0x%x" % (sr(sT), sr(sT), G_OFF))
    g.e("s_mov_b64 exec, 1")
    g.e("buffer_store_dword v84, v85, %s, %s offen" % (sr(SRD, 4), sr(sT)))
    g.e("s_mov_b64 exec, -1")
    for t in range(18):
        if t + 6 < 18:
            kread(t + 6)
        g.need(ltags=[("k", t)])
        kreg = KF + 4 * (t % 8)
        if t <= 16:
            g.e("v_mfma_f32_16x16x32_bf16 %s, %s, %s, 0" % (vr(S(0, t), 4), vr(kreg, 4), vr(QF, 4)))
        if t >= 1:
            g.e("v_mfma_f32_16x16x32_bf16 %s, %s, %s, 0" % (vr(S(1, t), 4), vr(kreg, 4), vr(QF + 4, 4)))
    def vread(j, d):
        n = j * 2 + d
        reg = VF + 4 * (n % 8)
        g.lds("ds_read_b64_tr_b16 %s, %s offset:%d" % (vr(reg, 2), vr(vVrd), (2 * j) * 1024 + 8 * d), ("v", n))
        g.lds("ds_read_b64_tr_b16 %s, %s offset:%d" % (vr(reg + 2, 2), vr(vVrd), (2 * j + 1) * 1024 + 8 * d), ("v", n))
    for n in range(6):
        vread(n // 2, n % 2)
    g.e("s_nop 7")
    for (grp, t, gt) in ((0, 0, True), (0, 16, False), (1, 1, True), (1, 17, False)):
        for r in range(4):
            a = S(grp, t) + r
            if gt:
                g.e("v_cndmask_b32 %s, %s, %s, %s" % (vr(a), vr(vNI), vr(a), sr(sMk + 2 * r, 2)))
            else:
                g.e("v_cndmask_b32 %s, %s, %s, %s" % (vr(a), vr(a), vr(vNI), sr(sMk + 2 * r, 2)))
    for t in range(16):
        g.e("s_cmp_le_u32 %s, %d" % (sr(sNneg), t))
        g.e("s_cbranch_scc1 K2_NEGDONE")
        for r in range(4):
            g.e("v_mov_b32 %s, %s" % (vr(S(0, t) + r), vr(vNI)))
        if t >= 1:
            for r in range(4):
                g.e("v_mov_b32 %s, %s" % (vr(S(1, t) + r), vr(vNI)))
    g.label("K2_NEGDONE")
    for grp in range(2):
        base = SA if grp == 0 else SB
        m0_, m1_ = TM, TM + 1
        g.e("v_max3_f32 %s, %s, %s, %s" % (vr(m0_), vr(base), vr(base + 1), vr(base + 2)))
        g.e("v_max3_f32 %s, %s, %s, %s" % (vr(m1_), vr(base + 3), vr(base + 4), vr(base + 5)))
        i = 6
        tog = 0
        while i + 1 < 68:
            mm = m0_ if tog == 0 else m1_
            g.e("v_max3_f32 %s, %s, %s, %s" % (vr(mm), vr(mm), vr(base + i), vr(base + i + 1)))
            i += 2; tog ^= 1
        g.e("v_max_f32 %s, %s, %s" % (vr(m0_), vr(m0_), vr(m1_)))
        g.e("v_mov_b32 %s, %s" % (vr(m1_), vr(m0_)))
        g.e("s_nop 1")
        g.e("v_permlane32_swap_b32 %s, %s" % (vr(m0_), vr(m1_)))
        g.e("v_max_f32 %s, %s, %s" % (vr(m0_), vr(m0_), vr(m1_)))
        g.e("v_mov_b32 %s, %s" % (vr(m1_), vr(m0_)))
        g.e("s_nop 1")
        g.e("v_permlane16_swap_b32 %s, %s" % (vr(m0_), vr(m1_)))
        g.e("v_max_f32 %s, %s, %s" % (vr(m0_), vr(m0_), vr(m1_)))
        g.e("v_mov_b32 %s, %s" % (vr(m1_), vr(m0_)))
        round_pair(g, m0_, TM + 2)
        g.e("v_pk_mul_f32 %s, %s, %s" % (vr(m0_, 2), vr(m0_, 2), sr(sC, 2)))
        round_pair(g, m0_, TM + 2)
        g.e("v_pk_mul_f32 %s, %s, %s" % (vr(m0_, 2), vr(m0_, 2), sr(sL2, 2)))
        g.e("v_sub_f32 %s, 0, %s" % (vr(m0_), vr(m0_)))
        g.e("v_sub_f32 %s, 0, %s" % (vr(m1_), vr(m1_)))
        sm = TM + 4
        for p in range(34):
            a = base + 2 * p
            tm = TM + 8 + (p % 4)
            round_pair(g, a, tm)
            g.e("v_pk_mul_f32 %s, %s, %s" % (vr(a, 2), vr(a, 2), sr(sC, 2)))
            round_pair(g, a, tm)
            g.e("v_pk_fma_f32 %s, %s, %s, %s" % (vr(a, 2), vr(a, 2), sr(sL2, 2), vr(m0_, 2)))
            g.e("v_exp_f32 %s, %s" % (vr(a), vr(a)))
            g.e("v_exp_f32 %s, %s" % (vr(a + 1), vr(a + 1)))
            if p >= 1:
                pa = base + 2 * (p - 1)
                ss = sm + 2 * ((p - 1) % 2)
                if p - 1 < 2:
                    g.e("v_mov_b32 %s, %s" % (vr(ss), vr(pa)))
                    g.e("v_mov_b32 %s, %s" % (vr(ss + 1), vr(pa + 1)))
                else:
                    g.e("v_pk_add_f32 %s, %s, %s" % (vr(ss, 2), vr(ss, 2), vr(pa, 2)))
        g.e("s_nop 0")
        pa = base + 2 * 33
        g.e("v_pk_add_f32 %s, %s, %s" % (vr(sm + 2, 2), vr(sm + 2, 2), vr(pa, 2)))
        g.e("v_pk_add_f32 %s, %s, %s" % (vr(sm, 2), vr(sm, 2), vr(sm + 2, 2)))
        g.e("v_add_f32 %s, %s, %s" % (vr(sm), vr(sm), vr(sm + 1)))
        g.e("v_mov_b32 %s, %s" % (vr(sm + 1), vr(sm)))
        g.e("s_nop 1")
        g.e("v_permlane32_swap_b32 %s, %s" % (vr(sm), vr(sm + 1)))
        g.e("v_add_f32 %s, %s, %s" % (vr(sm), vr(sm), vr(sm + 1)))
        g.e("v_mov_b32 %s, %s" % (vr(sm + 1), vr(sm)))
        g.e("s_nop 1")
        g.e("v_permlane16_swap_b32 %s, %s" % (vr(sm), vr(sm + 1)))
        g.e("v_add_f32 %s, %s, %s" % (vr(sm), vr(sm), vr(sm + 1)))
        g.e("v_rcp_f32 %s, %s" % (vr(sm), vr(sm)))
        g.e("s_nop 0")
        g.e("v_mov_b32 %s, %s" % (vr(sm + 1), vr(sm)))
        for p in range(34):
            a = base + 2 * p
            g.e("v_pk_mul_f32 %s, %s, %s" % (vr(a, 2), vr(a, 2), vr(sm, 2)))
        for ti in range(17):
            a = base + 4 * ti
            g.e("v_cvt_pk_bf16_f32 %s, %s, %s" % (vr(a), vr(a), vr(a + 1)))
            g.e("v_cvt_pk_bf16_f32 %s, %s, %s" % (vr(a + 1), vr(a + 2), vr(a + 3)))
    for j in range(9):
        a = SA + 8 * j
        if j < 8:
            g.e("v_mov_b32 %s, %s" % (vr(a + 2), vr(a + 4)))
            g.e("v_mov_b32 %s, %s" % (vr(a + 3), vr(a + 5)))
        else:
            g.e("v_mov_b32 %s, 0" % vr(a + 2))
            g.e("v_mov_b32 %s, 0" % vr(a + 3))
    for j in range(9):
        a = SB + 8 * j
        g.e("v_mov_b32 %s, %s" % (vr(a + 2), vr(a)))
        g.e("v_mov_b32 %s, %s" % (vr(a + 3), vr(a + 1)))
        if j > 0:
            g.e("v_mov_b32 %s, %s" % (vr(a), vr(a - 4)))
            g.e("v_mov_b32 %s, %s" % (vr(a + 1), vr(a - 3)))
        else:
            g.e("v_mov_b32 %s, 0" % vr(a))
            g.e("v_mov_b32 %s, 0" % vr(a + 1))
    g.e("s_nop 1")
    for n in range(18):
        j, d = n // 2, n % 2
        if n + 6 < 18:
            vread((n + 6) // 2, (n + 6) % 2)
        g.need(ltags=[("v", n)])
        vreg = VF + 4 * (n % 8)
        for grp in range(2):
            o = OA + 8 * grp + 4 * d
            pf = (SA if grp == 0 else SB) + 8 * j
            cin = "0" if j == 0 else vr(o, 4)
            g.e("v_mfma_f32_16x16x32_bf16 %s, %s, %s, %s" % (vr(o, 4), vr(vreg, 4), vr(pf, 4), cin))
    g.e("s_mul_i32 %s, %s, %d" % (sr(sT), sr(sT + 5), NKB))
    g.e("s_add_u32 %s, %s, %s" % (sr(sT), sr(sT), sr(sHd)))
    g.e("s_lshl_b32 %s, %s, 10" % (sr(sT), sr(sT)))
    g.e("s_add_u32 %s, %s, %d" % (sr(sT + 1), sr(sT), NKB * 1024))
    g.e("s_nop 7")
    for grp in range(2):
        o = OA + 8 * grp
        for k in range(4):
            g.e("v_cvt_pk_bf16_f32 %s, %s, %s" % (vr(TM + 4 * grp + k), vr(o + 2 * k), vr(o + 2 * k + 1)))
        g.e("buffer_store_dwordx4 %s, %s, %s, %s offen" % (vr(TM + 4 * grp, 4), vr(vL16), sr(SRD, 4), sr(sT + grp)))
    stamp_end(g)
    g.e("s_endpgm")
    g.label("K2_END")
    g.e("s_endpgm")
    return name

def gen_k3(g):
    name = "k3_gemm2_kernel"
    kstart(g, name)
    g.lq = []; g.vq = []
    NST = 72
    RING = 6
    WLDS = 98304
    sWS, sWo, sWd, sOut = 4, 6, 8, 10
    sRB, sCB, sW, sWM, sWN, sT = 12, 13, 14, 15, 16, 17
    sXb, sWb = 24, 26
    sXm0, sWm0 = 28, 29
    SRDO = 32
    SRD = 36
    g.e("s_cmp_ge_u32 s2, 256")
    g.e("s_cbranch_scc1 K3_END")
    stamp_begin(g)
    g.e("s_load_dwordx2 %s, s[0:1], 80" % sr(sWS, 2))
    g.e("s_load_dwordx2 %s, s[0:1], 16" % sr(sWo, 2))
    g.e("s_load_dwordx2 %s, s[0:1], 48" % sr(sWd, 2))
    g.e("s_load_dwordx2 %s, s[0:1], 64" % sr(sOut, 2))
    g.e("s_and_b32 %s, s2, 7" % sr(sT))
    g.e("s_lshr_b32 %s, s2, 3" % sr(sT + 1))
    g.e("s_lshr_b32 %s, %s, 1" % (sr(sRB), sr(sT)))
    g.e("s_lshl_b32 %s, %s, 2" % (sr(sRB), sr(sRB)))
    g.e("s_and_b32 %s, %s, 3" % (sr(sT + 2), sr(sT + 1)))
    g.e("s_add_u32 %s, %s, %s" % (sr(sRB), sr(sRB), sr(sT + 2)))
    g.e("s_and_b32 %s, %s, 1" % (sr(sCB), sr(sT)))
    g.e("s_lshl_b32 %s, %s, 3" % (sr(sCB), sr(sCB)))
    g.e("s_lshr_b32 %s, %s, 2" % (sr(sT + 2), sr(sT + 1)))
    g.e("s_add_u32 %s, %s, %s" % (sr(sCB), sr(sCB), sr(sT + 2)))
    g.e("v_lshrrev_b32 v1, 6, v0")
    g.e("v_and_b32 v0, 63, v0")
    g.e("v_readfirstlane_b32 %s, v1" % sr(sW))
    g.e("s_and_b32 %s, %s, 1" % (sr(sWM), sr(sW)))
    g.e("s_lshr_b32 %s, %s, 1" % (sr(sWN), sr(sW)))
    vXo = 2
    vWo = 4
    vXrd = 6
    vWrd = 8
    vG = 10
    vOo = 14
    t0, t1, t2, t3, t4 = 16, 17, 18, 19, 20
    XF = 24
    WF = 72
    ACA = 96
    ACB = 128
    TM = 24
    g.e("s_lshl_b32 %s, %s, 3" % (sr(sT), sr(sRB)))
    g.e("s_lshl_b32 %s, %s, 1" % (sr(sT + 1), sr(sW)))
    g.e("s_add_u32 %s, %s, %s" % (sr(sT), sr(sT), sr(sT + 1)))
    g.e("s_mul_i32 %s, %s, %d" % (sr(sT), sr(sT), NKB * 1024))
    g.e("v_lshlrev_b32 %s, 4, v0" % vr(t0))
    g.e("v_add_u32 %s, %s, %s" % (vr(vXo), sr(sT), vr(t0)))
    g.e("v_add_u32 %s, %d, %s" % (vr(vXo + 1), NKB * 1024, vr(vXo)))
    g.e("s_lshl_b32 %s, %s, 13" % (sr(sT), sr(sWM)))
    g.e("v_add_u32 %s, %s, %s" % (vr(vXrd), sr(sT), vr(t0)))
    g.e("v_add_u32 %s, %d, %s" % (vr(vXrd + 1), 3 * 16384, vr(vXrd)))
    g.e("v_lshrrev_b32 %s, 3, v0" % vr(t1))
    g.e("v_and_b32 %s, 6, %s" % (vr(t2), vr(t1)))
    g.e("v_and_b32 %s, 7, v0" % vr(t3))
    g.e("v_xor_b32 %s, %s, %s" % (vr(t3), vr(t3), vr(t2)))
    g.e("s_lshl_b32 %s, %s, 4" % (sr(sT), sr(sW)))
    g.e("v_add_u32 %s, %s, %s" % (vr(t1), sr(sT), vr(t1)))
    g.e("v_lshlrev_b32 %s, 11, %s" % (vr(t1), vr(t1)))
    g.e("v_lshl_add_u32 %s, %s, 4, %s" % (vr(t1), vr(t3), vr(t1)))
    g.e("s_lshl_b32 %s, %s, 7" % (sr(sT), sr(sCB)))
    g.e("v_add_u32 %s, %s, %s" % (vr(vWo), sr(sT), vr(t1)))
    g.e("v_add_u32 %s, %d, %s" % (vr(vWo + 1), 8 * 2048, vr(vWo)))
    g.e("v_and_b32 %s, 15, v0" % vr(t0))
    g.e("v_lshrrev_b32 %s, 4, v0" % vr(t1))
    g.e("v_lshrrev_b32 %s, 2, %s" % (vr(t2), vr(t0)))
    g.e("v_lshl_add_u32 %s, %s, 2, %s" % (vr(t2), vr(t1), vr(t2)))
    g.e("v_bfe_u32 %s, %s, 1, 2" % (vr(t3), vr(t2)))
    g.e("v_lshlrev_b32 %s, 7, %s" % (vr(t2), vr(t2)))
    g.e("v_and_b32 %s, 3, %s" % (vr(t4), vr(t0)))
    g.e("v_lshl_add_u32 %s, %s, 3, %s" % (vr(t2), vr(t4), vr(t2)))
    g.e("v_add_u32 %s, %d, %s" % (vr(t2), WLDS, vr(t2)))
    for tl in range(2):
        g.e("s_lshl_b32 %s, %s, 1" % (sr(sT), sr(sWN)))
        g.e("s_add_u32 %s, %s, %d" % (sr(sT), sr(sT), tl))
        g.e("v_xor_b32 %s, %s, %s" % (vr(t4), sr(sT), vr(t3)))
        g.e("v_lshl_add_u32 %s, %s, 5, %s" % (vr(vWrd + tl), vr(t4), vr(t2)))
    g.e("s_lshl_b32 %s, %s, 7" % (sr(sT), sr(sRB)))
    g.e("s_lshl_b32 %s, %s, 6" % (sr(sT + 1), sr(sWM)))
    g.e("s_add_u32 %s, %s, %s" % (sr(sT), sr(sT), sr(sT + 1)))
    g.e("v_add_u32 %s, %s, %s" % (vr(t2), sr(sT), vr(t0)))
    g.e("v_lshlrev_b32 %s, 2, %s" % (vr(t4), vr(t2)))
    g.e("v_lshlrev_b32 %s, 11, %s" % (vr(t2), vr(t2)))
    g.e("v_lshl_add_u32 %s, %s, 3, %s" % (vr(t2), vr(t1), vr(t2)))
    g.e("s_lshl_b32 %s, %s, 7" % (sr(sT), sr(sCB)))
    g.e("s_lshl_b32 %s, %s, 6" % (sr(sT + 1), sr(sWN)))
    g.e("s_add_u32 %s, %s, %s" % (sr(sT), sr(sT), sr(sT + 1)))
    g.e("v_add_u32 %s, %s, %s" % (vr(vOo), sr(sT), vr(t2)))
    g.e("s_lshl_b32 %s, %s, 12" % (sr(sXm0), sr(sW)))
    g.e("s_lshl_b32 %s, %s, 11" % (sr(sWm0), sr(sW)))
    g.e("s_add_u32 %s, %s, %d" % (sr(sWm0), sr(sWm0), WLDS))
    g.e("s_waitcnt lgkmcnt(0)")
    g.e("s_mov_b32 %s, %s" % (sr(SRD), sr(sWS)))
    g.e("s_and_b32 %s, %s, 0xffff" % (sr(SRD + 1), sr(sWS + 1)))
    g.e("s_mov_b32 %s, 0x%x" % (sr(SRD + 2), WS_BYTES))
    g.e("s_mov_b32 %s, 0x00020000" % sr(SRD + 3))
    g.e("s_mov_b32 %s, %s" % (sr(SRDO), sr(sOut)))
    g.e("s_and_b32 %s, %s, 0xffff" % (sr(SRDO + 1), sr(sOut + 1)))
    g.e("s_mov_b32 %s, 0x400000" % sr(SRDO + 2))
    g.e("s_mov_b32 %s, 0x00020000" % sr(SRDO + 3))
    g.e("s_mov_b64 %s, %s" % (sr(sXb, 2), sr(sWS, 2)))
    g.e("s_mov_b64 %s, %s" % (sr(sWb, 2), sr(sWo, 2)))
    g.e("s_mov_b32 %s, 0x%x" % (sr(sT), G_OFF))
    for rg in range(4):
        g.vm("buffer_load_dword %s, %s, %s, %s offen offset:%d" % (vr(vG + rg), vr(t4), sr(SRD, 4), sr(sT), rg * 64), ("g",))

    def dma(st, idx):
        slot = st % RING
        tag = ("dma", st)
        if idx < 4:
            m, kb = idx // 2, idx % 2
            g.e("s_add_u32 m0, %s, %d" % (sr(sXm0), slot * 16384 + m * 2048))
            g.e("s_nop 0")
            g.vm("global_load_lds_dwordx4 %s, %s offset:%d" % (vr(vXo + m), sr(sXb, 2), kb * 1024), tag)
            if idx == 3 and "3samek" not in ABL:
                g.e("s_add_u32 %s, %s, 2048" % (sr(sXb), sr(sXb)))
                g.e("s_addc_u32 %s, %s, 0" % (sr(sXb + 1), sr(sXb + 1)))
        else:
            i = idx - 4
            g.e("s_add_u32 m0, %s, %d" % (sr(sWm0), slot * 8192 + i * 1024))
            g.e("s_nop 0")
            g.vm("global_load_lds_dwordx4 %s, %s" % (vr(vWo + i), sr(sWb, 2)), tag)
            if i == 1 and "3samek" not in ABL:
                if st == 15:
                    g.e("s_mov_b64 %s, %s" % (sr(sWb, 2), sr(sWd, 2)))
                else:
                    g.e("s_add_u32 %s, %s, %d" % (sr(sWb), sr(sWb), 64 * 2048))
                    g.e("s_addc_u32 %s, %s, 0" % (sr(sWb + 1), sr(sWb + 1)))
    def fread_items(n):
        st, kb = divmod(n, 2)
        slot = st % RING
        xb = vXrd + (slot // 3)
        it = []
        for tl in range(2):
            reg = WF + 8 * (n % 3) + 4 * tl
            off = slot * 8192 + kb * 4096
            it.append(lambda reg=reg, off=off, tl=tl: g.lds("ds_read_b64_tr_b16 %s, %s offset:%d" % (vr(reg, 2), vr(vWrd + tl), off), ("f", n)))
            it.append(lambda reg=reg, off=off, tl=tl: g.lds("ds_read_b64_tr_b16 %s, %s offset:%d" % (vr(reg + 2, 2), vr(vWrd + tl), off + 2048), ("f", n)))
        for rg in range(4):
            it.append(lambda rg=rg: g.lds("ds_read_b128 %s, %s offset:%d" % (vr(XF + 16 * (n % 3) + 4 * rg, 4), vr(xb), (slot % 3) * 16384 + (rg * 2 + kb) * 1024), ("f", n)))
        return it
    stamp(g)
    for st in range(RING - 1):
        for idx in range(6):
            dma(st, idx)
    g.need(vtags=[("dma", 0)])
    g.e("s_barrier")
    stamp(g)
    for it in fread_items(0) + fread_items(1):
        it()
    for s in range(NST):
        g.c("---- stage %d" % s)
        if s + 1 < NST:
            g.need(vtags=[("dma", s + 1)])
            if "3nobar" not in ABL:
                g.e("s_barrier")
        for kb in range(2):
            n = 2 * s + kb
            fill = []
            if n + 2 < 2 * NST and "3nolds" not in ABL:
                fill += fread_items(n + 2)
            dm = []
            if s + RING - 1 < NST and "3nodma" not in ABL:
                for idx in range(3 * kb, 3 * kb + 3):
                    dm.append(lambda idx=idx: dma(s + RING - 1, idx))
            order = []
            while fill or dm:
                if dm: order.append(dm.pop(0))
                for _ in range(3):
                    if fill: order.append(fill.pop(0))
            g.need(ltags=[("f", n)])
            AC = ACA if n < 32 else ACB
            first = (n == 0 or n == 32)
            k = 0
            for rg in range(4):
                for tl in range(2):
                    a = AC + (rg * 2 + tl) * 4
                    cin = "0" if first else vr(a, 4)
                    if not ("3nomfma" in ABL and n not in (0, 32)):
                        g.e("v_mfma_f32_16x16x32_bf16 %s, %s, %s, %s" % (vr(a, 4), vr(WF + 8 * (n % 3) + 4 * tl, 4), vr(XF + 16 * (n % 3) + 4 * rg, 4), cin))
                    k += 1
                    left = 8 - k + 1
                    cnt = (len(order) + left - 1) // left
                    for _ in range(cnt):
                        if order: order.pop(0)()
    g.c("---- epilogue")
    stamp(g)
    g.e("s_nop 7")
    for rg in range(4):
        gp, op = TM, TM + 2
        g.e("v_mov_b32 %s, %s" % (vr(gp), vr(vG + rg)))
        g.e("v_mov_b32 %s, %s" % (vr(gp + 1), vr(vG + rg)))
        g.e("v_sub_f32 %s, 1.0, %s" % (vr(op), vr(vG + rg)))
        g.e("v_sub_f32 %s, 1.0, %s" % (vr(op + 1), vr(vG + rg)))
        round_pair(g, op, TM + 4)
        for tl in range(2):
            ob = TM + 8 + 2 * ((rg * 2 + tl) % 4)
            for pr in range(2):
                a = ACA + (rg * 2 + tl) * 4 + 2 * pr
                b = ACB + (rg * 2 + tl) * 4 + 2 * pr
                round_pair(g, a, TM + 5)
                round_pair(g, b, TM + 6)
                g.e("v_pk_mul_f32 %s, %s, %s" % (vr(a, 2), vr(a, 2), vr(gp, 2)))
                g.e("v_pk_mul_f32 %s, %s, %s" % (vr(b, 2), vr(b, 2), vr(op, 2)))
                round_pair(g, a, TM + 5)
                round_pair(g, b, TM + 6)
                g.e("v_pk_add_f32 %s, %s, %s" % (vr(a, 2), vr(a, 2), vr(b, 2)))
                g.e("v_cvt_pk_bf16_f32 %s, %s, %s" % (vr(ob + pr), vr(a), vr(a + 1)))
            g.e("s_mov_b32 %s, %d" % (sr(sT), rg * 16 * 2048))
            g.e("buffer_store_dwordx2 %s, %s, %s, %s offen offset:%d" % (vr(ob, 2), vr(vOo), sr(SRDO, 4), sr(sT), tl * 32))
    stamp_end(g)
    g.label("K3_END")
    g.e("s_endpgm")
    return name

def main():
    hdr = []
    ref = open("cdna_kernels/%s.s.ref" % NAME).read().splitlines()
    for l in ref:
        if l.startswith(";") and "@launch" not in l:
            hdr.append(l)
        elif not l.startswith(";"):
            break
    hdr.append("; @launch kernel=k1_gemm1_kernel grid=(256,1,1) block=(512,1,1) lds=147456")
    hdr.append("; @launch kernel=k2_attn_kernel grid=(512,1,1) block=(256,1,1) lds=49152")
    hdr.append("; @launch kernel=k3_gemm2_kernel grid=(256,1,1) block=(256,1,1) lds=147456")
    g = Gen()
    g.raw('.amdgcn_target "amdgcn-amd-amdhsa--gfx950"')
    g.raw(".text")
    k1 = gen_k1(g)
    k2 = gen_k2(g)
    k3 = gen_k3(g)
    out = "\n".join(hdr) + "\n" + "\n".join(g.lines) + "\n"
    sg = lambda n: 102 if STAMP else n
    out += kd(k1, 256, sg(64), 256)
    out += kd(k2, 256, sg(48), 256)
    out += kd(k3, 160, sg(48), 160)
    path = sys.argv[1] if len(sys.argv) > 1 else "cdna_kernels/%s.s" % NAME
    open(path, "w").write(out)

if __name__ == "__main__":
    main()
```

```python
import sys, struct

NAME = "gated_mix__sliding_block__geglu_ffn__prompt"

A2_OFF = 0
NKB = 144
QKV_OFF = 0x1400000
G_OFF = 0x2400000
FLAG_OFF = 0x2404000
WS_BYTES = 0x10000000

def f2u(x):
    return struct.unpack("<I", struct.pack("<f", x))[0]

class Gen:
    def __init__(self):
        self.lines = []
        self.lq = []
        self.vq = []
        self.nlab = 0
    def e(self, s):
        self.lines.append("    " + s)
    def c(self, s):
        self.lines.append("    ; " + s)
    def label(self, s):
        self.lines.append(s + ":")
    def newlab(self, p="L"):
        self.nlab += 1
        return "%s_%d" % (p, self.nlab)
    def raw(self, s):
        self.lines.append(s)
    def lds(self, s, tag):
        self.e(s); self.lq.append(tag)
    def vm(self, s, tag):
        self.e(s); self.vq.append(tag)
    def _need(self, q, tags):
        last = -1
        for i, t in enumerate(q):
            if t in tags:
                last = i
        if last < 0:
            return None
        return len(q) - 1 - last, last
    def need(self, ltags=(), vtags=()):
        w = []
        r = self._need(self.lq, set(ltags))
        if r is not None:
            n, last = r
            if n > 15:
                n = 15
                last = len(self.lq) - 1 - 15
            self.lq = self.lq[last + 1:]
            w.append("lgkmcnt(%d)" % n)
        r = self._need(self.vq, set(vtags))
        if r is not None:
            n, last = r
            if n > 63:
                n = 63
                last = len(self.vq) - 1 - 63
            self.vq = self.vq[last + 1:]
            w.insert(0, "vmcnt(%d)" % n)
        if w:
            self.e("s_waitcnt " + " ".join(w))
    def waitall(self):
        self.e("s_waitcnt vmcnt(0) lgkmcnt(0)")
        self.lq = []; self.vq = []

def vr(a, n=1):
    return "v%d" % a if n == 1 else "v[%d:%d]" % (a, a + n - 1)
def sr(a, n=1):
    return "s%d" % a if n == 1 else "s[%d:%d]" % (a, a + n - 1)

def kd(name, vgpr, sgpr, accum):
    return """.section .rodata,"a"
.p2align 6
.amdhsa_kernel %s
  .amdhsa_next_free_vgpr %d
  .amdhsa_next_free_sgpr %d
  .amdhsa_accum_offset %d
  .amdhsa_group_segment_fixed_size 0
  .amdhsa_kernarg_size 88
  .amdhsa_user_sgpr_count 2
  .amdhsa_user_sgpr_kernarg_segment_ptr 1
  .amdhsa_system_sgpr_workgroup_id_x 1
.end_amdhsa_kernel
.text
""" % (name, vgpr, sgpr, accum)

import os
STAMP = bool(os.environ.get("STAMP"))
ABL = os.environ.get("ABL", "").split(",")
STF = os.environ.get("STF", "")
def stamp_begin(g):
    if not STAMP: return
    g.nst = 1
    g.e("s_memtime s[70:71]")
    g.e("s_memrealtime s[98:99]")
def stamp(g):
    if not STAMP: return
    g.e("s_memtime s[%d:%d]" % (70 + 2 * g.nst, 71 + 2 * g.nst))
    g.nst += 1
def stamp_end(g, tmpv=0, slot=0):
    if not STAMP: return
    lab = g.newlab("STP")
    stamp(g)
    g.e("s_waitcnt vmcnt(0) lgkmcnt(0)")
    stamp(g)
    g.e("s_memrealtime s[96:97]")
    g.e("s_load_dwordx2 s[100:101], s[0:1], 72")
    g.e("s_waitcnt lgkmcnt(0)")
    g.e("s_cmp_lg_u32 s2, %s" % os.environ.get("STWG", "0"))
    g.e("s_cbranch_scc1 %s" % lab)
    g.e("v_readfirstlane_b32 s94, v1" if False else "s_nop 0")
    g.e("s_mov_b64 exec, 1")
    g.e("s_mov_b32 s94, %d" % (128 + 128 * slot))
    g.e("v_mov_b32 %s, s94" % vr(tmpv + 2))
    g.e("s_sub_u32 s96, s96, s98")
    g.e("v_mov_b32 %s, s96" % vr(tmpv))
    g.e("global_store_dword %s, %s, s[100:101]" % (vr(tmpv + 2), vr(tmpv)))
    for i in range(1, g.nst):
        g.e("s_sub_u32 s96, s%d, s70" % (70 + 2 * i))
        g.e("v_mov_b32 %s, s96" % vr(tmpv))
        g.e("global_store_dword %s, %s, s[100:101] offset:%d" % (vr(tmpv + 2), vr(tmpv), 4 * i))
    g.label(lab)

def kstart(g, name):
    g.raw(".globl %s" % name)
    g.raw(".p2align 8")
    g.raw(".type %s,@function" % name)
    g.label(name)

LOG2E = 1.4426950408889634
GK1 = -2.0 * LOG2E * 0.7978845608028654
GK2 = GK1 * 0.044715

def round_pair(g, a, tmp=None):
    g.e("v_cvt_pk_bf16_f32 %s, 0, %s" % (vr(a), vr(a)))
    g.e("v_cvt_pk_bf16_f32 %s, 0, %s" % (vr(a + 1), vr(a + 1)))

def gen_k1(g):
    name = "k1_gemm1_kernel"
    kstart(g, name)
    NST = 32
    D = 4
    WSL = 8
    XBASE = 81920
    vXo = 2
    vWp = 4
    vWs = 10
    vXrd = 13
    vWrd = 14
    vL16 = 24
    XF = 32
    WF = 64
    ACC = 96
    def acc(t, rg): return ACC + (t * 4 + rg) * 4
    sX, sQ, sG, sU, sWS = 4, 6, 8, 10, 12
    sRB, sCB, sW, sWM, sWN = 14, 15, 16, 17, 18
    sXm0, sWm0, sWm0h = 19, 20, 21
    sN1, sColF, sColQA, sColQB = 22, 23, 24, 25
    sT = 26
    SRD = 40
    g.e("s_cmp_ge_u32 s2, %d" % (0 if "k1empty" in ABL else 256))
    g.e("s_cbranch_scc1 K1_END")
    stamp_begin(g)
    g.e("s_load_dwordx2 %s, s[0:1], 0" % sr(sX, 2))
    g.e("s_load_dwordx2 %s, s[0:1], 8" % sr(sQ, 2))
    g.e("s_load_dwordx4 %s, s[0:1], 32" % sr(sG, 4))
    g.e("s_load_dwordx2 %s, s[0:1], 80" % sr(sWS, 2))
    g.e("s_load_dwordx2 s[56:57], s[0:1], 16")
    g.e("s_load_dwordx2 s[58:59], s[0:1], 48")
    g.e("s_and_b32 %s, s2, 7" % sr(sT))
    g.e("s_lshr_b32 %s, s2, 3" % sr(sT + 1))
    g.e("s_lshl_b32 %s, %s, 2" % (sr(sCB), sr(sT)))
    g.e("s_and_b32 %s, %s, 3" % (sr(sT + 2), sr(sT + 1)))
    g.e("s_add_u32 %s, %s, %s" % (sr(sCB), sr(sCB), sr(sT + 2)))
    g.e("s_lshr_b32 %s, %s, 2" % (sr(sRB), sr(sT + 1)))
    g.e("v_lshrrev_b32 v1, 6, v0")
    g.e("v_and_b32 v0, 63, v0")
    g.e("v_readfirstlane_b32 %s, v1" % sr(sW))
    g.e("s_and_b32 %s, %s, 3" % (sr(sWM), sr(sW)))
    g.e("s_lshr_b32 %s, %s, 2" % (sr(sWN), sr(sW)))
    g.e("v_lshlrev_b32 %s, 4, v0" % vr(vL16))
    g.e("s_lshl_b32 %s, %s, 11" % (sr(sXm0), sr(sW)))
    g.e("s_add_u32 %s, %s, %d" % (sr(sXm0), sr(sXm0), XBASE))
    g.e("s_lshl_b32 %s, %s, 10" % (sr(sWm0), sr(sW)))
    g.e("s_lshl_b32 %s, %s, 9" % (sr(sWm0h), sr(sW)))
    g.e("s_mul_i32 %s, %s, 160" % (sr(sColF), sr(sCB)))
    g.e("s_mul_i32 %s, %s, 320" % (sr(sColQA), sr(sCB)))
    g.e("s_sub_u32 %s, %s, %d" % (sr(sColQA), sr(sColQA), 320 * 23 - 192))
    g.e("s_add_u32 %s, %s, 160" % (sr(sColQB), sr(sColQA)))
    g.e("s_mov_b32 %s, 0" % sr(sN1))
    g.e("s_cmp_eq_u32 %s, 22" % sr(sCB))
    g.e("s_cselect_b32 %s, -64, %s" % (sr(sColQA), sr(sColQA)))
    g.e("s_cselect_b32 %s, 32, %s" % (sr(sColQB), sr(sColQB)))
    g.e("s_cselect_b32 %s, 8, %s" % (sr(sN1), sr(sN1)))
    g.e("s_cmp_lt_u32 %s, 22" % sr(sCB))
    g.e("s_cselect_b32 %s, 20, %s" % (sr(sN1), sr(sN1)))
    t0, t1, t2, t3, t4, t5, t6, t7, t8, t9 = range(XF, XF + 10)
    g.e("v_lshrrev_b32 %s, 2, v0" % vr(t0))
    g.e("v_lshrrev_b32 %s, 4, v0" % vr(t1))
    g.e("v_and_b32 %s, 2, %s" % (vr(t1), vr(t1)))
    g.e("v_and_b32 %s, 3, v0" % vr(t2))
    g.e("v_xor_b32 %s, %s, %s" % (vr(t2), vr(t2), vr(t1)))
    g.e("s_lshl_b32 %s, %s, 8" % (sr(sT), sr(sRB)))
    g.e("s_lshl_b32 %s, %s, 5" % (sr(sT + 1), sr(sW)))
    g.e("s_add_u32 %s, %s, %s" % (sr(sT), sr(sT), sr(sT + 1)))
    g.e("v_add_u32 %s, %s, %s" % (vr(t0), sr(sT), vr(t0)))
    g.e("v_lshlrev_b32 %s, 11, %s" % (vr(t0), vr(t0)))
    g.e("v_lshl_add_u32 %s, %s, 4, %s" % (vr(vXo), vr(t2), vr(t0)))
    g.e("v_add_u32 %s, 0x8000, %s" % (vr(vXo + 1), vr(vXo)))
    g.e("v_and_b32 %s, 15, v0" % vr(t0))
    g.e("v_lshrrev_b32 %s, 4, v0" % vr(t1))
    g.e("v_lshrrev_b32 %s, 2, %s" % (vr(t2), vr(t0)))
    g.e("v_and_b32 %s, 2, %s" % (vr(t2), vr(t2)))
    g.e("v_xor_b32 %s, %s, %s" % (vr(t2), vr(t2), vr(t1)))
    g.e("v_lshlrev_b32 %s, 6, %s" % (vr(t3), vr(t0)))
    g.e("v_lshl_add_u32 %s, %s, 4, %s" % (vr(t3), vr(t2), vr(t3)))
    g.e("s_lshl_b32 %s, %s, 12" % (sr(sT), sr(sWM)))
    g.e("s_add_u32 %s, %s, %d" % (sr(sT), sr(sT), XBASE))
    g.e("v_add_u32 %s, %s, %s" % (vr(vXrd), sr(sT), vr(t3)))
    g.e("v_lshrrev_b32 %s, 2, %s" % (vr(t2), vr(t0)))
    g.e("v_lshl_add_u32 %s, %s, 3, %s" % (vr(t2), vr(t1), vr(t2)))
    g.e("v_mul_u32_u24 %s, 640, %s" % (vr(t2), vr(t2)))
    g.e("v_and_b32 %s, 3, %s" % (vr(t3), vr(t0)))
    g.e("v_lshl_add_u32 %s, %s, 3, %s" % (vr(t2), vr(t3), vr(t2)))
    g.e("v_bfe_u32 %s, %s, 3, 1" % (vr(t3), vr(t0)))
    g.e("v_and_b32 %s, 1, %s" % (vr(t4), vr(t1)))
    g.e("v_lshl_or_b32 %s, %s, 1, %s" % (vr(t3), vr(t4), vr(t3)))
    g.e("s_mul_i32 %s, %s, 6" % (sr(sT), sr(sWN)))
    g.e("s_add_u32 %s, %s, 4" % (sr(sT + 1), sr(sWN)))
    for j in range(5):
        for hf in range(2):
            if j < 4:
                g.e("s_add_u32 %s, %s, %d" % (sr(sT + 2), sr(sT), j + 10 * hf))
            else:
                g.e("s_add_u32 %s, %s, %d" % (sr(sT + 2), sr(sT + 1), 10 * hf))
            g.e("v_xor_b32 %s, %s, %s" % (vr(t4), sr(sT + 2), vr(t3)))
            g.e("v_lshl_add_u32 %s, %s, 5, %s" % (vr(vWrd + j + 5 * hf), vr(t4), vr(t2)))
    g.e("s_waitcnt lgkmcnt(0)")
    for n in range(3):
        if n < 2:
            g.e("s_lshl_b32 %s, %s, 6" % (sr(sT), sr(sW)))
            g.e("s_add_u32 %s, %s, %d" % (sr(sT), sr(sT), 512 * n))
            g.e("v_add_u32 %s, %s, v0" % (vr(t0), sr(sT)))
        else:
            g.e("s_lshl_b32 %s, %s, 5" % (sr(sT), sr(sW)))
            g.e("s_add_u32 %s, %s, 1024" % (sr(sT), sr(sT)))
            g.e("v_and_b32 %s, 31, v0" % vr(t0))
            g.e("v_add_u32 %s, %s, %s" % (vr(t0), sr(sT), vr(t0)))
        g.e("v_mul_u32_u24 %s, 52429, %s" % (vr(t1), vr(t0)))
        g.e("v_lshrrev_b32 %s, 21, %s" % (vr(t1), vr(t1)))
        g.e("v_mul_u32_u24 %s, 40, %s" % (vr(t2), vr(t1)))
        g.e("v_sub_u32 %s, %s, %s" % (vr(t2), vr(t0), vr(t2)))
        g.e("v_bfe_u32 %s, %s, 1, 1" % (vr(t3), vr(t1)))
        g.e("v_lshrrev_b32 %s, 2, %s" % (vr(t4), vr(t1)))
        g.e("v_and_b32 %s, 2, %s" % (vr(t4), vr(t4)))
        g.e("v_or_b32 %s, %s, %s" % (vr(t3), vr(t3), vr(t4)))
        g.e("v_lshlrev_b32 %s, 1, %s" % (vr(t3), vr(t3)))
        g.e("v_xor_b32 %s, %s, %s" % (vr(t2), vr(t2), vr(t3)))
        g.e("v_cmp_le_u32 vcc, 20, %s" % vr(t2))
        g.e("v_subrev_u32 %s, 20, %s" % (vr(t3), vr(t2)))
        g.e("s_nop 1")
        g.e("v_cndmask_b32 %s, %s, %s, vcc" % (vr(t2), vr(t2), vr(t3)))
        g.e("v_mov_b32 %s, %s" % (vr(t3), sr(sG)))
        g.e("v_mov_b32 %s, %s" % (vr(t4), sr(sU)))
        g.e("v_cndmask_b32 %s, %s, %s, vcc" % (vr(t3), vr(t3), vr(t4)))
        g.e("v_mov_b32 %s, %s" % (vr(t4), sr(sG + 1)))
        g.e("v_mov_b32 %s, %s" % (vr(t5), sr(sU + 1)))
        g.e("v_cndmask_b32 %s, %s, %s, vcc" % (vr(t4), vr(t4), vr(t5)))
        g.e("v_mov_b32 %s, %s" % (vr(t5), sr(sColQA)))
        g.e("v_mov_b32 %s, %s" % (vr(t6), sr(sColQB)))
        g.e("v_cndmask_b32 %s, %s, %s, vcc" % (vr(t5), vr(t5), vr(t6)))
        g.e("v_cmp_gt_u32 vcc, %s, %s" % (sr(sN1), vr(t2)))
        g.e("v_mov_b32 %s, %s" % (vr(t6), sr(sQ)))
        g.e("v_mov_b32 %s, %s" % (vr(t7), sr(sQ + 1)))
        g.e("v_cndmask_b32 %s, %s, %s, vcc" % (vr(t3), vr(t6), vr(t3)))
        g.e("v_cndmask_b32 %s, %s, %s, vcc" % (vr(t4), vr(t7), vr(t4)))
        g.e("v_mov_b32 %s, %s" % (vr(t6), sr(sColF)))
        g.e("v_cndmask_b32 %s, %s, %s, vcc" % (vr(t5), vr(t5), vr(t6)))
        g.e("v_mov_b32 %s, 6144" % vr(t6))
        g.e("v_mov_b32 %s, 7168" % vr(t7))
        g.e("v_cndmask_b32 %s, %s, %s, vcc" % (vr(t6), vr(t6), vr(t7)))
        g.e("v_lshl_add_u32 %s, %s, 3, %s" % (vr(t5), vr(t2), vr(t5)))
        g.e("v_mul_u32_u24 %s, %s, %s" % (vr(t7), vr(t1), vr(t6)))
        g.e("v_lshl_add_u32 %s, %s, 1, %s" % (vr(t7), vr(t5), vr(t7)))
        g.e("v_add_co_u32 %s, vcc, %s, %s" % (vr(vWp + 2 * n), vr(t3), vr(t7)))
        g.e("v_addc_co_u32 %s, vcc, 0, %s, vcc" % (vr(vWp + 2 * n + 1), vr(t4)))
        g.e("v_lshlrev_b32 %s, 5, %s" % (vr(vWs + n), vr(t6)))
    g.e("s_mov_b32 %s, %s" % (sr(SRD), sr(sWS)))
    g.e("s_and_b32 %s, %s, 0xffff" % (sr(SRD + 1), sr(sWS + 1)))
    g.e("s_mov_b32 %s, 0x%x" % (sr(SRD + 2), WS_BYTES))
    g.e("s_mov_b32 %s, 0x00020000" % sr(SRD + 3))

    lz = g.newlab("K1_Z")
    g.e("s_cmp_lg_u32 %s, 0" % sr(sW))
    g.e("s_cbranch_scc1 %s" % lz)
    g.e("s_lshl_b32 %s, s2, 5" % sr(sT))
    g.e("s_add_u32 %s, %s, 0x%x" % (sr(sT), sr(sT), FLAG_OFF))
    g.e("v_lshlrev_b32 %s, 2, v0" % vr(t0))
    g.e("v_mov_b32 %s, 0" % vr(t1))
    g.e("s_mov_b64 exec, 0xff")
    g.e("buffer_store_dword %s, %s, %s, %s offen" % (vr(t1), vr(t0), sr(SRD, 4), sr(sT)))
    g.e("s_mov_b64 exec, -1")
    g.e("s_waitcnt vmcnt(0)")
    g.label(lz)

    def dma(st, idx):
        slot = st % 4
        tag = ("dma", st)
        if "samek" in ABL:
            if idx < 2:
                g.e("s_add_u32 m0, %s, %d" % (sr(sXm0), slot * 16384 + idx * 1024))
                g.e("s_nop 0")
                g.vm("global_load_lds_dwordx4 %s, %s" % (vr(vXo + idx), sr(sX, 2)), tag)
            elif idx < 4:
                n = idx - 2
                g.e("s_add_u32 m0, %s, %d" % (sr(sWm0), slot * 20480 + n * 8192))
                g.e("s_nop 0")
                g.vm("global_load_lds_dwordx4 %s, off" % vr(vWp + 2 * n, 2), tag)
            else:
                g.e("s_add_u32 m0, %s, %d" % (sr(sWm0h), slot * 20480 + 16384))
                g.e("s_mov_b32 exec_hi, 0")
                g.vm("global_load_lds_dwordx4 %s, off" % vr(vWp + 4, 2), tag)
                g.e("s_mov_b32 exec_hi, -1")
            return
        if idx < 2:
            g.e("s_add_u32 m0, %s, %d" % (sr(sXm0), slot * 16384 + idx * 1024 - st * 64))
            g.e("s_nop 0")
            g.vm("global_load_lds_dwordx4 %s, %s offset:%d" % (vr(vXo + idx), sr(sX, 2), st * 64), tag)
        elif idx < 4:
            n = idx - 2
            g.e("s_add_u32 m0, %s, %d" % (sr(sWm0), slot * 20480 + n * 8192))
            g.e("s_nop 0")
            g.vm("global_load_lds_dwordx4 %s, off" % vr(vWp + 2 * n, 2), tag)
            g.e("v_add_co_u32 %s, vcc, %s, %s" % (vr(vWp + 2 * n), vr(vWp + 2 * n), vr(vWs + n)))
            g.e("v_addc_co_u32 %s, vcc, 0, %s, vcc" % (vr(vWp + 2 * n + 1), vr(vWp + 2 * n + 1)))
        else:
            n = 2
            g.e("s_add_u32 m0, %s, %d" % (sr(sWm0h), slot * 20480 + 16384))
            g.e("s_mov_b32 exec_hi, 0")
            g.vm("global_load_lds_dwordx4 %s, off" % vr(vWp + 2 * n, 2), tag)
            g.e("s_mov_b32 exec_hi, -1")
            g.e("v_add_co_u32 %s, vcc, %s, %s" % (vr(vWp + 2 * n), vr(vWp + 2 * n), vr(vWs + n)))
            g.e("v_addc_co_u32 %s, vcc, 0, %s, vcc" % (vr(vWp + 2 * n + 1), vr(vWp + 2 * n + 1)))
    def wread(f):
        s, t = divmod(f, 10)
        reg = WF + 4 * (f % WSL)
        off = (s % 4) * 20480
        g.lds("ds_read_b64_tr_b16 %s, %s offset:%d" % (vr(reg, 2), vr(vWrd + t), off), ("w", f))
        g.lds("ds_read_b64_tr_b16 %s, %s offset:%d" % (vr(reg + 2, 2), vr(vWrd + t), off + 2560), ("w", f))
    def xread(s, rg):
        reg = XF + 16 * (s % 2) + 4 * rg
        g.lds("ds_read_b128 %s, %s offset:%d" % (vr(reg, 4), vr(vXrd), (s % 4) * 16384 + rg * 1024), ("x", s))

    stamp(g)
    for st in range(3):
        for idx in range(5):
            dma(st, idx)
    g.need(vtags=[("dma", 0)])
    g.e("s_barrier")
    stamp(g)
    for rg in range(4):
        xread(0, rg)
    for f in range(D):
        wread(f)
    for s in range(NST):
        g.c("---- stage %d" % s)
        if s + 1 < NST:
            g.need(vtags=[("dma", s + 1)])
            if "nobar" not in ABL:
                g.e("s_barrier")
        if s == NST - 1 and "nopf" not in ABL:
            g.e("s_lshl_b32 %s, s2, 3" % sr(sT))
            g.e("s_add_u32 %s, %s, %s" % (sr(sT), sr(sT), sr(sW)))
            g.e("s_lshl_b32 %s, %s, 10" % (sr(sT + 1), sr(sT)))
            g.e("v_lshlrev_b32 v28, 7, v0")
            g.e("v_add_u32 v29, %s, v28" % sr(sT + 1))
            g.e("s_mul_i32 %s, %s, %d" % (sr(sT + 1), sr(sT), 28 * 128))
            g.e("v_add_u32 v28, %s, v28" % sr(sT + 1))
            g.e("s_mov_b64 exec, 0xff")
            g.e("global_load_dword v30, v29, s[56:57]")
            g.e("s_mov_b64 exec, 0xfffffff")
            g.e("global_load_dword v31, v28, s[58:59]")
            g.e("s_mov_b64 exec, -1")
        for gi in range(10):
            if gi < 5 and s + 3 < NST and "nodma" not in ABL and not ("noxdma" in ABL and gi < 2) and not ("nowdma" in ABL and gi >= 2):
                dma(s + 3, gi)
            f = s * 10 + gi + D
            if f < NST * 10 and "nolds" not in ABL:
                wread(f)
            if 2 <= gi < 6 and s + 1 < NST and "nolds" not in ABL:
                xread(s + 1, gi - 2)
            g.need(ltags=[("w", s * 10 + gi), ("x", s)])
            if "nomfma" in ABL and s > 0:
                continue
            wreg = WF + 4 * ((s * 10 + gi) % WSL)
            for rg in range(4):
                xreg = XF + 16 * (s % 2) + 4 * rg
                a = acc(gi, rg)
                cin = "0" if s == 0 else vr(a, 4)
                g.e("v_mfma_f32_16x16x32_bf16 %s, %s, %s, %s" % (vr(a, 4), vr(wreg, 4), vr(xreg, 4), cin))
    g.c("---- epilogue")
    stamp(g)
    if "k1noepi" in ABL:
        g.e("s_branch K1_END")
    sK1, sK2, sOne = 44, 46, 48
    vK1 = 26
    g.e("s_mov_b32 %s, 0x%x" % (sr(sK2), f2u(GK2)))
    g.e("s_mov_b32 %s, 0x%x" % (sr(sK2 + 1), f2u(GK2)))
    g.e("s_mov_b32 %s, 1.0" % sr(sOne))
    g.e("s_mov_b32 %s, 1.0" % sr(sOne + 1))
    g.e("v_mov_b32 %s, 0x%x" % (vr(vK1), f2u(GK1)))
    g.e("v_mov_b32 %s, 0x%x" % (vr(vK1 + 1), f2u(GK1)))
    sM0, sB, sDA, sDB, sJA = 50, 51, 52, 53, 54
    g.e("s_lshl_b32 %s, %s, 4" % (sr(sM0), sr(sRB)))
    g.e("s_lshl_b32 %s, %s, 2" % (sr(sT), sr(sWM)))
    g.e("s_add_u32 %s, %s, %s" % (sr(sM0), sr(sM0), sr(sT)))
    vL16s = 25
    g.e("s_lshl_b32 %s, %s, 3" % (sr(sT), sr(sWN)))
    g.e("v_add_u32 %s, %s, %s" % (vr(vL16s), sr(sT), vr(vL16)))
    g.e("s_nop 7")
    TMP = 32
    for u in range(3):
        lq, ldone = g.newlab("K1_Q"), g.newlab("K1_D")
        if u < 2:
            g.e("s_mul_i32 %s, %s, 3" % (sr(sB), sr(sWN)))
            g.e("s_add_u32 %s, %s, %d" % (sr(sB), sr(sB), u))
        else:
            g.e("s_mov_b32 %s, 2" % sr(sB))
        g.e("s_lshl_b32 %s, %s, 2" % (sr(sT), sr(sB)))
        g.e("s_cmp_lt_u32 %s, %s" % (sr(sT), sr(sN1)))
        g.e("s_cbranch_scc0 %s" % lq)
        g.e("s_mul_i32 %s, %s, 5" % (sr(sT), sr(sCB)))
        g.e("s_add_u32 %s, %s, %s" % (sr(sT), sr(sT), sr(sB)))
        g.e("s_add_u32 %s, %s, 32" % (sr(sT), sr(sT)))
        g.e("s_mul_i32 %s, %s, %d" % (sr(sDA), sr(sM0), NKB))
        g.e("s_add_u32 %s, %s, %s" % (sr(sDA), sr(sDA), sr(sT)))
        g.e("s_lshl_b32 %s, %s, 10" % (sr(sDA), sr(sDA)))
        tiles = [2 * u, 2 * u + 1] if u < 2 else [4]
        for rg in range(4):
            outb = TMP + 8 * (rg % 2)
            k = 0
            for t in tiles:
                for pr in range(2):
                    ga = acc(t, rg) + 2 * pr
                    ua = acc(t + 5, rg) + 2 * pr
                    tm = TMP + 16 + 8 * (k % 2)
                    round_pair(g, ga, tm)
                    round_pair(g, ua, tm + 1)
                    g.e("v_pk_mul_f32 %s, %s, %s" % (vr(tm + 2, 2), vr(ga, 2), vr(ga, 2)))
                    g.e("v_pk_fma_f32 %s, %s, %s, %s" % (vr(tm + 2, 2), vr(tm + 2, 2), sr(sK2, 2), vr(vK1, 2)))
                    g.e("v_pk_mul_f32 %s, %s, %s" % (vr(tm + 2, 2), vr(tm + 2, 2), vr(ga, 2)))
                    g.e("v_exp_f32 %s, %s" % (vr(tm + 2), vr(tm + 2)))
                    g.e("v_exp_f32 %s, %s" % (vr(tm + 3), vr(tm + 3)))
                    g.e("s_nop 0")
                    g.e("v_pk_add_f32 %s, %s, %s" % (vr(tm + 2, 2), vr(tm + 2, 2), sr(sOne, 2)))
                    g.e("v_rcp_f32 %s, %s" % (vr(tm + 2), vr(tm + 2)))
                    g.e("v_rcp_f32 %s, %s" % (vr(tm + 3), vr(tm + 3)))
                    g.e("s_nop 0")
                    g.e("v_pk_mul_f32 %s, %s, %s" % (vr(ga, 2), vr(tm + 2, 2), vr(ga, 2)))
                    round_pair(g, ga, tm)
                    g.e("v_pk_mul_f32 %s, %s, %s" % (vr(ga, 2), vr(ga, 2), vr(ua, 2)))
                    g.e("v_cvt_pk_bf16_f32 %s, %s, %s" % (vr(outb + k), vr(ga), vr(ga + 1)))
                    k += 1
            if u < 2:
                g.e("buffer_store_dwordx4 %s, %s, %s, %s offen %s" % (vr(outb, 4), vr(vL16), sr(SRD, 4), sr(sDA), STF))
            else:
                g.e("buffer_store_dwordx2 %s, %s, %s, %s offen %s" % (vr(outb, 2), vr(vL16s), sr(SRD, 4), sr(sDA), STF))
            if rg < 3:
                g.e("s_add_u32 %s, %s, %d" % (sr(sDA), sr(sDA), NKB * 1024))
        g.e("s_branch %s" % ldone)
        g.label(lq)
        for (sc, sd) in ((sColQA, sDA), (sColQB, sDB)):
            g.e("s_ashr_i32 %s, %s, 5" % (sr(sT), sr(sc)))
            g.e("s_add_u32 %s, %s, %s" % (sr(sT), sr(sT), sr(sB)))
            g.e("s_lshl_b32 %s, %s, 7" % (sr(sT), sr(sT)))
            g.e("s_add_u32 %s, %s, %s" % (sr(sT), sr(sT), sr(sM0)))
            g.e("s_lshl_b32 %s, %s, 10" % (sr(sT), sr(sT)))
            g.e("s_add_u32 %s, %s, 0x%x" % (sr(sd), sr(sT), QKV_OFF))
        n = 0
        for rg in range(4):
            for hf, sd in ((0, sDA), (1, sDB)):
                outb = TMP + 4 * (n % 8)
                n += 1
                k = 0
                for t in tiles:
                    for pr in range(2):
                        a = acc(t + 5 * hf, rg) + 2 * pr
                        g.e("v_cvt_pk_bf16_f32 %s, %s, %s" % (vr(outb + k), vr(a), vr(a + 1)))
                        k += 1
                if u < 2:
                    g.e("buffer_store_dwordx4 %s, %s, %s, %s offen offset:%d %s" % (vr(outb, 4), vr(vL16), sr(SRD, 4), sr(sd), rg * 1024, STF))
                else:
                    g.e("buffer_store_dwordx2 %s, %s, %s, %s offen offset:%d %s" % (vr(outb, 2), vr(vL16s), sr(SRD, 4), sr(sd), rg * 1024, STF))
        g.label(ldone)
        if u < 2:
            g.e("s_nop 1")
    stamp_end(g)
    g.label("K1_END")
    g.e("s_endpgm")
    return name

def gen_k2(g):
    name = "k2_attn_kernel"
    kstart(g, name)
    g.lq = []; g.vq = []
    sWS, sX, sGW = 4, 6, 8
    sHd, sQB, sW, sT = 10, 11, 12, 13
    SRD = 20
    sMk = 24
    sNneg = 32
    sC, sL2 = 34, 36
    g.e("s_cmp_ge_u32 s2, 512")
    g.e("s_cbranch_scc1 K2_END")
    stamp_begin(g)
    g.e("s_load_dwordx2 %s, s[0:1], 80" % sr(sWS, 2))
    g.e("s_load_dwordx2 %s, s[0:1], 0" % sr(sX, 2))
    g.e("s_load_dwordx2 %s, s[0:1], 56" % sr(sGW, 2))
    g.e("s_load_dwordx2 s[40:41], s[0:1], 16")
    g.e("s_load_dwordx2 s[42:43], s[0:1], 48")
    g.e("v_lshrrev_b32 v1, 6, v0")
    g.e("v_and_b32 v0, 63, v0")
    g.e("v_readfirstlane_b32 %s, v1" % sr(sW))
    vL16 = 2
    g.e("v_lshlrev_b32 %s, 4, v0" % vr(vL16))
    g.e("s_waitcnt lgkmcnt(0)")
    g.e("s_mov_b32 %s, %s" % (sr(SRD), sr(sWS)))
    g.e("s_and_b32 %s, %s, 0xffff" % (sr(SRD + 1), sr(sWS + 1)))
    g.e("s_mov_b32 %s, 0x%x" % (sr(SRD + 2), WS_BYTES))
    g.e("s_mov_b32 %s, 0x00020000" % sr(SRD + 3))
    sRow = 38
    g.e("s_lshl_b32 %s, s2, 2" % sr(sRow))
    g.e("s_add_u32 %s, %s, %s" % (sr(sRow), sr(sRow), sr(sW)))
    g.e("s_lshl_b32 %s, %s, 11" % (sr(sT), sr(sRow)))
    g.e("v_lshlrev_b32 v3, 5, v0")
    g.e("v_add_u32 v20, %s, v3" % sr(sT))
    g.e("global_load_dwordx4 v[60:63], v3, %s" % sr(sGW, 2))
    g.e("global_load_dwordx4 v[64:67], v3, %s offset:16" % sr(sGW, 2))
    g.e("global_load_dwordx4 v[68:71], v20, %s" % sr(sX, 2))
    g.e("global_load_dwordx4 v[72:75], v20, %s offset:16" % sr(sX, 2))
    g.e("s_and_b32 %s, s2, 31" % sr(sHd))
    g.e("s_lshr_b32 %s, s2, 5" % sr(sQB))
    g.e("s_lshl_b32 %s, %s, 3" % (sr(sT), sr(sQB)))
    g.e("s_add_u32 %s, %s, %s" % (sr(sT), sr(sT), sr(sW)))
    g.e("s_sub_u32 %s, %s, 16" % (sr(sT), sr(sT)))
    g.e("s_lshl_b32 %s, %s, 17" % (sr(sT + 1), sr(sHd)))
    g.e("s_add_u32 %s, %s, 0x%x" % (sr(sT + 1), sr(sT + 1), QKV_OFF + 32 * 128 * 1024))
    g.e("s_lshl_b32 %s, %s, 10" % (sr(sT + 4), sr(sW)))
    for i in range(6):
        g.e("s_add_u32 %s, %s, %d" % (sr(sT + 2), sr(sT), 4 * i))
        g.e("s_max_i32 %s, %s, 0" % (sr(sT + 2), sr(sT + 2)))
        g.e("s_lshl_b32 %s, %s, 10" % (sr(sT + 2), sr(sT + 2)))
        g.e("s_add_u32 %s, %s, %s" % (sr(sT + 2), sr(sT + 2), sr(sT + 1)))
        g.e("s_add_u32 %s, %s, 0x%x" % (sr(sT + 3), sr(sT + 2), 32 * 128 * 1024))
        g.e("s_add_u32 m0, %s, %d" % (sr(sT + 4), 4096 * i))
        g.e("s_nop 0")
        g.e("buffer_load_dwordx4 %s, %s, %s offen lds" % (vr(vL16), sr(SRD, 4), sr(sT + 2)))
        g.e("s_add_u32 m0, %s, %d" % (sr(sT + 4), 24576 + 4096 * i))
        g.e("s_nop 0")
        g.e("buffer_load_dwordx4 %s, %s, %s offen lds" % (vr(vL16), sr(SRD, 4), sr(sT + 3)))
    QF = 4
    g.e("s_lshl_b32 %s, %s, 3" % (sr(sT), sr(sQB)))
    g.e("s_lshl_b32 %s, %s, 1" % (sr(sT + 2), sr(sW)))
    g.e("s_add_u32 %s, %s, %s" % (sr(sT + 5), sr(sT), sr(sT + 2)))
    g.e("s_lshl_b32 %s, %s, 7" % (sr(sT + 2), sr(sHd)))
    g.e("s_add_u32 %s, %s, %s" % (sr(sT + 2), sr(sT + 2), sr(sT + 5)))
    g.e("s_lshl_b32 %s, %s, 10" % (sr(sT + 2), sr(sT + 2)))
    g.e("s_add_u32 %s, %s, 0x%x" % (sr(sT + 2), sr(sT + 2), QKV_OFF))
    g.e("buffer_load_dwordx4 %s, %s, %s, %s offen" % (vr(QF, 4), vr(vL16), sr(SRD, 4), sr(sT + 2)))
    g.e("buffer_load_dwordx4 %s, %s, %s, %s offen offset:1024" % (vr(QF + 4, 4), vr(vL16), sr(SRD, 4), sr(sT + 2)))
    g.e("s_sub_u32 %s, 16, %s" % (sr(sNneg), sr(sT + 5)))
    g.e("s_max_i32 %s, %s, 0" % (sr(sNneg), sr(sNneg)))
    vI, vQ4, vNI, vKrd, vVrd = 12, 13, 14, 15, 16
    g.e("v_and_b32 %s, 15, v0" % vr(vI))
    g.e("v_lshrrev_b32 %s, 4, v0" % vr(vQ4))
    g.e("v_lshlrev_b32 %s, 2, %s" % (vr(17), vr(vQ4)))
    for r in range(4):
        g.e("v_add_u32 %s, %d, %s" % (vr(18), r, vr(17)))
        g.e("v_cmp_gt_u32 %s, %s, %s" % (sr(sMk + 2 * r, 2), vr(18), vr(vI)))
    g.e("v_mov_b32 %s, 0xff800000" % vr(vNI))
    g.e("s_lshl_b32 %s, %s, 11" % (sr(sT), sr(sW)))
    g.e("v_add_u32 %s, %s, %s" % (vr(vKrd), sr(sT), vr(vL16)))
    g.e("v_and_b32 %s, 3, %s" % (vr(18), vr(vI)))
    g.e("v_lshlrev_b32 %s, 4, %s" % (vr(18), vr(18)))
    g.e("v_add_u32 %s, %s, %s" % (vr(18), vr(18), vr(17)))
    g.e("v_lshrrev_b32 %s, 2, %s" % (vr(19), vr(vI)))
    g.e("v_add_u32 %s, %s, %s" % (vr(18), vr(18), vr(19)))
    g.e("v_lshlrev_b32 %s, 4, %s" % (vr(18), vr(18)))
    g.e("s_add_u32 %s, %s, 24576" % (sr(sT), sr(sT)))
    g.e("v_add_u32 %s, %s, %s" % (vr(vVrd), sr(sT), vr(18)))
    g.e("s_mov_b32 %s, 0x%x" % (sr(sC), f2u(32 ** -0.5)))
    g.e("s_mov_b32 %s, 0x%x" % (sr(sC + 1), f2u(32 ** -0.5)))
    g.e("s_mov_b32 %s, 0x%x" % (sr(sL2), f2u(LOG2E)))
    g.e("s_mov_b32 %s, 0x%x" % (sr(sL2 + 1), f2u(LOG2E)))
    g.e("s_waitcnt vmcnt(0)")
    g.e("s_barrier")
    if "nopf" not in ABL:
        g.e("s_lshl_b32 %s, %s, 10" % (sr(sT), sr(sRow)))
        g.e("v_lshlrev_b32 v100, 7, v0")
        g.e("v_add_u32 v101, %s, v100" % sr(sT))
        g.e("s_mul_i32 %s, %s, %d" % (sr(sT), sr(sRow), 28 * 128))
        g.e("v_add_u32 v102, %s, v100" % sr(sT))
        g.e("s_mov_b64 exec, 0xff")
        g.e("global_load_dword v254, v101, s[40:41]")
        g.e("s_mov_b64 exec, 0xfffffff")
        g.e("global_load_dword v255, v102, s[42:43]")
        g.e("s_mov_b64 exec, -1")
    KF = 20
    SA = 52
    SB = 120
    VF = 188
    OA = 220
    TM = 236
    def S(grp, t):
        return SA + 4 * t if grp == 0 else SB + 4 * (t - 1)
    def kread(t):
        g.lds("ds_read_b128 %s, %s offset:%d" % (vr(KF + 4 * (t % 8), 4), vr(vKrd), t * 1024), ("k", t))
    for t in range(6):
        kread(t)
    for k in range(8):
        a = 76 + 4 * (k % 2)
        g.e("v_lshlrev_b32 %s, 16, %s" % (vr(a), vr(60 + k)))
        g.e("v_and_b32 %s, 0xffff0000, %s" % (vr(a + 1), vr(60 + k)))
        g.e("v_lshlrev_b32 %s, 16, %s" % (vr(a + 2), vr(68 + k)))
        g.e("v_and_b32 %s, 0xffff0000, %s" % (vr(a + 3), vr(68 + k)))
        g.e("v_pk_mul_f32 %s, %s, %s" % (vr(a, 2), vr(a, 2), vr(a + 2, 2)))
        round_pair(g, a)
        if k == 0:
            g.e("v_mov_b32 v84, %s" % vr(a))
            g.e("v_mov_b32 v85, %s" % vr(a + 1))
        else:
            g.e("v_pk_add_f32 v[84:85], v[84:85], %s" % vr(a, 2))
    g.e("v_add_f32 v84, v84, v85")
    g.e("s_nop 1")
    g.e("v_add_f32_dpp v84, v84, v84 quad_perm:[1,0,3,2] row_mask:0xf bank_mask:0xf")
    g.e("s_nop 1")
    g.e("v_add_f32_dpp v84, v84, v84 quad_perm:[2,3,0,1] row_mask:0xf bank_mask:0xf")
    g.e("s_nop 1")
    g.e("v_add_f32_dpp v84, v84, v84 row_half_mirror row_mask:0xf bank_mask:0xf")
    g.e("s_nop 1")
    g.e("v_add_f32_dpp v84, v84, v84 row_mirror row_mask:0xf bank_mask:0xf")
    g.e("v_mov_b32 v85, v84")
    g.e("s_nop 1")
    g.e("v_permlane32_swap_b32 v84, v85")
    g.e("v_add_f32 v84, v84, v85")
    g.e("v_mov_b32 v85, v84")
    g.e("s_nop 1")
    g.e("v_permlane16_swap_b32 v84, v85")
    g.e("v_add_f32 v84, v84, v85")
    g.e("v_cvt_pk_bf16_f32 v84, 0, v84")
    g.e("v_mul_f32 v84, 0x%x, v84" % f2u(-LOG2E))
    g.e("v_exp_f32 v84, v84")
    g.e("s_nop 0")
    g.e("v_add_f32 v84, 1.0, v84")
    g.e("v_rcp_f32 v84, v84")
    g.e("s_lshl_b32 %s, %s, 2" % (sr(sT), sr(sRow)))
    g.e("v_cvt_pk_bf16_f32 v84, 0, v84")
    g.e("v_mov_b32 v85, 0")
    g.e("s_add_u32 %s, %s, 0x%x" % (sr(sT), sr(sT), G_OFF))
    g.e("s_mov_b64 exec, 1")
    g.e("buffer_store_dword v84, v85, %s, %s offen" % (sr(SRD, 4), sr(sT)))
    g.e("s_mov_b64 exec, -1")
    for t in range(18):
        if t + 6 < 18:
            kread(t + 6)
        g.need(ltags=[("k", t)])
        kreg = KF + 4 * (t % 8)
        if t <= 16:
            g.e("v_mfma_f32_16x16x32_bf16 %s, %s, %s, 0" % (vr(S(0, t), 4), vr(kreg, 4), vr(QF, 4)))
        if t >= 1:
            g.e("v_mfma_f32_16x16x32_bf16 %s, %s, %s, 0" % (vr(S(1, t), 4), vr(kreg, 4), vr(QF + 4, 4)))
    def vread(j, d):
        n = j * 2 + d
        reg = VF + 4 * (n % 8)
        g.lds("ds_read_b64_tr_b16 %s, %s offset:%d" % (vr(reg, 2), vr(vVrd), (2 * j) * 1024 + 8 * d), ("v", n))
        g.lds("ds_read_b64_tr_b16 %s, %s offset:%d" % (vr(reg + 2, 2), vr(vVrd), (2 * j + 1) * 1024 + 8 * d), ("v", n))
    for n in range(6):
        vread(n // 2, n % 2)
    g.e("s_nop 7")
    for (grp, t, gt) in ((0, 0, True), (0, 16, False), (1, 1, True), (1, 17, False)):
        for r in range(4):
            a = S(grp, t) + r
            if gt:
                g.e("v_cndmask_b32 %s, %s, %s, %s" % (vr(a), vr(vNI), vr(a), sr(sMk + 2 * r, 2)))
            else:
                g.e("v_cndmask_b32 %s, %s, %s, %s" % (vr(a), vr(a), vr(vNI), sr(sMk + 2 * r, 2)))
    for t in range(16):
        g.e("s_cmp_le_u32 %s, %d" % (sr(sNneg), t))
        g.e("s_cbranch_scc1 K2_NEGDONE")
        for r in range(4):
            g.e("v_mov_b32 %s, %s" % (vr(S(0, t) + r), vr(vNI)))
        if t >= 1:
            for r in range(4):
                g.e("v_mov_b32 %s, %s" % (vr(S(1, t) + r), vr(vNI)))
    g.label("K2_NEGDONE")
    for grp in range(2):
        base = SA if grp == 0 else SB
        m0_, m1_ = TM, TM + 1
        g.e("v_max3_f32 %s, %s, %s, %s" % (vr(m0_), vr(base), vr(base + 1), vr(base + 2)))
        g.e("v_max3_f32 %s, %s, %s, %s" % (vr(m1_), vr(base + 3), vr(base + 4), vr(base + 5)))
        i = 6
        tog = 0
        while i + 1 < 68:
            mm = m0_ if tog == 0 else m1_
            g.e("v_max3_f32 %s, %s, %s, %s" % (vr(mm), vr(mm), vr(base + i), vr(base + i + 1)))
            i += 2; tog ^= 1
        g.e("v_max_f32 %s, %s, %s" % (vr(m0_), vr(m0_), vr(m1_)))
        g.e("v_mov_b32 %s, %s" % (vr(m1_), vr(m0_)))
        g.e("s_nop 1")
        g.e("v_permlane32_swap_b32 %s, %s" % (vr(m0_), vr(m1_)))
        g.e("v_max_f32 %s, %s, %s" % (vr(m0_), vr(m0_), vr(m1_)))
        g.e("v_mov_b32 %s, %s" % (vr(m1_), vr(m0_)))
        g.e("s_nop 1")
        g.e("v_permlane16_swap_b32 %s, %s" % (vr(m0_), vr(m1_)))
        g.e("v_max_f32 %s, %s, %s" % (vr(m0_), vr(m0_), vr(m1_)))
        g.e("v_mov_b32 %s, %s" % (vr(m1_), vr(m0_)))
        round_pair(g, m0_, TM + 2)
        g.e("v_pk_mul_f32 %s, %s, %s" % (vr(m0_, 2), vr(m0_, 2), sr(sC, 2)))
        round_pair(g, m0_, TM + 2)
        g.e("v_pk_mul_f32 %s, %s, %s" % (vr(m0_, 2), vr(m0_, 2), sr(sL2, 2)))
        g.e("v_sub_f32 %s, 0, %s" % (vr(m0_), vr(m0_)))
        g.e("v_sub_f32 %s, 0, %s" % (vr(m1_), vr(m1_)))
        sm = TM + 4
        for p in range(34):
            a = base + 2 * p
            tm = TM + 8 + (p % 4)
            round_pair(g, a, tm)
            g.e("v_pk_mul_f32 %s, %s, %s" % (vr(a, 2), vr(a, 2), sr(sC, 2)))
            round_pair(g, a, tm)
            g.e("v_pk_fma_f32 %s, %s, %s, %s" % (vr(a, 2), vr(a, 2), sr(sL2, 2), vr(m0_, 2)))
            g.e("v_exp_f32 %s, %s" % (vr(a), vr(a)))
            g.e("v_exp_f32 %s, %s" % (vr(a + 1), vr(a + 1)))
            if p >= 1:
                pa = base + 2 * (p - 1)
                ss = sm + 2 * ((p - 1) % 2)
                if p - 1 < 2:
                    g.e("v_mov_b32 %s, %s" % (vr(ss), vr(pa)))
                    g.e("v_mov_b32 %s, %s" % (vr(ss + 1), vr(pa + 1)))
                else:
                    g.e("v_pk_add_f32 %s, %s, %s" % (vr(ss, 2), vr(ss, 2), vr(pa, 2)))
        g.e("s_nop 0")
        pa = base + 2 * 33
        g.e("v_pk_add_f32 %s, %s, %s" % (vr(sm + 2, 2), vr(sm + 2, 2), vr(pa, 2)))
        g.e("v_pk_add_f32 %s, %s, %s" % (vr(sm, 2), vr(sm, 2), vr(sm + 2, 2)))
        g.e("v_add_f32 %s, %s, %s" % (vr(sm), vr(sm), vr(sm + 1)))
        g.e("v_mov_b32 %s, %s" % (vr(sm + 1), vr(sm)))
        g.e("s_nop 1")
        g.e("v_permlane32_swap_b32 %s, %s" % (vr(sm), vr(sm + 1)))
        g.e("v_add_f32 %s, %s, %s" % (vr(sm), vr(sm), vr(sm + 1)))
        g.e("v_mov_b32 %s, %s" % (vr(sm + 1), vr(sm)))
        g.e("s_nop 1")
        g.e("v_permlane16_swap_b32 %s, %s" % (vr(sm), vr(sm + 1)))
        g.e("v_add_f32 %s, %s, %s" % (vr(sm), vr(sm), vr(sm + 1)))
        g.e("v_rcp_f32 %s, %s" % (vr(sm), vr(sm)))
        g.e("s_nop 0")
        g.e("v_mov_b32 %s, %s" % (vr(sm + 1), vr(sm)))
        for p in range(34):
            a = base + 2 * p
            g.e("v_pk_mul_f32 %s, %s, %s" % (vr(a, 2), vr(a, 2), vr(sm, 2)))
        for ti in range(17):
            a = base + 4 * ti
            g.e("v_cvt_pk_bf16_f32 %s, %s, %s" % (vr(a), vr(a), vr(a + 1)))
            g.e("v_cvt_pk_bf16_f32 %s, %s, %s" % (vr(a + 1), vr(a + 2), vr(a + 3)))
    for j in range(9):
        a = SA + 8 * j
        if j < 8:
            g.e("v_mov_b32 %s, %s" % (vr(a + 2), vr(a + 4)))
            g.e("v_mov_b32 %s, %s" % (vr(a + 3), vr(a + 5)))
        else:
            g.e("v_mov_b32 %s, 0" % vr(a + 2))
            g.e("v_mov_b32 %s, 0" % vr(a + 3))
    for j in range(9):
        a = SB + 8 * j
        g.e("v_mov_b32 %s, %s" % (vr(a + 2), vr(a)))
        g.e("v_mov_b32 %s, %s" % (vr(a + 3), vr(a + 1)))
        if j > 0:
            g.e("v_mov_b32 %s, %s" % (vr(a), vr(a - 4)))
            g.e("v_mov_b32 %s, %s" % (vr(a + 1), vr(a - 3)))
        else:
            g.e("v_mov_b32 %s, 0" % vr(a))
            g.e("v_mov_b32 %s, 0" % vr(a + 1))
    g.e("s_nop 1")
    for n in range(18):
        j, d = n // 2, n % 2
        if n + 6 < 18:
            vread((n + 6) // 2, (n + 6) % 2)
        g.need(ltags=[("v", n)])
        vreg = VF + 4 * (n % 8)
        for grp in range(2):
            o = OA + 8 * grp + 4 * d
            pf = (SA if grp == 0 else SB) + 8 * j
            cin = "0" if j == 0 else vr(o, 4)
            g.e("v_mfma_f32_16x16x32_bf16 %s, %s, %s, %s" % (vr(o, 4), vr(vreg, 4), vr(pf, 4), cin))
    g.e("s_mul_i32 %s, %s, %d" % (sr(sT), sr(sT + 5), NKB))
    g.e("s_add_u32 %s, %s, %s" % (sr(sT), sr(sT), sr(sHd)))
    g.e("s_lshl_b32 %s, %s, 10" % (sr(sT), sr(sT)))
    g.e("s_add_u32 %s, %s, %d" % (sr(sT + 1), sr(sT), NKB * 1024))
    g.e("s_nop 7")
    for grp in range(2):
        o = OA + 8 * grp
        for k in range(4):
            g.e("v_cvt_pk_bf16_f32 %s, %s, %s" % (vr(TM + 4 * grp + k), vr(o + 2 * k), vr(o + 2 * k + 1)))
        g.e("buffer_store_dwordx4 %s, %s, %s, %s offen" % (vr(TM + 4 * grp, 4), vr(vL16), sr(SRD, 4), sr(sT + grp)))
    stamp_end(g)
    g.e("s_endpgm")
    g.label("K2_END")
    g.e("s_endpgm")
    return name

def gen_k3(g):
    name = "k3_gemm2_kernel"
    kstart(g, name)
    g.lq = []; g.vq = []
    NST = 72
    RING = int(os.environ.get("RING", "6"))
    WLDS = 98304
    sWS, sWo, sWd, sOut = 4, 6, 8, 10
    sRB, sCB, sW, sWM, sWN, sT = 12, 13, 14, 15, 16, 17
    sXb, sWb = 24, 26
    sXm0, sWm0 = 28, 29
    SRDO = 32
    SRD = 36
    g.e("s_cmp_ge_u32 s2, 256")
    g.e("s_cbranch_scc1 K3_END")
    stamp_begin(g)
    g.e("s_load_dwordx2 %s, s[0:1], 80" % sr(sWS, 2))
    g.e("s_load_dwordx2 %s, s[0:1], 16" % sr(sWo, 2))
    g.e("s_load_dwordx2 %s, s[0:1], 48" % sr(sWd, 2))
    g.e("s_load_dwordx2 %s, s[0:1], 64" % sr(sOut, 2))
    g.e("s_and_b32 %s, s2, 7" % sr(sT))
    g.e("s_lshr_b32 %s, s2, 3" % sr(sT + 1))
    g.e("s_lshr_b32 %s, %s, 1" % (sr(sRB), sr(sT)))
    g.e("s_lshl_b32 %s, %s, 2" % (sr(sRB), sr(sRB)))
    g.e("s_and_b32 %s, %s, 3" % (sr(sT + 2), sr(sT + 1)))
    g.e("s_add_u32 %s, %s, %s" % (sr(sRB), sr(sRB), sr(sT + 2)))
    g.e("s_and_b32 %s, %s, 1" % (sr(sCB), sr(sT)))
    g.e("s_lshl_b32 %s, %s, 3" % (sr(sCB), sr(sCB)))
    g.e("s_lshr_b32 %s, %s, 2" % (sr(sT + 2), sr(sT + 1)))
    g.e("s_add_u32 %s, %s, %s" % (sr(sCB), sr(sCB), sr(sT + 2)))
    g.e("v_lshrrev_b32 v1, 6, v0")
    g.e("v_and_b32 v0, 63, v0")
    g.e("v_readfirstlane_b32 %s, v1" % sr(sW))
    g.e("s_and_b32 %s, %s, 1" % (sr(sWM), sr(sW)))
    g.e("s_lshr_b32 %s, %s, 1" % (sr(sWN), sr(sW)))
    vXo = 2
    vWo = 4
    vXrd = 6
    vWrd = 8
    vG = 10
    vOo = 14
    t0, t1, t2, t3, t4 = 16, 17, 18, 19, 20
    XF = 24
    WF = 72
    ACA = 96
    ACB = 128
    TM = 24
    g.e("s_lshl_b32 %s, %s, 3" % (sr(sT), sr(sRB)))
    g.e("s_lshl_b32 %s, %s, 1" % (sr(sT + 1), sr(sW)))
    g.e("s_add_u32 %s, %s, %s" % (sr(sT), sr(sT), sr(sT + 1)))
    g.e("s_mul_i32 %s, %s, %d" % (sr(sT), sr(sT), NKB * 1024))
    g.e("v_lshlrev_b32 %s, 4, v0" % vr(t0))
    g.e("v_add_u32 %s, %s, %s" % (vr(vXo), sr(sT), vr(t0)))
    g.e("v_add_u32 %s, %d, %s" % (vr(vXo + 1), NKB * 1024, vr(vXo)))
    g.e("s_lshl_b32 %s, %s, 13" % (sr(sT), sr(sWM)))
    g.e("v_add_u32 %s, %s, %s" % (vr(vXrd), sr(sT), vr(t0)))
    g.e("v_add_u32 %s, %d, %s" % (vr(vXrd + 1), 3 * 16384, vr(vXrd)))
    g.e("v_lshrrev_b32 %s, 3, v0" % vr(t1))
    g.e("v_and_b32 %s, 6, %s" % (vr(t2), vr(t1)))
    g.e("v_and_b32 %s, 7, v0" % vr(t3))
    g.e("v_xor_b32 %s, %s, %s" % (vr(t3), vr(t3), vr(t2)))
    g.e("s_lshl_b32 %s, %s, 4" % (sr(sT), sr(sW)))
    g.e("v_add_u32 %s, %s, %s" % (vr(t1), sr(sT), vr(t1)))
    g.e("v_lshlrev_b32 %s, 11, %s" % (vr(t1), vr(t1)))
    g.e("v_lshl_add_u32 %s, %s, 4, %s" % (vr(t1), vr(t3), vr(t1)))
    g.e("s_lshl_b32 %s, %s, 7" % (sr(sT), sr(sCB)))
    g.e("v_add_u32 %s, %s, %s" % (vr(vWo), sr(sT), vr(t1)))
    g.e("v_add_u32 %s, %d, %s" % (vr(vWo + 1), 8 * 2048, vr(vWo)))
    g.e("v_and_b32 %s, 15, v0" % vr(t0))
    g.e("v_lshrrev_b32 %s, 4, v0" % vr(t1))
    g.e("v_lshrrev_b32 %s, 2, %s" % (vr(t2), vr(t0)))
    g.e("v_lshl_add_u32 %s, %s, 2, %s" % (vr(t2), vr(t1), vr(t2)))
    g.e("v_bfe_u32 %s, %s, 1, 2" % (vr(t3), vr(t2)))
    g.e("v_lshlrev_b32 %s, 7, %s" % (vr(t2), vr(t2)))
    g.e("v_and_b32 %s, 3, %s" % (vr(t4), vr(t0)))
    g.e("v_lshl_add_u32 %s, %s, 3, %s" % (vr(t2), vr(t4), vr(t2)))
    g.e("v_add_u32 %s, %d, %s" % (vr(t2), WLDS, vr(t2)))
    for tl in range(2):
        g.e("s_lshl_b32 %s, %s, 1" % (sr(sT), sr(sWN)))
        g.e("s_add_u32 %s, %s, %d" % (sr(sT), sr(sT), tl))
        g.e("v_xor_b32 %s, %s, %s" % (vr(t4), sr(sT), vr(t3)))
        g.e("v_lshl_add_u32 %s, %s, 5, %s" % (vr(vWrd + tl), vr(t4), vr(t2)))
    g.e("s_lshl_b32 %s, %s, 7" % (sr(sT), sr(sRB)))
    g.e("s_lshl_b32 %s, %s, 6" % (sr(sT + 1), sr(sWM)))
    g.e("s_add_u32 %s, %s, %s" % (sr(sT), sr(sT), sr(sT + 1)))
    g.e("v_add_u32 %s, %s, %s" % (vr(t2), sr(sT), vr(t0)))
    g.e("v_lshlrev_b32 %s, 2, %s" % (vr(t4), vr(t2)))
    g.e("v_lshlrev_b32 %s, 11, %s" % (vr(t2), vr(t2)))
    g.e("v_lshl_add_u32 %s, %s, 3, %s" % (vr(t2), vr(t1), vr(t2)))
    g.e("s_lshl_b32 %s, %s, 7" % (sr(sT), sr(sCB)))
    g.e("s_lshl_b32 %s, %s, 6" % (sr(sT + 1), sr(sWN)))
    g.e("s_add_u32 %s, %s, %s" % (sr(sT), sr(sT), sr(sT + 1)))
    g.e("v_add_u32 %s, %s, %s" % (vr(vOo), sr(sT), vr(t2)))
    g.e("s_lshl_b32 %s, %s, 12" % (sr(sXm0), sr(sW)))
    g.e("s_lshl_b32 %s, %s, 11" % (sr(sWm0), sr(sW)))
    g.e("s_add_u32 %s, %s, %d" % (sr(sWm0), sr(sWm0), WLDS))
    g.e("s_waitcnt lgkmcnt(0)")
    g.e("s_mov_b32 %s, %s" % (sr(SRD), sr(sWS)))
    g.e("s_and_b32 %s, %s, 0xffff" % (sr(SRD + 1), sr(sWS + 1)))
    g.e("s_mov_b32 %s, 0x%x" % (sr(SRD + 2), WS_BYTES))
    g.e("s_mov_b32 %s, 0x00020000" % sr(SRD + 3))
    g.e("s_mov_b32 %s, %s" % (sr(SRDO), sr(sOut)))
    g.e("s_and_b32 %s, %s, 0xffff" % (sr(SRDO + 1), sr(sOut + 1)))
    g.e("s_mov_b32 %s, 0x400000" % sr(SRDO + 2))
    g.e("s_mov_b32 %s, 0x00020000" % sr(SRDO + 3))
    g.e("s_mov_b64 %s, %s" % (sr(sXb, 2), sr(sWS, 2)))
    g.e("s_mov_b64 %s, %s" % (sr(sWb, 2), sr(sWo, 2)))
    g.e("s_mov_b32 %s, 0x%x" % (sr(sT), G_OFF))
    for rg in range(4):
        g.vm("buffer_load_dword %s, %s, %s, %s offen offset:%d" % (vr(vG + rg), vr(t4), sr(SRD, 4), sr(sT), rg * 64), ("g",))

    def dma(st, idx):
        slot = st % RING
        tag = ("dma", st)
        if idx < 4:
            m, kb = idx // 2, idx % 2
            g.e("s_add_u32 m0, %s, %d" % (sr(sXm0), slot * 16384 + m * 2048))
            g.e("s_nop 0")
            g.vm("global_load_lds_dwordx4 %s, %s offset:%d" % (vr(vXo + m), sr(sXb, 2), kb * 1024), tag)
            if idx == 3 and "3samek" not in ABL:
                g.e("s_add_u32 %s, %s, 2048" % (sr(sXb), sr(sXb)))
                g.e("s_addc_u32 %s, %s, 0" % (sr(sXb + 1), sr(sXb + 1)))
        else:
            i = idx - 4
            g.e("s_add_u32 m0, %s, %d" % (sr(sWm0), slot * 8192 + i * 1024))
            g.e("s_nop 0")
            g.vm("global_load_lds_dwordx4 %s, %s" % (vr(vWo + i), sr(sWb, 2)), tag)
            if i == 1 and "3samek" not in ABL:
                if st == 15:
                    g.e("s_mov_b64 %s, %s" % (sr(sWb, 2), sr(sWd, 2)))
                else:
                    g.e("s_add_u32 %s, %s, %d" % (sr(sWb), sr(sWb), 64 * 2048))
                    g.e("s_addc_u32 %s, %s, 0" % (sr(sWb + 1), sr(sWb + 1)))
    def fread_items(n):
        st, kb = divmod(n, 2)
        slot = st % RING
        xb = vXrd + (slot // 3)
        it = []
        for tl in range(2):
            reg = WF + 8 * (n % 3) + 4 * tl
            off = slot * 8192 + kb * 4096
            it.append(lambda reg=reg, off=off, tl=tl: g.lds("ds_read_b64_tr_b16 %s, %s offset:%d" % (vr(reg, 2), vr(vWrd + tl), off), ("f", n)))
            it.append(lambda reg=reg, off=off, tl=tl: g.lds("ds_read_b64_tr_b16 %s, %s offset:%d" % (vr(reg + 2, 2), vr(vWrd + tl), off + 2048), ("f", n)))
        for rg in range(4):
            it.append(lambda rg=rg: g.lds("ds_read_b128 %s, %s offset:%d" % (vr(XF + 16 * (n % 3) + 4 * rg, 4), vr(xb), (slot % 3) * 16384 + (rg * 2 + kb) * 1024), ("f", n)))
        return it
    stamp(g)
    for st in range(RING - 1):
        for idx in range(6):
            dma(st, idx)
    g.need(vtags=[("dma", 0)])
    g.e("s_barrier")
    stamp(g)
    for it in fread_items(0) + fread_items(1):
        it()
    for s in range(NST):
        g.c("---- stage %d" % s)
        if s + 1 < NST:
            g.need(vtags=[("dma", s + 1)])
            if "3nobar" not in ABL:
                g.e("s_barrier")
        for kb in range(2):
            n = 2 * s + kb
            fill = []
            if n + 2 < 2 * NST and "3nolds" not in ABL:
                fill += fread_items(n + 2)
            dm = []
            if s + RING - 1 < NST and "3nodma" not in ABL:
                for idx in range(3 * kb, 3 * kb + 3):
                    dm.append(lambda idx=idx: dma(s + RING - 1, idx))
            order = []
            while fill or dm:
                if dm: order.append(dm.pop(0))
                for _ in range(3):
                    if fill: order.append(fill.pop(0))
            g.need(ltags=[("f", n)])
            AC = ACA if n < 32 else ACB
            first = (n == 0 or n == 32)
            k = 0
            for rg in range(4):
                for tl in range(2):
                    a = AC + (rg * 2 + tl) * 4
                    cin = "0" if first else vr(a, 4)
                    if not ("3nomfma" in ABL and n not in (0, 32)):
                        g.e("v_mfma_f32_16x16x32_bf16 %s, %s, %s, %s" % (vr(a, 4), vr(WF + 8 * (n % 3) + 4 * tl, 4), vr(XF + 16 * (n % 3) + 4 * rg, 4), cin))
                    k += 1
                    left = 8 - k + 1
                    cnt = (len(order) + left - 1) // left
                    for _ in range(cnt):
                        if order: order.pop(0)()
    g.c("---- epilogue")
    stamp(g)
    g.e("s_nop 7")
    for rg in range(4):
        gp, op = TM, TM + 2
        g.e("v_mov_b32 %s, %s" % (vr(gp), vr(vG + rg)))
        g.e("v_mov_b32 %s, %s" % (vr(gp + 1), vr(vG + rg)))
        g.e("v_sub_f32 %s, 1.0, %s" % (vr(op), vr(vG + rg)))
        g.e("v_sub_f32 %s, 1.0, %s" % (vr(op + 1), vr(vG + rg)))
        round_pair(g, op, TM + 4)
        for tl in range(2):
            ob = TM + 8 + 2 * ((rg * 2 + tl) % 4)
            for pr in range(2):
                a = ACA + (rg * 2 + tl) * 4 + 2 * pr
                b = ACB + (rg * 2 + tl) * 4 + 2 * pr
                round_pair(g, a, TM + 5)
                round_pair(g, b, TM + 6)
                g.e("v_pk_mul_f32 %s, %s, %s" % (vr(a, 2), vr(a, 2), vr(gp, 2)))
                g.e("v_pk_mul_f32 %s, %s, %s" % (vr(b, 2), vr(b, 2), vr(op, 2)))
                round_pair(g, a, TM + 5)
                round_pair(g, b, TM + 6)
                g.e("v_pk_add_f32 %s, %s, %s" % (vr(a, 2), vr(a, 2), vr(b, 2)))
                g.e("v_cvt_pk_bf16_f32 %s, %s, %s" % (vr(ob + pr), vr(a), vr(a + 1)))
            g.e("s_mov_b32 %s, %d" % (sr(sT), rg * 16 * 2048))
            g.e("buffer_store_dwordx2 %s, %s, %s, %s offen offset:%d" % (vr(ob, 2), vr(vOo), sr(SRDO, 4), sr(sT), tl * 32))
    stamp_end(g)
    g.label("K3_END")
    g.e("s_endpgm")
    return name


def gen_k23(g):
    name = "k23_kernel"
    kstart(g, name)
    g.lq = []; g.vq = []
    NST = 72
    WR = 8
    PW = WR - 1
    XQ = 10
    XD = XQ - 1
    WLDS = 65536
    NBAR = NST
    sWS, sWo, sWd, sOut, sX, sGW, sDbg = 4, 6, 8, 10, 12, 14, 16
    sW, sT = 18, 19
    SRD, SRDO = 28, 32
    g.e("s_cmp_ge_u32 s2, 256")
    g.e("s_cbranch_scc1 K23_END")
    stamp_begin(g)
    g.e("s_load_dwordx2 %s, s[0:1], 80" % sr(sWS, 2))
    g.e("s_load_dwordx2 %s, s[0:1], 16" % sr(sWo, 2))
    g.e("s_load_dwordx2 %s, s[0:1], 48" % sr(sWd, 2))
    g.e("s_load_dwordx2 %s, s[0:1], 64" % sr(sOut, 2))
    g.e("s_load_dwordx2 %s, s[0:1], 0" % sr(sX, 2))
    g.e("s_load_dwordx2 %s, s[0:1], 56" % sr(sGW, 2))
    g.e("s_load_dwordx2 %s, s[0:1], 72" % sr(sDbg, 2))
    g.e("v_lshrrev_b32 v1, 6, v0")
    g.e("v_and_b32 v0, 63, v0")
    g.e("v_readfirstlane_b32 %s, v1" % sr(sW))
    g.e("s_waitcnt lgkmcnt(0)")
    g.e("s_mov_b32 %s, %s" % (sr(SRD), sr(sWS)))
    g.e("s_and_b32 %s, %s, 0xffff" % (sr(SRD + 1), sr(sWS + 1)))
    g.e("s_mov_b32 %s, 0x%x" % (sr(SRD + 2), WS_BYTES))
    g.e("s_mov_b32 %s, 0x00020000" % sr(SRD + 3))
    g.e("s_cmp_ge_u32 %s, 4" % sr(sW))
    g.e("s_cbranch_scc1 K23_ATT")
    sRB, sCB = 36, 37
    sXk, sWb = 38, 40
    sWm0 = 42
    sMo = 44
    vL16g, vWo, vWrd, vG, vOo, vPoll, vZ, vRd, vGo = 1, 2, 4, 8, 10, 12, 11, 14, 15
    vWr = 96
    WF, XR, BF, AC = 16, 48, 96, 128
    XS = 12
    XD = 11
    NL = 36
    NLB = 28
    WSL = 4
    WLDS = 98304
    t0, t1, t2, t3, t4 = 48, 49, 50, 51, 52
    sRw = 52
    g.e("s_mov_b32 %s, %s" % (sr(SRDO), sr(sOut)))
    g.e("s_and_b32 %s, %s, 0xffff" % (sr(SRDO + 1), sr(sOut + 1)))
    g.e("s_mov_b32 %s, 0x400000" % sr(SRDO + 2))
    g.e("s_mov_b32 %s, 0x00020000" % sr(SRDO + 3))
    g.e("s_and_b32 %s, s2, 7" % sr(sT))
    g.e("s_lshr_b32 %s, s2, 3" % sr(sT + 1))
    g.e("s_lshr_b32 %s, %s, 1" % (sr(sRB), sr(sT)))
    g.e("s_lshl_b32 %s, %s, 2" % (sr(sRB), sr(sRB)))
    g.e("s_and_b32 %s, %s, 3" % (sr(sT + 2), sr(sT + 1)))
    g.e("s_add_u32 %s, %s, %s" % (sr(sRB), sr(sRB), sr(sT + 2)))
    g.e("s_and_b32 %s, %s, 1" % (sr(sCB), sr(sT)))
    g.e("s_lshl_b32 %s, %s, 3" % (sr(sCB), sr(sCB)))
    g.e("s_lshr_b32 %s, %s, 2" % (sr(sT + 2), sr(sT + 1)))
    g.e("s_add_u32 %s, %s, %s" % (sr(sCB), sr(sCB), sr(sT + 2)))
    g.e("v_lshlrev_b32 %s, 4, v0" % vr(vL16g))
    g.e("s_lshl_b32 %s, %s, 3" % (sr(sT), sr(sRB)))
    g.e("s_lshl_b32 %s, %s, 1" % (sr(sT + 1), sr(sW)))
    for m in range(8):
        g.e("s_add_u32 %s, %s, %d" % (sr(sT + 2), sr(sT + 1), m))
        g.e("s_and_b32 %s, %s, 7" % (sr(sT + 2), sr(sT + 2)))
        g.e("s_add_u32 %s, %s, %s" % (sr(sT + 2), sr(sT + 2), sr(sT)))
        g.e("s_mul_i32 %s, %s, %d" % (sr(sMo + m), sr(sT + 2), NKB * 1024))
    g.e("s_lshl_b32 %s, %s, 10" % (sr(sXk), sr(sW)))
    g.e("s_add_u32 %s, %s, %d" % (sr(sXk), sr(sXk), 32 * 1024))
    g.e("v_lshrrev_b32 %s, 3, v0" % vr(t1))
    g.e("v_and_b32 %s, 6, %s" % (vr(t2), vr(t1)))
    g.e("v_and_b32 %s, 7, v0" % vr(t3))
    g.e("v_xor_b32 %s, %s, %s" % (vr(t3), vr(t3), vr(t2)))
    g.e("s_lshl_b32 %s, %s, 5" % (sr(sT), sr(sW)))
    g.e("v_add_u32 %s, %s, %s" % (vr(t1), sr(sT), vr(t1)))
    g.e("v_lshlrev_b32 %s, 11, %s" % (vr(t1), vr(t1)))
    g.e("v_lshl_add_u32 %s, %s, 4, %s" % (vr(t1), vr(t3), vr(t1)))
    g.e("s_lshl_b32 %s, %s, 7" % (sr(sT), sr(sCB)))
    g.e("v_add_u32 %s, %s, %s" % (vr(vWo), sr(sT), vr(t1)))
    g.e("v_add_u32 %s, %d, %s" % (vr(vWo + 1), 16 * 2048, vr(vWo)))
    g.e("s_lshl_b32 %s, %s, 14" % (sr(sWm0), sr(sW)))
    g.e("s_add_u32 %s, %s, %d" % (sr(sWm0), sr(sWm0), WLDS))
    g.e("v_and_b32 %s, 15, v0" % vr(t0))
    g.e("v_lshrrev_b32 %s, 4, v0" % vr(t1))
    g.e("v_lshrrev_b32 %s, 2, %s" % (vr(t2), vr(t0)))
    g.e("v_lshl_add_u32 %s, %s, 2, %s" % (vr(t2), vr(t1), vr(t2)))
    g.e("v_bfe_u32 %s, %s, 1, 2" % (vr(t3), vr(t2)))
    g.e("v_lshlrev_b32 %s, 7, %s" % (vr(t2), vr(t2)))
    g.e("v_and_b32 %s, 3, %s" % (vr(t4), vr(t0)))
    g.e("v_lshl_add_u32 %s, %s, 3, %s" % (vr(t2), vr(t4), vr(t2)))
    g.e("v_add_u32 %s, %s, %s" % (vr(t2), sr(sWm0), vr(t2)))
    for tl in range(4):
        g.e("v_xor_b32 %s, %d, %s" % (vr(t4), tl, vr(t3)))
        g.e("v_lshl_add_u32 %s, %s, 5, %s" % (vr(vWrd + tl), vr(t4), vr(t2)))
    g.e("s_lshl_b32 %s, %s, 7" % (sr(sT), sr(sRB)))
    g.e("s_lshl_b32 %s, %s, 5" % (sr(sT + 1), sr(sW)))
    g.e("s_add_u32 %s, %s, %s" % (sr(sT), sr(sT), sr(sT + 1)))
    g.e("v_add_u32 %s, %s, %s" % (vr(t2), sr(sT), vr(t0)))
    g.e("v_lshlrev_b32 %s, 2, %s" % (vr(vGo), vr(t2)))
    g.e("v_lshlrev_b32 %s, 11, %s" % (vr(t2), vr(t2)))
    g.e("v_lshl_add_u32 %s, %s, 3, %s" % (vr(t2), vr(t1), vr(t2)))
    g.e("s_lshl_b32 %s, %s, 7" % (sr(sT), sr(sCB)))
    g.e("v_add_u32 %s, %s, %s" % (vr(vOo), sr(sT), vr(t2)))
    g.e("s_lshl_b32 %s, %s, 9" % (sr(sT), sr(sRB)))
    g.e("s_add_u32 %s, %s, 0x%x" % (sr(sT), sr(sT), FLAG_OFF))
    g.e("v_lshlrev_b32 %s, 3, v0" % vr(vZ))
    g.e("v_add_u32 %s, %s, %s" % (vr(vZ), sr(sT), vr(vZ)))
    for j in range(1, 4):
        g.e("s_add_u32 %s, %s, %d" % (sr(sT), sr(sW), j))
        g.e("s_and_b32 %s, %s, 3" % (sr(sT), sr(sT)))
        g.e("s_mul_i32 %s, %s, 3" % (sr(sT), sr(sT)))
        g.e("s_add_u32 %s, %s, %d" % (sr(sT), sr(sT), j - 1))
        g.e("s_lshl_b32 %s, %s, 13" % (sr(sRw + j - 1), sr(sT)))
    g.e("s_mul_i32 %s, %s, %d" % (sr(sT), sr(sW), 3 * 8192))
    g.e("v_add_u32 %s, %s, %s" % (vr(vRd), sr(sT), vr(vL16g)))
    sWb2 = 56
    g.e("s_mov_b64 %s, %s" % (sr(sWb, 2), sr(sWd, 2)))
    g.e("s_add_u32 %s, %s, %d" % (sr(sWb2), sr(sWd), 8 * 2048))
    g.e("s_addc_u32 %s, %s, 0" % (sr(sWb2 + 1), sr(sWd + 1)))

    def wdma(i, j):
        slot = i % WSL
        g.e("s_add_u32 m0, %s, %d" % (sr(sWm0), slot * 4096 + j * 1024))
        g.e("s_nop 0")
        g.vm("global_load_lds_dwordx4 %s, %s" % (vr(vWo + (j >> 1)), sr(sWb2 if j & 1 else sWb, 2)), ("w", i))
        if j == 3:
            if i == NLB - 1:
                g.e("s_mov_b64 %s, %s" % (sr(sWb, 2), sr(sWo, 2)))
                g.e("s_add_u32 %s, %s, %d" % (sr(sWb2), sr(sWo), 8 * 2048))
                g.e("s_addc_u32 %s, %s, 0" % (sr(sWb2 + 1), sr(sWo + 1)))
            else:
                for sb in (sWb, sWb2):
                    g.e("s_add_u32 %s, %s, %d" % (sr(sb), sr(sb), 128 * 2048))
                    g.e("s_addc_u32 %s, %s, 0" % (sr(sb + 1), sr(sb + 1)))
    def xload(f):
        i, m = divmod(f, 8)
        reg = XR + 4 * (f % XS)
        fl = " sc1" if i >= NLB else ""
        tmp = sT + (f % 2)
        g.e("s_add_u32 %s, %s, %s" % (sr(tmp), sr(sXk), sr(sMo + m)))
        g.vm("buffer_load_dwordx4 %s, %s, %s, %s offen%s" % (vr(reg, 4), vr(vL16g), sr(SRD, 4), sr(tmp), fl), ("x", f))
        if m == 7:
            if i == NLB - 1:
                g.e("s_lshl_b32 %s, %s, 10" % (sr(sXk), sr(sW)))
            else:
                g.e("s_add_u32 %s, %s, 4096" % (sr(sXk), sr(sXk)))
    def wread_items(i):
        off = (i % WSL) * 4096
        it = [lambda: g.need(vtags=[("w", i)])]
        for tl in range(4):
            reg = WF + 16 * (i % 2) + 4 * tl
            it.append(lambda reg=reg, tl=tl: g.lds("ds_read_b64_tr_b16 %s, %s offset:%d" % (vr(reg, 2), vr(vWrd + tl), off), ("f", i)))
            it.append(lambda reg=reg, tl=tl: g.lds("ds_read_b64_tr_b16 %s, %s offset:%d" % (vr(reg + 2, 2), vr(vWrd + tl), off + 2048), ("f", i)))
        return it
    def pollcheck():
        lok, lsl = g.newlab("K23_OK"), g.newlab("K23_SL")
        def chk():
            g.e("v_cmp_ne_u32 vcc, 0, %s" % vr(vPoll))
            g.e("v_cmp_ne_u32 %s, 0, %s" % (sr(sT + 3, 2), vr(vPoll + 1)))
            g.e("s_and_b64 %s, %s, vcc" % (sr(sT + 3, 2), sr(sT + 3, 2)))
            g.e("s_cmp_eq_u64 %s, -1" % sr(sT + 3, 2))
        g.need(vtags=[("poll",)])
        chk()
        g.e("s_cbranch_scc1 %s" % lok)
        g.e("s_mov_b32 %s, 0" % sr(sT + 2))
        g.label(lsl)
        g.e("s_add_u32 %s, %s, 1" % (sr(sT + 2), sr(sT + 2)))
        g.e("s_cmp_ge_u32 %s, 0x40000" % sr(sT + 2))
        g.e("s_cbranch_scc1 %s" % lok)
        g.e("s_sleep 4")
        g.e("global_load_dwordx2 %s, %s, %s sc1" % (vr(vPoll, 2), vr(vZ), sr(sWS, 2)))
        g.e("s_waitcnt vmcnt(0)")
        chk()
        g.e("s_cbranch_scc0 %s" % lsl)
        g.label(lok)
        g.e("s_mov_b32 %s, 0x%x" % (sr(sT + 2), G_OFF))
        for rg in range(2):
            g.vm("buffer_load_dword %s, %s, %s, %s offen offset:%d sc1" % (vr(vG + rg), vr(vGo), sr(SRD, 4), sr(sT + 2), rg * 64), ("g",))
    def acc(m, tl): return AC + (m * 4 + tl) * 4
    def reduce_to(dst, first_bar):
        g.e("s_nop 7")
        if first_bar:
            g.e("s_barrier")
        v = WF + 16 * 0
        for j in range(1, 4):
            g.e("v_add_u32 %s, %s, %s" % (vr(vPoll), sr(sRw + j - 1), vr(vL16g)))
            for r in range(2):
                for tl in range(4):
                    g.lds("ds_write_b128 %s, %s offset:%d" % (vr(vPoll), vr(acc(2 * j + r, tl), 4), r * 4096 + tl * 1024), ("rw",))
        g.e("s_waitcnt lgkmcnt(0)"); g.lq = []
        g.e("s_barrier")
        for j in range(1, 4):
            for r in range(2):
                for tl in range(4):
                    g.lds("ds_read_b128 %s, %s offset:%d" % (vr(acc(2 * j + r, tl), 4), vr(vRd), (j - 1) * 8192 + r * 4096 + tl * 1024), ("rr", j))
        for j in range(1, 4):
            g.need(ltags=[("rr", j)])
            for r in range(2):
                for tl in range(4):
                    for p in range(2):
                        d = dst + (r * 4 + tl) * 4 + 2 * p
                        s0 = acc(r, tl) + 2 * p if j == 1 else d
                        g.e("v_pk_add_f32 %s, %s, %s" % (vr(d, 2), vr(s0, 2), vr(acc(2 * j + r, tl) + 2 * p, 2)))
    stamp(g)
    for i in range(WSL - 1):
        for j in range(4):
            wdma(i, j)
        if i == 0:
            for f in range(XD):
                xload(f)
    for it in wread_items(0):
        it()
    stamp(g)
    for i in range(NL):
        g.c("---- local kblk %d" % i)
        if i in (8, 16, 24):
            stamp(g)
        if i == int(os.environ.get("KVBAR", "0")):
            g.e("s_barrier")
        if i == NLB - 3:
            g.vm("global_load_dwordx2 %s, %s, %s sc1" % (vr(vPoll, 2), vr(vZ), sr(sWS, 2)), ("poll",))
        if i == NLB:
            stamp(g)
            reduce_to(BF, True)
            stamp(g)
        order = []
        if i + WSL - 1 < NL:
            for j in range(4):
                order.append(lambda i=i, j=j: wdma(i + WSL - 1, j))
        late = wread_items(i + 1) if i + 1 < NL else []
        g.need(ltags=[("f", i)])
        first = (i == 0 or i == NLB)
        for m in range(8):
            f = i * 8 + m
            if f + XD == NLB * 8:
                pollcheck()
            if f + XD < NL * 8:
                xload(f + XD)
            g.need(vtags=[("x", f)])
            if m == 4:
                order += late
            for tl in range(4):
                a_ = acc(m, tl)
                cin = "0" if first else vr(a_, 4)
                g.e("v_mfma_f32_16x16x32_bf16 %s, %s, %s, %s" % (vr(a_, 4), vr(WF + 16 * (i % 2) + 4 * tl, 4), vr(XR + 4 * (f % XS), 4), cin))
                if order:
                    order.pop(0)()
        while order:
            order.pop(0)()
    g.c("---- epilogue")
    stamp(g)
    AF = XR
    reduce_to(AF, True)
    g.need(vtags=[("g",)])
    TM = WF
    for rg in range(2):
        gp, op = TM, TM + 2
        g.e("v_mov_b32 %s, %s" % (vr(gp), vr(vG + rg)))
        g.e("v_mov_b32 %s, %s" % (vr(gp + 1), vr(vG + rg)))
        g.e("v_sub_f32 %s, 1.0, %s" % (vr(op), vr(vG + rg)))
        g.e("v_sub_f32 %s, 1.0, %s" % (vr(op + 1), vr(vG + rg)))
        round_pair(g, op)
        g.e("s_mov_b32 %s, %d" % (sr(sT + rg), rg * 16 * 2048))
        for tl in range(4):
            ob = TM + 8 + 2 * tl
            for pr in range(2):
                a_ = AF + (rg * 4 + tl) * 4 + 2 * pr
                b_ = BF + (rg * 4 + tl) * 4 + 2 * pr
                round_pair(g, a_)
                round_pair(g, b_)
                g.e("v_pk_mul_f32 %s, %s, %s" % (vr(a_, 2), vr(a_, 2), vr(gp, 2)))
                g.e("v_pk_mul_f32 %s, %s, %s" % (vr(b_, 2), vr(b_, 2), vr(op, 2)))
                round_pair(g, a_)
                round_pair(g, b_)
                g.e("v_pk_add_f32 %s, %s, %s" % (vr(a_, 2), vr(a_, 2), vr(b_, 2)))
                g.e("v_cvt_pk_bf16_f32 %s, %s, %s" % (vr(ob + pr), vr(a_), vr(a_ + 1)))
            g.e("buffer_store_dwordx2 %s, %s, %s, %s offen offset:%d" % (vr(ob, 2), vr(vOo), sr(SRDO, 4), sr(sT + rg), tl * 32))
    stamp_end(g, 2)
    g.e("s_endpgm")

    g.label("K23_ATT")
    a = Gen()
    a.nlab = 1000
    def mul2(d, x, y, ys=False):
        for k in range(2):
            if ys:
                a.e("v_mul_f32 %s, %s, %s" % (vr(d + k), sr(y), vr(x + k)))
            else:
                a.e("v_mul_f32 %s, %s, %s" % (vr(d + k), vr(x + k), vr(y + k)))
    def add2(d, x, y):
        for k in range(2):
            a.e("v_add_f32 %s, %s, %s" % (vr(d + k), vr(x + k), vr(y + k)))
    a.nst = 1
    sHd, sMB, sAW = 36, 37, 38
    sMk = 40
    sNneg = 48
    sC, sL2 = 50, 52
    sM0u = 54
    vL16 = 2
    QF = 4
    vI, vQ4, vNI, vKrd, vVrd, vOne, vCnt = 20, 21, 22, 23, 24, 25, 26
    KF, SA, SB, VF, OA, TM = 28, 60, 128, 196, 228, 244
    a.e("s_setprio %s" % os.environ.get("APRIO", "2"))
    a.e("s_sub_u32 %s, %s, 4" % (sr(sAW), sr(sW)))
    a.e("s_and_b32 %s, s2, 7" % sr(sHd))
    a.e("s_lshr_b32 %s, s2, 3" % sr(sT))
    a.e("s_and_b32 %s, %s, 3" % (sr(sT), sr(sT)))
    a.e("s_lshl_b32 %s, %s, 3" % (sr(sT), sr(sT)))
    a.e("s_add_u32 %s, %s, %s" % (sr(sHd), sr(sHd), sr(sT)))
    a.e("s_lshr_b32 %s, s2, 5" % sr(sMB))
    a.e("s_lshl_b32 %s, %s, 4" % (sr(sMB), sr(sMB)))
    a.e("v_lshlrev_b32 %s, 4, v0" % vr(vL16))
    a.e("s_add_u32 %s, %s, %s" % (sr(sT), sr(sMB), sr(sAW)))
    a.e("s_sub_u32 %s, %s, 16" % (sr(sT), sr(sT)))
    a.e("s_lshl_b32 %s, %s, 17" % (sr(sT + 1), sr(sHd)))
    a.e("s_add_u32 %s, %s, 0x%x" % (sr(sT + 1), sr(sT + 1), QKV_OFF + 32 * 128 * 1024))
    a.e("s_lshl_b32 %s, %s, 10" % (sr(sT + 4), sr(sAW)))
    for i in range(8):
        a.e("s_add_u32 %s, %s, %d" % (sr(sT + 2), sr(sT), 4 * i))
        a.e("s_max_i32 %s, %s, 0" % (sr(sT + 2), sr(sT + 2)))
        a.e("s_lshl_b32 %s, %s, 10" % (sr(sT + 2), sr(sT + 2)))
        a.e("s_add_u32 %s, %s, %s" % (sr(sT + 2), sr(sT + 2), sr(sT + 1)))
        a.e("s_add_u32 %s, %s, 0x%x" % (sr(sT + 3), sr(sT + 2), 32 * 128 * 1024))
        a.e("s_add_u32 m0, %s, %d" % (sr(sT + 4), 4096 * i))
        a.e("s_nop 0")
        a.e("buffer_load_dwordx4 %s, %s, %s offen lds" % (vr(vL16), sr(SRD, 4), sr(sT + 2)))
        a.e("s_add_u32 m0, %s, %d" % (sr(sT + 4), 32768 + 4096 * i))
        a.e("s_nop 0")
        a.e("buffer_load_dwordx4 %s, %s, %s offen lds" % (vr(vL16), sr(SRD, 4), sr(sT + 3)))
    a.e("s_lshl_b32 %s, %s, 1" % (sr(sT), sr(sAW)))
    a.e("s_add_u32 %s, %s, %s" % (sr(sM0u), sr(sMB), sr(sT)))
    a.e("s_lshl_b32 %s, %s, 7" % (sr(sT + 2), sr(sHd)))
    a.e("s_add_u32 %s, %s, %s" % (sr(sT + 2), sr(sT + 2), sr(sM0u)))
    a.e("s_lshl_b32 %s, %s, 10" % (sr(sT + 2), sr(sT + 2)))
    a.e("s_add_u32 %s, %s, 0x%x" % (sr(sT + 2), sr(sT + 2), QKV_OFF))
    a.e("s_add_u32 %s, %s, 8192" % (sr(sT + 3), sr(sT + 2)))
    for it in range(2):
        for grp in range(2):
            a.e("buffer_load_dwordx4 %s, %s, %s, %s offen offset:%d" % (vr(QF + 8 * it + 4 * grp, 4), vr(vL16), sr(SRD, 4), sr(sT + 2 + it), 1024 * grp))
    sRow = 56
    a.e("s_lshl_b32 %s, %s, 4" % (sr(sRow), sr(sMB)))
    a.e("s_lshl_b32 %s, %s, 2" % (sr(sT), sr(sHd)))
    a.e("s_add_u32 %s, %s, %s" % (sr(sRow), sr(sRow), sr(sT)))
    a.e("s_add_u32 %s, %s, %s" % (sr(sRow), sr(sRow), sr(sAW)))
    a.e("s_lshl_b32 %s, %s, 11" % (sr(sT), sr(sRow)))
    a.e("v_lshlrev_b32 v3, 5, v0")
    a.e("v_add_u32 v28, %s, v3" % sr(sT))
    a.e("v_add_u32 v29, 0x40000, v28")
    a.e("global_load_dwordx4 v[60:63], v3, %s" % sr(sGW, 2))
    a.e("global_load_dwordx4 v[64:67], v3, %s offset:16" % sr(sGW, 2))
    a.e("global_load_dwordx4 v[68:71], v28, %s" % sr(sX, 2))
    a.e("global_load_dwordx4 v[72:75], v28, %s offset:16" % sr(sX, 2))
    a.e("global_load_dwordx4 v[76:79], v29, %s" % sr(sX, 2))
    a.e("global_load_dwordx4 v[80:83], v29, %s offset:16" % sr(sX, 2))
    a.e("v_and_b32 %s, 15, v0" % vr(vI))
    a.e("v_lshrrev_b32 %s, 4, v0" % vr(vQ4))
    a.e("v_lshlrev_b32 v30, 2, %s" % vr(vQ4))
    for r in range(4):
        a.e("v_add_u32 v31, %d, v30" % r)
        a.e("v_cmp_gt_u32 %s, v31, %s" % (sr(sMk + 2 * r, 2), vr(vI)))
    a.e("v_mov_b32 %s, 0xff800000" % vr(vNI))
    a.e("v_mov_b32 %s, 1" % vr(vOne))
    a.e("s_lshl_b32 %s, %s, 11" % (sr(sT), sr(sAW)))
    a.e("v_add_u32 %s, %s, %s" % (vr(vKrd), sr(sT), vr(vL16)))
    a.e("v_and_b32 v31, 3, %s" % vr(vI))
    a.e("v_lshlrev_b32 v31, 4, v31")
    a.e("v_add_u32 v31, v31, v30")
    a.e("v_lshrrev_b32 v32, 2, %s" % vr(vI))
    a.e("v_add_u32 v31, v31, v32")
    a.e("v_lshlrev_b32 v31, 4, v31")
    a.e("s_add_u32 %s, %s, 32768" % (sr(sT), sr(sT)))
    a.e("v_add_u32 %s, %s, v31" % (vr(vVrd), sr(sT)))
    a.e("s_mov_b32 %s, 0x%x" % (sr(sC), f2u(32 ** -0.5)))
    a.e("s_mov_b32 %s, 0x%x" % (sr(sC + 1), f2u(32 ** -0.5)))
    a.e("s_mov_b32 %s, 0x%x" % (sr(sL2), f2u(LOG2E)))
    a.e("s_mov_b32 %s, 0x%x" % (sr(sL2 + 1), f2u(LOG2E)))
    a.e("s_lshl_b32 %s, %s, 2" % (sr(sT), sr(sRow)))
    a.e("s_add_u32 %s, %s, 0x%x" % (sr(sT), sr(sT), FLAG_OFF))
    a.e("v_mov_b32 %s, %s" % (vr(vCnt), sr(sT)))
    a.e("s_waitcnt vmcnt(0)")
    a.raw(";BAR")
    stamp(a)
    for it in range(2):
        xb = 68 + 8 * it
        for k in range(8):
            r = 84 + 4 * (k % 2)
            a.e("v_lshlrev_b32 %s, 16, %s" % (vr(r), vr(60 + k)))
            a.e("v_and_b32 %s, 0xffff0000, %s" % (vr(r + 1), vr(60 + k)))
            a.e("v_lshlrev_b32 %s, 16, %s" % (vr(r + 2), vr(xb + k)))
            a.e("v_and_b32 %s, 0xffff0000, %s" % (vr(r + 3), vr(xb + k)))
            mul2(r, r, r + 2)
            round_pair(a, r)
            if k == 0:
                a.e("v_mov_b32 v92, %s" % vr(r))
                a.e("v_mov_b32 v93, %s" % vr(r + 1))
            else:
                add2(92, 92, r)
        a.e("v_add_f32 v92, v92, v93")
        for dp in ("quad_perm:[1,0,3,2]", "quad_perm:[2,3,0,1]", "row_half_mirror", "row_mirror"):
            a.e("s_nop 1")
            a.e("v_add_f32_dpp v92, v92, v92 %s row_mask:0xf bank_mask:0xf" % dp)
        for pl in ("32", "16"):
            a.e("v_mov_b32 v93, v92")
            a.e("s_nop 1")
            a.e("v_permlane%s_swap_b32 v92, v93" % pl)
            a.e("v_add_f32 v92, v92, v93")
        a.e("v_cvt_pk_bf16_f32 v92, 0, v92")
        a.e("v_mul_f32 v92, 0x%x, v92" % f2u(-LOG2E))
        a.e("v_exp_f32 v92, v92")
        a.e("s_nop 0")
        a.e("v_add_f32 v92, 1.0, v92")
        a.e("v_rcp_f32 v92, v92")
        a.e("s_lshl_b32 %s, %s, 2" % (sr(sT), sr(sRow)))
        a.e("v_cvt_pk_bf16_f32 %s, 0, v92" % vr(94 + it))
        a.e("v_mov_b32 v93, 0")
        a.e("s_add_u32 %s, %s, 0x%x" % (sr(sT), sr(sT), G_OFF + 512 * it))
        a.e("s_mov_b64 exec, 1")
        a.e("buffer_store_dword %s, v93, %s, %s offen sc1" % (vr(94 + it), sr(SRD, 4), sr(sT)))
        a.e("s_mov_b64 exec, -1")
    def signal(it):
        a.e("s_waitcnt vmcnt(0)")
        a.e("s_mov_b64 exec, 1")
        a.e("global_store_dword %s, %s, %s offset:%d sc1" % (vr(vCnt), vr(vOne), sr(sWS, 2), 512 * it))
        a.e("s_mov_b64 exec, -1")
    def S(grp, t):
        return SA + 4 * t if grp == 0 else SB + 4 * (t - 1)
    for it in range(2):
        a.lq = []
        stamp(a)
        qf = QF + 8 * it
        lo = 8192 * it
        a.e("s_sub_u32 %s, 16, %s" % (sr(sNneg), sr(sM0u)))
        a.e("s_max_i32 %s, %s, 0" % (sr(sNneg), sr(sNneg)))
        def kread(t):
            a.lds("ds_read_b128 %s, %s offset:%d" % (vr(KF + 4 * (t % 8), 4), vr(vKrd), lo + t * 1024), ("k", t))
        for t in range(6):
            kread(t)
        for t in range(18):
            if t + 6 < 18:
                kread(t + 6)
            a.need(ltags=[("k", t)])
            kreg = KF + 4 * (t % 8)
            if t <= 16:
                a.e("v_mfma_f32_16x16x32_bf16 %s, %s, %s, 0" % (vr(S(0, t), 4), vr(kreg, 4), vr(qf, 4)))
            if t >= 1:
                a.e("v_mfma_f32_16x16x32_bf16 %s, %s, %s, 0" % (vr(S(1, t), 4), vr(kreg, 4), vr(qf + 4, 4)))
        def vread(j, d):
            n = j * 2 + d
            reg = VF + 4 * (n % 8)
            a.lds("ds_read_b64_tr_b16 %s, %s offset:%d" % (vr(reg, 2), vr(vVrd), lo + (2 * j) * 1024 + 8 * d), ("v", n))
            a.lds("ds_read_b64_tr_b16 %s, %s offset:%d" % (vr(reg + 2, 2), vr(vVrd), lo + (2 * j + 1) * 1024 + 8 * d), ("v", n))
        for n in range(6):
            vread(n // 2, n % 2)
        a.e("s_nop 7")
        for (grp, t, gt) in ((0, 0, True), (0, 16, False), (1, 1, True), (1, 17, False)):
            for r in range(4):
                x = S(grp, t) + r
                if gt:
                    a.e("v_cndmask_b32 %s, %s, %s, %s" % (vr(x), vr(vNI), vr(x), sr(sMk + 2 * r, 2)))
                else:
                    a.e("v_cndmask_b32 %s, %s, %s, %s" % (vr(x), vr(x), vr(vNI), sr(sMk + 2 * r, 2)))
        a.raw(";NOBAR")
        lneg = "K23_NEG%d" % it
        for t in range(16):
            a.e("s_cmp_le_u32 %s, %d" % (sr(sNneg), t))
            a.e("s_cbranch_scc1 %s" % lneg)
            for r in range(4):
                a.e("v_mov_b32 %s, %s" % (vr(S(0, t) + r), vr(vNI)))
            if t >= 1:
                for r in range(4):
                    a.e("v_mov_b32 %s, %s" % (vr(S(1, t) + r), vr(vNI)))
        a.label(lneg)
        a.raw(";BAROK")
        stamp(a)
        if it == 1:
            signal(0)
            stamp(a)
        for grp in range(2):
            base = SA if grp == 0 else SB
            m0_, m1_ = TM, TM + 1
            a.e("v_max3_f32 %s, %s, %s, %s" % (vr(m0_), vr(base), vr(base + 1), vr(base + 2)))
            a.e("v_max3_f32 %s, %s, %s, %s" % (vr(m1_), vr(base + 3), vr(base + 4), vr(base + 5)))
            i = 6; tog = 0
            while i + 1 < 68:
                mm = m0_ if tog == 0 else m1_
                a.e("v_max3_f32 %s, %s, %s, %s" % (vr(mm), vr(mm), vr(base + i), vr(base + i + 1)))
                i += 2; tog ^= 1
            a.e("v_max_f32 %s, %s, %s" % (vr(m0_), vr(m0_), vr(m1_)))
            for pl in ("32", "16"):
                a.e("v_mov_b32 %s, %s" % (vr(m1_), vr(m0_)))
                a.e("s_nop 1")
                a.e("v_permlane%s_swap_b32 %s, %s" % (pl, vr(m0_), vr(m1_)))
                a.e("v_max_f32 %s, %s, %s" % (vr(m0_), vr(m0_), vr(m1_)))
            a.e("v_cvt_pk_bf16_f32 %s, 0, %s" % (vr(m0_), vr(m0_)))
            a.e("v_mul_f32 %s, %s, %s" % (vr(m0_), sr(sC), vr(m0_)))
            a.e("v_cvt_pk_bf16_f32 %s, 0, %s" % (vr(m0_), vr(m0_)))
            a.e("v_mul_f32 %s, %s, %s" % (vr(m0_), sr(sL2), vr(m0_)))
            a.e("v_sub_f32 %s, 0, %s" % (vr(m0_), vr(m0_)))
            a.e("v_mov_b32 %s, %s" % (vr(m1_), vr(m0_)))
            sm = TM + 4
            for p in range(34):
                x = base + 2 * p
                round_pair(a, x)
                mul2(x, x, sC, True)
                round_pair(a, x)
                a.e("v_fma_f32 %s, %s, %s, %s" % (vr(x), vr(x), sr(sL2), vr(m0_)))
                a.e("v_fma_f32 %s, %s, %s, %s" % (vr(x + 1), vr(x + 1), sr(sL2), vr(m0_)))
                a.e("v_exp_f32 %s, %s" % (vr(x), vr(x)))
                a.e("v_exp_f32 %s, %s" % (vr(x + 1), vr(x + 1)))
                if p >= 1:
                    pa = base + 2 * (p - 1)
                    ss = sm + 2 * ((p - 1) % 2)
                    if p - 1 < 2:
                        a.e("v_mov_b32 %s, %s" % (vr(ss), vr(pa)))
                        a.e("v_mov_b32 %s, %s" % (vr(ss + 1), vr(pa + 1)))
                    else:
                        add2(ss, ss, pa)
            a.e("s_nop 0")
            pa = base + 2 * 33
            add2(sm + 2, sm + 2, pa)
            add2(sm, sm, sm + 2)
            a.e("v_add_f32 %s, %s, %s" % (vr(sm), vr(sm), vr(sm + 1)))
            for pl in ("32", "16"):
                a.e("v_mov_b32 %s, %s" % (vr(sm + 1), vr(sm)))
                a.e("s_nop 1")
                a.e("v_permlane%s_swap_b32 %s, %s" % (pl, vr(sm), vr(sm + 1)))
                a.e("v_add_f32 %s, %s, %s" % (vr(sm), vr(sm), vr(sm + 1)))
            a.e("v_rcp_f32 %s, %s" % (vr(sm), vr(sm)))
            a.e("s_nop 0")
            a.e("v_mov_b32 %s, %s" % (vr(sm + 1), vr(sm)))
            for ti in (range(17) if grp == 0 else range(16, -1, -1)):
                x = base + 4 * ti
                mul2(x, x, sm)
                mul2(x + 2, x + 2, sm)
                t = ti if grp == 0 else ti + 1
                j, h = t // 2, t % 2
                dst = base + 8 * j + 2 * h
                a.e("v_cvt_pk_bf16_f32 %s, %s, %s" % (vr(TM + 8), vr(x), vr(x + 1)))
                a.e("v_cvt_pk_bf16_f32 %s, %s, %s" % (vr(dst + 1), vr(x + 2), vr(x + 3)))
                a.e("v_mov_b32 %s, %s" % (vr(dst), vr(TM + 8)))
            if grp == 0:
                a.e("v_mov_b32 %s, 0" % vr(SA + 66))
                a.e("v_mov_b32 %s, 0" % vr(SA + 67))
        a.e("v_mov_b32 %s, 0" % vr(SB))
        a.e("v_mov_b32 %s, 0" % vr(SB + 1))
        stamp(a)
        a.e("s_nop 1")
        for n in range(18):
            j, d = n // 2, n % 2
            if n + 6 < 18:
                vread((n + 6) // 2, (n + 6) % 2)
            a.need(ltags=[("v", n)])
            vreg = VF + 4 * (n % 8)
            for grp in range(2):
                o = OA + 8 * grp + 4 * d
                pf = (SA if grp == 0 else SB) + 8 * j
                cin = "0" if j == 0 else vr(o, 4)
                a.e("v_mfma_f32_16x16x32_bf16 %s, %s, %s, %s" % (vr(o, 4), vr(vreg, 4), vr(pf, 4), cin))
        a.e("s_mul_i32 %s, %s, %d" % (sr(sT), sr(sM0u), NKB))
        a.e("s_add_u32 %s, %s, %s" % (sr(sT), sr(sT), sr(sHd)))
        a.e("s_lshl_b32 %s, %s, 10" % (sr(sT), sr(sT)))
        a.e("s_add_u32 %s, %s, %d" % (sr(sT + 1), sr(sT), NKB * 1024))
        a.e("s_nop 7")
        for grp in range(2):
            o = OA + 8 * grp
            for k in range(4):
                a.e("v_cvt_pk_bf16_f32 %s, %s, %s" % (vr(TM + 4 * grp + k), vr(o + 2 * k), vr(o + 2 * k + 1)))
            a.e("buffer_store_dwordx4 %s, %s, %s, %s offen sc1" % (vr(TM + 4 * grp, 4), vr(vL16), sr(SRD, 4), sr(sT + grp)))
        a.e("s_add_u32 %s, %s, 8" % (sr(sM0u), sr(sM0u)))
    stamp(a)
    signal(1)
    if STAMP:
        a.raw(";NOBAR")
        stamp_end(a, 2, 1)
        a.raw(";BAROK")
    PACE = int(os.environ.get("PACE", "64"))
    out = []; nb = 0; cnt = 0; pace = False; ok = True
    for l in a.lines:
        if l == ";BAR":
            out.append("    s_barrier"); nb += 1; cnt = 0; continue
        if l == ";PACE": pace = True; cnt = 0; continue
        if l == ";NOBAR": ok = False; continue
        if l == ";BAROK": ok = True; continue
        out.append(l)
        if pace and not l.endswith(":"):
            cnt += 1
            if ok and cnt >= PACE:
                out.append("    s_barrier"); nb += 1; cnt = 0
    sys.stderr.write("attention barriers used %d of %d\n" % (nb, NBAR))
    assert nb == 1
    g.lines += out
    g.label("K23_END")
    g.e("s_endpgm")
    return name

def main():
    hdr = []
    ref = open("cdna_kernels/%s.s.ref" % NAME).read().splitlines()
    for l in ref:
        if l.startswith(";") and "@launch" not in l:
            hdr.append(l)
        elif not l.startswith(";"):
            break
    hdr.append("; @launch kernel=k1_gemm1_kernel grid=(256,1,1) block=(512,1,1) lds=147456")
    hdr.append("; @launch kernel=k23_kernel grid=(256,1,1) block=(512,1,1) lds=163840")
    g = Gen()
    g.raw('.amdgcn_target "amdgcn-amd-amdhsa--gfx950"')
    g.raw(".text")
    k1 = gen_k1(g)
    k23 = gen_k23(g)
    out = "\n".join(hdr) + "\n" + "\n".join(g.lines) + "\n"
    sg = lambda n: 102 if STAMP else n
    out += kd(k1, 256, sg(64), 256)
    out += kd(k23, 256, sg(64), 256)
    path = sys.argv[1] if len(sys.argv) > 1 else "cdna_kernels/%s.s" % NAME
    open(path, "w").write(out)

if __name__ == "__main__":
    main()
```

```python
import sys, struct

NAME = "gated_mix__sliding_block__geglu_ffn__prompt"

A2_OFF = 0
NKB = 144
QKV_OFF = 0x1400000
G_OFF = 0x2400000
FLAG_OFF = 0x2404000
WS_BYTES = 0x10000000

def f2u(x):
    return struct.unpack("<I", struct.pack("<f", x))[0]

class Gen:
    def __init__(self):
        self.lines = []
        self.lq = []
        self.vq = []
        self.nlab = 0
    def e(self, s):
        self.lines.append("    " + s)
    def c(self, s):
        self.lines.append("    ; " + s)
    def label(self, s):
        self.lines.append(s + ":")
    def newlab(self, p="L"):
        self.nlab += 1
        return "%s_%d" % (p, self.nlab)
    def raw(self, s):
        self.lines.append(s)
    def lds(self, s, tag):
        self.e(s); self.lq.append(tag)
    def vm(self, s, tag):
        self.e(s); self.vq.append(tag)
    def _need(self, q, tags):
        last = -1
        for i, t in enumerate(q):
            if t in tags:
                last = i
        if last < 0:
            return None
        return len(q) - 1 - last, last
    def need(self, ltags=(), vtags=()):
        w = []
        r = self._need(self.lq, set(ltags))
        if r is not None:
            n, last = r
            if n > 15:
                n = 15
                last = len(self.lq) - 1 - 15
            self.lq = self.lq[last + 1:]
            w.append("lgkmcnt(%d)" % n)
        r = self._need(self.vq, set(vtags))
        if r is not None:
            n, last = r
            if n > 63:
                n = 63
                last = len(self.vq) - 1 - 63
            self.vq = self.vq[last + 1:]
            w.insert(0, "vmcnt(%d)" % n)
        if w:
            self.e("s_waitcnt " + " ".join(w))
    def waitall(self):
        self.e("s_waitcnt vmcnt(0) lgkmcnt(0)")
        self.lq = []; self.vq = []

def vr(a, n=1):
    return "v%d" % a if n == 1 else "v[%d:%d]" % (a, a + n - 1)
def sr(a, n=1):
    return "s%d" % a if n == 1 else "s[%d:%d]" % (a, a + n - 1)

def kd(name, vgpr, sgpr, accum):
    return """.section .rodata,"a"
.p2align 6
.amdhsa_kernel %s
  .amdhsa_next_free_vgpr %d
  .amdhsa_next_free_sgpr %d
  .amdhsa_accum_offset %d
  .amdhsa_group_segment_fixed_size 0
  .amdhsa_kernarg_size 88
  .amdhsa_user_sgpr_count 2
  .amdhsa_user_sgpr_kernarg_segment_ptr 1
  .amdhsa_system_sgpr_workgroup_id_x 1
.end_amdhsa_kernel
.text
""" % (name, vgpr, sgpr, accum)

import os
STAMP = bool(os.environ.get("STAMP"))
ABL = os.environ.get("ABL", "").split(",")
FUSED = os.environ.get("FUSED", "0") == "1"
STF = os.environ.get("STF", "sc1" if FUSED else "")
def stamp_begin(g):
    if not STAMP: return
    g.nst = 1
    g.e("s_memtime s[74:75]")
    g.e("s_memrealtime s[98:99]")
def stamp(g, force=False):
    if not STAMP: return
    if g.nst >= 10 and not force: return
    g.e("s_memtime s[%d:%d]" % (74 + 2 * g.nst, 75 + 2 * g.nst))
    g.nst += 1
def stamp_end(g, tmpv=0, slot=0):
    if not STAMP: return
    lab = g.newlab("STP")
    tmpv = 32
    stamp(g, True)
    g.e("s_waitcnt vmcnt(0) lgkmcnt(0)")
    stamp(g, True)
    g.e("s_memrealtime s[100:101]")
    g.e("s_load_dwordx2 s[72:73], s[0:1], 80")
    g.e("s_waitcnt lgkmcnt(0)")
    g.e("s_mov_b64 exec, 1")
    g.e("v_mov_b32 v60, s98")
    g.e("v_mov_b32 v61, s100")
    g.e("s_lshl_b32 s3, s2, 3")
    g.e("s_add_u32 s3, s3, 0x%x" % (0x2410000 + 0x1000 * g.kidx + 0x800 * slot))
    g.e("v_mov_b32 v62, s3")
    g.e("global_store_dwordx2 v62, v[60:61], s[72:73]")
    g.e("s_cmp_lg_u32 s2, %s" % os.environ.get("STWG", "0"))
    g.e("s_cbranch_scc1 %s" % lab)
    g.e("s_mov_b64 exec, 1")
    g.e("s_sub_u32 s100, s100, s98")
    g.e("v_mov_b32 %s, s100" % vr(tmpv))
    for i in range(1, g.nst):
        g.e("s_sub_u32 s100, s%d, s74" % (74 + 2 * i))
        g.e("v_mov_b32 %s, s100" % vr(tmpv + i))
    g.e("s_load_dwordx2 s[100:101], s[0:1], 72")
    g.e("v_mov_b32 %s, %d" % (vr(tmpv + 15), 256 + 64 * slot))
    g.e("s_waitcnt lgkmcnt(0)")
    for i in range(g.nst):
        g.e("global_store_dword %s, %s, s[100:101] offset:%d" % (vr(tmpv + 15), vr(tmpv + i), 4 * i))
    g.label(lab)

def rtmark(g, sws, idx):
    if not STAMP: return
    g.e("s_memrealtime s[100:101]")
    g.e("s_waitcnt lgkmcnt(0)")
    g.e("s_mov_b64 exec, 1")
    g.e("v_mov_b32 v60, s100")
    g.e("s_lshl_b32 s3, s2, 3")
    g.e("s_add_u32 s3, s3, 0x%x" % (0x2410000 + 0x1000 * idx))
    g.e("v_mov_b32 v62, s3")
    g.e("global_store_dword v62, v60, %s" % sr(sws, 2))
    g.e("s_mov_b64 exec, -1")

def kstart(g, name):
    g.kidx = getattr(g, "kidx", -1) + 1
    g.raw(".globl %s" % name)
    g.raw(".p2align 8")
    g.raw(".type %s,@function" % name)
    g.label(name)

LOG2E = 1.4426950408889634
GK1 = -2.0 * LOG2E * 0.7978845608028654
GK2 = GK1 * 0.044715

def round_pair(g, a, tmp=None):
    g.e("v_cvt_pk_bf16_f32 %s, 0, %s" % (vr(a), vr(a)))
    g.e("v_cvt_pk_bf16_f32 %s, 0, %s" % (vr(a + 1), vr(a + 1)))

def gen_k1(g):
    name = NAME + "_kernel" if FUSED else "k1_gemm1_kernel"
    kstart(g, name)
    NST = 32
    D = 4
    WSL = 8
    XBASE = 81920
    vXo = 2
    vWp = 4
    vWs = 10
    vXrd = 13
    vWrd = 14
    vL16 = 24
    XF = 32
    WF = 64
    ACC = 96
    def acc(t, rg): return ACC + (t * 4 + rg) * 4
    sX, sQ, sG, sU, sWS = 4, 6, 8, 10, 12
    sRB, sCB, sW, sWM, sWN = 14, 15, 16, 17, 18
    sXm0, sWm0, sWm0h = 19, 20, 21
    sN1, sColF, sColQA, sColQB = 22, 23, 24, 25
    sT = 26
    SRD = 40
    g.e("s_cmp_ge_u32 s2, %d" % (0 if "k1empty" in ABL else 256))
    g.e("s_cbranch_scc1 %s" % ("K23_END" if FUSED else "K1_END"))
    stamp_begin(g)
    g.e("s_load_dwordx2 %s, s[0:1], 0" % sr(sX, 2))
    g.e("s_load_dwordx2 %s, s[0:1], 8" % sr(sQ, 2))
    g.e("s_load_dwordx4 %s, s[0:1], 32" % sr(sG, 4))
    g.e("s_load_dwordx2 %s, s[0:1], 80" % sr(sWS, 2))
    g.e("s_load_dwordx2 s[56:57], s[0:1], 16")
    g.e("s_load_dwordx2 s[58:59], s[0:1], 48")
    g.e("s_and_b32 %s, s2, 7" % sr(sT))
    g.e("s_lshr_b32 %s, s2, 3" % sr(sT + 1))
    g.e("s_and_b32 %s, s2, 31" % sr(sCB))
    g.e("s_lshr_b32 %s, %s, 2" % (sr(sRB), sr(sT + 1)))
    g.e("v_lshrrev_b32 v1, 6, v0")
    g.e("v_and_b32 v0, 63, v0")
    g.e("v_readfirstlane_b32 %s, v1" % sr(sW))
    g.e("s_and_b32 %s, %s, 3" % (sr(sWM), sr(sW)))
    g.e("s_lshr_b32 %s, %s, 2" % (sr(sWN), sr(sW)))
    g.e("v_lshlrev_b32 %s, 4, v0" % vr(vL16))
    if os.environ.get("CPF"):
        g.e("s_getpc_b64 s[26:27]")
        g.e("s_lshl_b32 s28, %s, 13" % sr(sW))
        g.e("v_lshlrev_b32 v30, 7, v0")
        g.e("v_add_u32 v30, s28, v30")
        g.e("global_load_dword v31, v30, s[26:27]")
    g.e("s_lshl_b32 %s, %s, 11" % (sr(sXm0), sr(sW)))
    g.e("s_add_u32 %s, %s, %d" % (sr(sXm0), sr(sXm0), XBASE))
    g.e("s_lshl_b32 %s, %s, 10" % (sr(sWm0), sr(sW)))
    g.e("s_lshl_b32 %s, %s, 9" % (sr(sWm0h), sr(sW)))
    g.e("s_mul_i32 %s, %s, 160" % (sr(sColF), sr(sCB)))
    g.e("s_mul_i32 %s, %s, 320" % (sr(sColQA), sr(sCB)))
    g.e("s_sub_u32 %s, %s, %d" % (sr(sColQA), sr(sColQA), 320 * 23 - 192))
    g.e("s_add_u32 %s, %s, 160" % (sr(sColQB), sr(sColQA)))
    g.e("s_mov_b32 %s, 0" % sr(sN1))
    g.e("s_cmp_eq_u32 %s, 22" % sr(sCB))
    g.e("s_cselect_b32 %s, -64, %s" % (sr(sColQA), sr(sColQA)))
    g.e("s_cselect_b32 %s, 32, %s" % (sr(sColQB), sr(sColQB)))
    g.e("s_cselect_b32 %s, 8, %s" % (sr(sN1), sr(sN1)))
    g.e("s_cmp_lt_u32 %s, 22" % sr(sCB))
    g.e("s_cselect_b32 %s, 20, %s" % (sr(sN1), sr(sN1)))
    t0, t1, t2, t3, t4, t5, t6, t7, t8, t9 = range(XF, XF + 10)
    g.e("v_lshrrev_b32 %s, 2, v0" % vr(t0))
    g.e("v_lshrrev_b32 %s, 4, v0" % vr(t1))
    g.e("v_and_b32 %s, 2, %s" % (vr(t1), vr(t1)))
    g.e("v_and_b32 %s, 3, v0" % vr(t2))
    g.e("v_xor_b32 %s, %s, %s" % (vr(t2), vr(t2), vr(t1)))
    g.e("s_lshl_b32 %s, %s, 8" % (sr(sT), sr(sRB)))
    g.e("s_lshl_b32 %s, %s, 5" % (sr(sT + 1), sr(sW)))
    g.e("s_add_u32 %s, %s, %s" % (sr(sT), sr(sT), sr(sT + 1)))
    g.e("v_add_u32 %s, %s, %s" % (vr(t0), sr(sT), vr(t0)))
    g.e("v_lshlrev_b32 %s, 11, %s" % (vr(t0), vr(t0)))
    g.e("v_lshl_add_u32 %s, %s, 4, %s" % (vr(vXo), vr(t2), vr(t0)))
    g.e("v_add_u32 %s, 0x8000, %s" % (vr(vXo + 1), vr(vXo)))
    g.e("s_waitcnt lgkmcnt(0)")
    for st in range(3):
        for idx in range(2):
            g.e("s_add_u32 m0, %s, %d" % (sr(sXm0), (st % 4) * 16384 + idx * 1024 - st * 64))
            g.e("s_nop 0")
            g.vm("global_load_lds_dwordx4 %s, %s offset:%d" % (vr(vXo + idx), sr(sX, 2), st * 64), ("dma", st))
    g.e("s_waitcnt lgkmcnt(0)")
    for n in range(3):
        if n < 2:
            g.e("s_lshl_b32 %s, %s, 6" % (sr(sT), sr(sW)))
            g.e("s_add_u32 %s, %s, %d" % (sr(sT), sr(sT), 512 * n))
            g.e("v_add_u32 %s, %s, v0" % (vr(t0), sr(sT)))
        else:
            g.e("s_lshl_b32 %s, %s, 5" % (sr(sT), sr(sW)))
            g.e("s_add_u32 %s, %s, 1024" % (sr(sT), sr(sT)))
            g.e("v_and_b32 %s, 31, v0" % vr(t0))
            g.e("v_add_u32 %s, %s, %s" % (vr(t0), sr(sT), vr(t0)))
        g.e("v_mul_u32_u24 %s, 52429, %s" % (vr(t1), vr(t0)))
        g.e("v_lshrrev_b32 %s, 21, %s" % (vr(t1), vr(t1)))
        g.e("v_mul_u32_u24 %s, 40, %s" % (vr(t2), vr(t1)))
        g.e("v_sub_u32 %s, %s, %s" % (vr(t2), vr(t0), vr(t2)))
        g.e("v_bfe_u32 %s, %s, 1, 1" % (vr(t3), vr(t1)))
        g.e("v_lshrrev_b32 %s, 2, %s" % (vr(t4), vr(t1)))
        g.e("v_and_b32 %s, 2, %s" % (vr(t4), vr(t4)))
        g.e("v_or_b32 %s, %s, %s" % (vr(t3), vr(t3), vr(t4)))
        g.e("v_lshlrev_b32 %s, 1, %s" % (vr(t3), vr(t3)))
        g.e("v_xor_b32 %s, %s, %s" % (vr(t2), vr(t2), vr(t3)))
        g.e("v_cmp_le_u32 vcc, 20, %s" % vr(t2))
        g.e("v_subrev_u32 %s, 20, %s" % (vr(t3), vr(t2)))
        g.e("s_nop 1")
        g.e("v_cndmask_b32 %s, %s, %s, vcc" % (vr(t2), vr(t2), vr(t3)))
        g.e("v_mov_b32 %s, %s" % (vr(t3), sr(sG)))
        g.e("v_mov_b32 %s, %s" % (vr(t4), sr(sU)))
        g.e("v_cndmask_b32 %s, %s, %s, vcc" % (vr(t3), vr(t3), vr(t4)))
        g.e("v_mov_b32 %s, %s" % (vr(t4), sr(sG + 1)))
        g.e("v_mov_b32 %s, %s" % (vr(t5), sr(sU + 1)))
        g.e("v_cndmask_b32 %s, %s, %s, vcc" % (vr(t4), vr(t4), vr(t5)))
        g.e("v_mov_b32 %s, %s" % (vr(t5), sr(sColQA)))
        g.e("v_mov_b32 %s, %s" % (vr(t6), sr(sColQB)))
        g.e("v_cndmask_b32 %s, %s, %s, vcc" % (vr(t5), vr(t5), vr(t6)))
        g.e("v_cmp_gt_u32 vcc, %s, %s" % (sr(sN1), vr(t2)))
        g.e("v_mov_b32 %s, %s" % (vr(t6), sr(sQ)))
        g.e("v_mov_b32 %s, %s" % (vr(t7), sr(sQ + 1)))
        g.e("v_cndmask_b32 %s, %s, %s, vcc" % (vr(t3), vr(t6), vr(t3)))
        g.e("v_cndmask_b32 %s, %s, %s, vcc" % (vr(t4), vr(t7), vr(t4)))
        g.e("v_mov_b32 %s, %s" % (vr(t6), sr(sColF)))
        g.e("v_cndmask_b32 %s, %s, %s, vcc" % (vr(t5), vr(t5), vr(t6)))
        g.e("v_mov_b32 %s, 6144" % vr(t6))
        g.e("v_mov_b32 %s, 7168" % vr(t7))
        g.e("v_cndmask_b32 %s, %s, %s, vcc" % (vr(t6), vr(t6), vr(t7)))
        g.e("v_lshl_add_u32 %s, %s, 3, %s" % (vr(t5), vr(t2), vr(t5)))
        g.e("v_mul_u32_u24 %s, %s, %s" % (vr(t7), vr(t1), vr(t6)))
        g.e("v_lshl_add_u32 %s, %s, 1, %s" % (vr(t7), vr(t5), vr(t7)))
        g.e("v_add_co_u32 %s, vcc, %s, %s" % (vr(vWp + 2 * n), vr(t3), vr(t7)))
        g.e("v_addc_co_u32 %s, vcc, 0, %s, vcc" % (vr(vWp + 2 * n + 1), vr(t4)))
        g.e("v_lshlrev_b32 %s, 5, %s" % (vr(vWs + n), vr(t6)))
        if n < 2:
            g.e("s_add_u32 m0, %s, %d" % (sr(sWm0), n * 8192))
            g.e("s_nop 0")
            g.vm("global_load_lds_dwordx4 %s, off" % vr(vWp + 2 * n, 2), ("dma", 0))
        else:
            g.e("s_add_u32 m0, %s, %d" % (sr(sWm0h), 16384))
            g.e("s_mov_b32 exec_hi, 0")
            g.vm("global_load_lds_dwordx4 %s, off" % vr(vWp + 2 * n, 2), ("dma", 0))
            g.e("s_mov_b32 exec_hi, -1")
        g.e("v_add_co_u32 %s, vcc, %s, %s" % (vr(vWp + 2 * n), vr(vWp + 2 * n), vr(vWs + n)))
        g.e("v_addc_co_u32 %s, vcc, 0, %s, vcc" % (vr(vWp + 2 * n + 1), vr(vWp + 2 * n + 1)))
    g.e("v_and_b32 %s, 15, v0" % vr(t0))
    g.e("v_lshrrev_b32 %s, 4, v0" % vr(t1))
    g.e("v_lshrrev_b32 %s, 2, %s" % (vr(t2), vr(t0)))
    g.e("v_and_b32 %s, 2, %s" % (vr(t2), vr(t2)))
    g.e("v_xor_b32 %s, %s, %s" % (vr(t2), vr(t2), vr(t1)))
    g.e("v_lshlrev_b32 %s, 6, %s" % (vr(t3), vr(t0)))
    g.e("v_lshl_add_u32 %s, %s, 4, %s" % (vr(t3), vr(t2), vr(t3)))
    g.e("s_lshl_b32 %s, %s, 12" % (sr(sT), sr(sWM)))
    g.e("s_add_u32 %s, %s, %d" % (sr(sT), sr(sT), XBASE))
    g.e("v_add_u32 %s, %s, %s" % (vr(vXrd), sr(sT), vr(t3)))
    g.e("v_lshrrev_b32 %s, 2, %s" % (vr(t2), vr(t0)))
    g.e("v_lshl_add_u32 %s, %s, 3, %s" % (vr(t2), vr(t1), vr(t2)))
    g.e("v_mul_u32_u24 %s, 640, %s" % (vr(t2), vr(t2)))
    g.e("v_and_b32 %s, 3, %s" % (vr(t3), vr(t0)))
    g.e("v_lshl_add_u32 %s, %s, 3, %s" % (vr(t2), vr(t3), vr(t2)))
    g.e("v_bfe_u32 %s, %s, 3, 1" % (vr(t3), vr(t0)))
    g.e("v_and_b32 %s, 1, %s" % (vr(t4), vr(t1)))
    g.e("v_lshl_or_b32 %s, %s, 1, %s" % (vr(t3), vr(t4), vr(t3)))
    g.e("s_mul_i32 %s, %s, 6" % (sr(sT), sr(sWN)))
    g.e("s_add_u32 %s, %s, 4" % (sr(sT + 1), sr(sWN)))
    for j in range(5):
        for hf in range(2):
            if j < 4:
                g.e("s_add_u32 %s, %s, %d" % (sr(sT + 2), sr(sT), j + 10 * hf))
            else:
                g.e("s_add_u32 %s, %s, %d" % (sr(sT + 2), sr(sT + 1), 10 * hf))
            g.e("v_xor_b32 %s, %s, %s" % (vr(t4), sr(sT + 2), vr(t3)))
            g.e("v_lshl_add_u32 %s, %s, 5, %s" % (vr(vWrd + j + 5 * hf), vr(t4), vr(t2)))
    g.e("s_mov_b32 %s, %s" % (sr(SRD), sr(sWS)))
    g.e("s_and_b32 %s, %s, 0xffff" % (sr(SRD + 1), sr(sWS + 1)))
    g.e("s_mov_b32 %s, 0x%x" % (sr(SRD + 2), WS_BYTES))
    g.e("s_mov_b32 %s, 0x00020000" % sr(SRD + 3))

    TP = int(os.environ.get("TP", "6"))
    sTp, sTi = 60, 66
    if TP:
        g.e("s_lshl_b32 %s, s2, 3" % sr(sT))
        g.e("s_add_u32 %s, %s, %s" % (sr(sT), sr(sT), sr(sW)))
        g.e("s_mul_i32 %s, %s, 3" % (sr(sT), sr(sT)))
        for j in range(3):
            p, ie, io = sTp + 2 * j, sTi + 2 * j, sTi + 2 * j + 1
            l1, l2, l3, le = g.newlab("K1_T"), g.newlab("K1_T"), g.newlab("K1_T"), g.newlab("K1_T")
            g.e("s_add_u32 %s, %s, %d" % (sr(sT + 1), sr(sT), j))
            g.e("s_cmp_ge_u32 %s, 1536" % sr(sT + 1))
            g.e("s_cbranch_scc1 %s" % l1)
            g.e("s_lshl_b32 %s, %s, 7" % (sr(sT + 2), sr(sT + 1)))
            g.e("s_add_u32 %s, %s, %d" % (sr(sT + 2), sr(sT + 2), TP * 32 * 6144))
            g.e("s_add_u32 %s, %s, %s" % (sr(p), sr(sQ), sr(sT + 2)))
            g.e("s_addc_u32 %s, %s, 0" % (sr(p + 1), sr(sQ + 1)))
            g.e("s_mov_b32 %s, %d" % (sr(ie), 32 * 6144))
            g.e("s_mov_b32 %s, %d" % (sr(io), 32 * 6144))
            g.e("s_branch %s" % le)
            g.label(l1)
            g.e("s_cmp_ge_u32 %s, 3328" % sr(sT + 1))
            g.e("s_cbranch_scc1 %s" % l2)
            g.e("s_sub_u32 %s, %s, 1536" % (sr(sT + 2), sr(sT + 1)))
            g.e("s_lshl_b32 %s, %s, 7" % (sr(sT + 2), sr(sT + 2)))
            g.e("s_add_u32 %s, %s, %d" % (sr(sT + 2), sr(sT + 2), TP * 32 * 7168))
            g.e("s_add_u32 %s, %s, %s" % (sr(p), sr(sG), sr(sT + 2)))
            g.e("s_addc_u32 %s, %s, 0" % (sr(p + 1), sr(sG + 1)))
            g.e("s_mov_b32 %s, %d" % (sr(ie), 32 * 7168))
            g.e("s_mov_b32 %s, %d" % (sr(io), 32 * 7168))
            g.e("s_branch %s" % le)
            g.label(l2)
            g.e("s_cmp_ge_u32 %s, 5120" % sr(sT + 1))
            g.e("s_cbranch_scc1 %s" % l3)
            g.e("s_sub_u32 %s, %s, 3328" % (sr(sT + 2), sr(sT + 1)))
            g.e("s_lshl_b32 %s, %s, 7" % (sr(sT + 2), sr(sT + 2)))
            g.e("s_add_u32 %s, %s, %d" % (sr(sT + 2), sr(sT + 2), TP * 32 * 7168))
            g.e("s_add_u32 %s, %s, %s" % (sr(p), sr(sU), sr(sT + 2)))
            g.e("s_addc_u32 %s, %s, 0" % (sr(p + 1), sr(sU + 1)))
            g.e("s_mov_b32 %s, %d" % (sr(ie), 32 * 7168))
            g.e("s_mov_b32 %s, %d" % (sr(io), 32 * 7168))
            g.e("s_branch %s" % le)
            g.label(l3)
            g.e("s_sub_u32 %s, %s, 5120" % (sr(sT + 2), sr(sT + 1)))
            g.e("s_lshl_b32 %s, %s, 12" % (sr(sT + 2), sr(sT + 2)))
            g.e("s_add_u32 %s, %s, %d" % (sr(sT + 2), sr(sT + 2), (TP // 2) * 128))
            g.e("s_add_u32 %s, %s, %s" % (sr(p), sr(sX), sr(sT + 2)))
            g.e("s_addc_u32 %s, %s, 0" % (sr(p + 1), sr(sX + 1)))
            g.e("s_mov_b32 %s, 2048" % sr(ie))
            g.e("s_mov_b32 %s, %d" % (sr(io), -2048 + 128))
            g.label(le)
    def touch(s, j):
        p = sTp + 2 * j
        inc = sTi + 2 * j + ((s + TP) & 1)
        g.e("s_load_dword s72, %s, 0" % sr(p, 2))
        g.e("s_ashr_i32 s73, %s, 31" % sr(inc))
        g.e("s_add_u32 %s, %s, %s" % (sr(p), sr(p), sr(inc)))
        g.e("s_addc_u32 %s, %s, s73" % (sr(p + 1), sr(p + 1)))
    lz = g.newlab("K1_Z")
    g.e("s_cmp_lg_u32 %s, 0" % sr(sW))
    g.e("s_cbranch_scc1 %s" % lz)
    if FUSED:
        g.e("s_lshr_b32 %s, s2, 5" % sr(sT))
        g.e("s_lshl_b32 %s, %s, 10" % (sr(sT), sr(sT)))
        g.e("s_and_b32 %s, s2, 31" % sr(sT + 1))
        g.e("s_lshl_b32 %s, %s, 4" % (sr(sT + 1), sr(sT + 1)))
        g.e("s_add_u32 %s, %s, %s" % (sr(sT), sr(sT), sr(sT + 1)))
        g.e("s_add_u32 %s, %s, 0x%x" % (sr(sT), sr(sT), FLAG_OFF))
        g.e("v_lshrrev_b32 %s, 2, v0" % vr(t0))
        g.e("v_lshlrev_b32 %s, 9, %s" % (vr(t0), vr(t0)))
        g.e("v_and_b32 %s, 3, v0" % vr(t1))
        g.e("v_lshl_add_u32 %s, %s, 2, %s" % (vr(t0), vr(t1), vr(t0)))
    else:
        g.e("s_lshl_b32 %s, s2, 5" % sr(sT))
        g.e("s_add_u32 %s, %s, 0x%x" % (sr(sT), sr(sT), FLAG_OFF))
        g.e("v_lshlrev_b32 %s, 2, v0" % vr(t0))
    g.e("v_mov_b32 %s, 0" % vr(t1))
    g.e("s_mov_b64 exec, 0xff")
    g.e("buffer_store_dword %s, %s, %s, %s offen %s" % (vr(t1), vr(t0), sr(SRD, 4), sr(sT), STF))
    g.e("s_mov_b64 exec, -1")
    g.label(lz)

    def dma(st, idx):
        slot = st % 4
        tag = ("dma", st)
        if "samek" in ABL:
            if idx < 2:
                g.e("s_add_u32 m0, %s, %d" % (sr(sXm0), slot * 16384 + idx * 1024))
                g.e("s_nop 0")
                g.vm("global_load_lds_dwordx4 %s, %s" % (vr(vXo + idx), sr(sX, 2)), tag)
            elif idx < 4:
                n = idx - 2
                g.e("s_add_u32 m0, %s, %d" % (sr(sWm0), slot * 20480 + n * 8192))
                g.e("s_nop 0")
                g.vm("global_load_lds_dwordx4 %s, off" % vr(vWp + 2 * n, 2), tag)
            else:
                g.e("s_add_u32 m0, %s, %d" % (sr(sWm0h), slot * 20480 + 16384))
                g.e("s_mov_b32 exec_hi, 0")
                g.vm("global_load_lds_dwordx4 %s, off" % vr(vWp + 4, 2), tag)
                g.e("s_mov_b32 exec_hi, -1")
            return
        if idx < 2:
            g.e("s_add_u32 m0, %s, %d" % (sr(sXm0), slot * 16384 + idx * 1024 - st * 64))
            g.e("s_nop 0")
            g.vm("global_load_lds_dwordx4 %s, %s offset:%d" % (vr(vXo + idx), sr(sX, 2), st * 64), tag)
        elif idx < 4:
            n = idx - 2
            g.e("s_add_u32 m0, %s, %d" % (sr(sWm0), slot * 20480 + n * 8192))
            g.e("s_nop 0")
            g.vm("global_load_lds_dwordx4 %s, off" % vr(vWp + 2 * n, 2), tag)
            g.e("v_add_co_u32 %s, vcc, %s, %s" % (vr(vWp + 2 * n), vr(vWp + 2 * n), vr(vWs + n)))
            g.e("v_addc_co_u32 %s, vcc, 0, %s, vcc" % (vr(vWp + 2 * n + 1), vr(vWp + 2 * n + 1)))
        else:
            n = 2
            g.e("s_add_u32 m0, %s, %d" % (sr(sWm0h), slot * 20480 + 16384))
            g.e("s_mov_b32 exec_hi, 0")
            g.vm("global_load_lds_dwordx4 %s, off" % vr(vWp + 2 * n, 2), tag)
            g.e("s_mov_b32 exec_hi, -1")
            g.e("v_add_co_u32 %s, vcc, %s, %s" % (vr(vWp + 2 * n), vr(vWp + 2 * n), vr(vWs + n)))
            g.e("v_addc_co_u32 %s, vcc, 0, %s, vcc" % (vr(vWp + 2 * n + 1), vr(vWp + 2 * n + 1)))
    def wread(f):
        s, t = divmod(f, 10)
        reg = WF + 4 * (f % WSL)
        off = (s % 4) * 20480
        g.lds("ds_read_b64_tr_b16 %s, %s offset:%d" % (vr(reg, 2), vr(vWrd + t), off), ("w", f))
        g.lds("ds_read_b64_tr_b16 %s, %s offset:%d" % (vr(reg + 2, 2), vr(vWrd + t), off + 2560), ("w", f))
    def xread(s, rg):
        reg = XF + 16 * (s % 2) + 4 * rg
        g.lds("ds_read_b128 %s, %s offset:%d" % (vr(reg, 4), vr(vXrd), (s % 4) * 16384 + rg * 1024), ("x", s))

    stamp(g)
    for st in range(1, 3):
        for idx in range(2, 5):
            dma(st, idx)
    g.need(vtags=[("dma", 0)])
    g.e("s_barrier")
    stamp(g)
    for rg in range(4):
        xread(0, rg)
    for f in range(D):
        wread(f)
    for s in range(NST):
        g.c("---- stage %d" % s)
        if s + 1 < NST:
            g.need(vtags=[("dma", s + 1)])
            if "nobar" not in ABL:
                g.e("s_barrier")
        if s == NST - 1 and "nopf" not in ABL:
            g.e("s_lshl_b32 %s, s2, 3" % sr(sT))
            g.e("s_add_u32 %s, %s, %s" % (sr(sT), sr(sT), sr(sW)))
            g.e("s_lshl_b32 %s, %s, 10" % (sr(sT + 1), sr(sT)))
            g.e("v_lshlrev_b32 v28, 7, v0")
            g.e("v_add_u32 v29, %s, v28" % sr(sT + 1))
            g.e("s_mul_i32 %s, %s, %d" % (sr(sT + 1), sr(sT), 28 * 128))
            g.e("v_add_u32 v28, %s, v28" % sr(sT + 1))
            g.e("s_mov_b64 exec, 0xff")
            g.e("global_load_dword v30, v29, s[56:57]")
            g.e("s_mov_b64 exec, 0xfffffff")
            g.e("global_load_dword v31, v28, s[58:59]")
            g.e("s_mov_b64 exec, -1")
        for gi in range(10):
            if gi < 5 and s + 3 < NST and "nodma" not in ABL and not ("noxdma" in ABL and gi < 2) and not ("nowdma" in ABL and gi >= 2):
                dma(s + 3, gi)
            if TP and gi in (6, 7, 8) and s + TP < NST:
                touch(s, gi - 6)
            f = s * 10 + gi + D
            if f < NST * 10 and "nolds" not in ABL:
                wread(f)
            if 2 <= gi < 6 and s + 1 < NST and "nolds" not in ABL:
                xread(s + 1, gi - 2)
            g.need(ltags=[("w", s * 10 + gi), ("x", s)])
            if "nomfma" in ABL and s > 0:
                continue
            wreg = WF + 4 * ((s * 10 + gi) % WSL)
            for rg in range(4):
                xreg = XF + 16 * (s % 2) + 4 * rg
                a = acc(gi, rg)
                cin = "0" if s == 0 else vr(a, 4)
                g.e("v_mfma_f32_16x16x32_bf16 %s, %s, %s, %s" % (vr(a, 4), vr(wreg, 4), vr(xreg, 4), cin))
    g.c("---- epilogue")
    stamp(g)
    if "k1noepi" in ABL:
        g.e("s_branch K1_END")
    sK1, sK2, sOne = 44, 46, 48
    vK1 = 26
    g.e("s_mov_b32 %s, 0x%x" % (sr(sK2), f2u(GK2)))
    g.e("s_mov_b32 %s, 0x%x" % (sr(sK2 + 1), f2u(GK2)))
    g.e("s_mov_b32 %s, 1.0" % sr(sOne))
    g.e("s_mov_b32 %s, 1.0" % sr(sOne + 1))
    g.e("v_mov_b32 %s, 0x%x" % (vr(vK1), f2u(GK1)))
    g.e("v_mov_b32 %s, 0x%x" % (vr(vK1 + 1), f2u(GK1)))
    sM0, sB, sDA, sDB, sJA = 50, 51, 52, 53, 54
    g.e("s_lshl_b32 %s, %s, 4" % (sr(sM0), sr(sRB)))
    g.e("s_lshl_b32 %s, %s, 2" % (sr(sT), sr(sWM)))
    g.e("s_add_u32 %s, %s, %s" % (sr(sM0), sr(sM0), sr(sT)))
    vL16s = 25
    g.e("s_lshl_b32 %s, %s, 3" % (sr(sT), sr(sWN)))
    g.e("v_add_u32 %s, %s, %s" % (vr(vL16s), sr(sT), vr(vL16)))
    g.e("s_nop 7")
    TMP = 32
    for u in range(3):
        lq, ldone = g.newlab("K1_Q"), g.newlab("K1_D")
        if u < 2:
            g.e("s_mul_i32 %s, %s, 3" % (sr(sB), sr(sWN)))
            g.e("s_add_u32 %s, %s, %d" % (sr(sB), sr(sB), u))
        else:
            g.e("s_mov_b32 %s, 2" % sr(sB))
        g.e("s_lshl_b32 %s, %s, 2" % (sr(sT), sr(sB)))
        g.e("s_cmp_lt_u32 %s, %s" % (sr(sT), sr(sN1)))
        g.e("s_cbranch_scc0 %s" % lq)
        g.e("s_mul_i32 %s, %s, 5" % (sr(sT), sr(sCB)))
        g.e("s_add_u32 %s, %s, %s" % (sr(sT), sr(sT), sr(sB)))
        g.e("s_add_u32 %s, %s, 32" % (sr(sT), sr(sT)))
        g.e("s_mul_i32 %s, %s, %d" % (sr(sDA), sr(sM0), NKB))
        g.e("s_add_u32 %s, %s, %s" % (sr(sDA), sr(sDA), sr(sT)))
        g.e("s_lshl_b32 %s, %s, 10" % (sr(sDA), sr(sDA)))
        tiles = [2 * u, 2 * u + 1] if u < 2 else [4]
        for rg in range(4):
            outb = TMP + 8 * (rg % 2)
            k = 0
            for t in tiles:
                for pr in range(2):
                    ga = acc(t, rg) + 2 * pr
                    ua = acc(t + 5, rg) + 2 * pr
                    tm = TMP + 16 + 8 * (k % 2)
                    round_pair(g, ga, tm)
                    round_pair(g, ua, tm + 1)
                    g.e("v_pk_mul_f32 %s, %s, %s" % (vr(tm + 2, 2), vr(ga, 2), vr(ga, 2)))
                    g.e("v_pk_fma_f32 %s, %s, %s, %s" % (vr(tm + 2, 2), vr(tm + 2, 2), sr(sK2, 2), vr(vK1, 2)))
                    g.e("v_pk_mul_f32 %s, %s, %s" % (vr(tm + 2, 2), vr(tm + 2, 2), vr(ga, 2)))
                    g.e("v_exp_f32 %s, %s" % (vr(tm + 2), vr(tm + 2)))
                    g.e("v_exp_f32 %s, %s" % (vr(tm + 3), vr(tm + 3)))
                    g.e("s_nop 0")
                    g.e("v_pk_add_f32 %s, %s, %s" % (vr(tm + 2, 2), vr(tm + 2, 2), sr(sOne, 2)))
                    g.e("v_rcp_f32 %s, %s" % (vr(tm + 2), vr(tm + 2)))
                    g.e("v_rcp_f32 %s, %s" % (vr(tm + 3), vr(tm + 3)))
                    g.e("s_nop 0")
                    g.e("v_pk_mul_f32 %s, %s, %s" % (vr(ga, 2), vr(tm + 2, 2), vr(ga, 2)))
                    round_pair(g, ga, tm)
                    g.e("v_pk_mul_f32 %s, %s, %s" % (vr(ga, 2), vr(ga, 2), vr(ua, 2)))
                    g.e("v_cvt_pk_bf16_f32 %s, %s, %s" % (vr(outb + k), vr(ga), vr(ga + 1)))
                    k += 1
            if u < 2:
                g.e("buffer_store_dwordx4 %s, %s, %s, %s offen %s" % (vr(outb, 4), vr(vL16), sr(SRD, 4), sr(sDA), STF))
            else:
                g.e("buffer_store_dwordx2 %s, %s, %s, %s offen %s" % (vr(outb, 2), vr(vL16s), sr(SRD, 4), sr(sDA), STF))
            if rg < 3:
                g.e("s_add_u32 %s, %s, %d" % (sr(sDA), sr(sDA), NKB * 1024))
        g.e("s_branch %s" % ldone)
        g.label(lq)
        for (sc, sd) in ((sColQA, sDA), (sColQB, sDB)):
            g.e("s_ashr_i32 %s, %s, 5" % (sr(sT), sr(sc)))
            g.e("s_add_u32 %s, %s, %s" % (sr(sT), sr(sT), sr(sB)))
            g.e("s_lshl_b32 %s, %s, 7" % (sr(sT), sr(sT)))
            g.e("s_add_u32 %s, %s, %s" % (sr(sT), sr(sT), sr(sM0)))
            g.e("s_lshl_b32 %s, %s, 10" % (sr(sT), sr(sT)))
            g.e("s_add_u32 %s, %s, 0x%x" % (sr(sd), sr(sT), QKV_OFF))
        n = 0
        for rg in range(4):
            for hf, sd in ((0, sDA), (1, sDB)):
                outb = TMP + 4 * (n % 8)
                n += 1
                k = 0
                for t in tiles:
                    for pr in range(2):
                        a = acc(t + 5 * hf, rg) + 2 * pr
                        g.e("v_cvt_pk_bf16_f32 %s, %s, %s" % (vr(outb + k), vr(a), vr(a + 1)))
                        k += 1
                if u < 2:
                    g.e("buffer_store_dwordx4 %s, %s, %s, %s offen offset:%d %s" % (vr(outb, 4), vr(vL16), sr(SRD, 4), sr(sd), rg * 1024, STF))
                else:
                    g.e("buffer_store_dwordx2 %s, %s, %s, %s offen offset:%d %s" % (vr(outb, 2), vr(vL16s), sr(SRD, 4), sr(sd), rg * 1024, STF))
        g.label(ldone)
        if u < 2:
            g.e("s_nop 1")
    if FUSED:
        lf = g.newlab("K1_F")
        g.e("s_load_dwordx2 s[44:45], s[0:1], 72")
        g.e("s_waitcnt vmcnt(0) lgkmcnt(0)")
        g.e("s_barrier")
        g.e("s_cmp_lg_u32 %s, 0" % sr(sW))
        g.e("s_cbranch_scc1 %s" % lf)
        g.e("v_mov_b32 v2, s2")
        g.e("v_mov_b32 v3, 1")
        g.e("s_mov_b64 exec, 1")
        g.e("global_store_byte v2, v3, s[44:45] sc1")
        g.e("s_mov_b64 exec, -1")
        g.label(lf)
        rtmark(g, sWS, 2)
        stamp(g)
        g.e("s_mov_b32 s18, %s" % sr(sW))
        return name
    stamp_end(g)
    g.label("K1_END")
    g.e("s_endpgm")
    return name

def gen_k2(g):
    name = "k2_attn_kernel"
    kstart(g, name)
    g.lq = []; g.vq = []
    sWS, sX, sGW = 4, 6, 8
    sHd, sQB, sW, sT = 10, 11, 12, 13
    SRD = 20
    sMk = 24
    sNneg = 32
    sC, sL2 = 34, 36
    g.e("s_cmp_ge_u32 s2, 512")
    g.e("s_cbranch_scc1 K2_END")
    stamp_begin(g)
    g.e("s_load_dwordx2 %s, s[0:1], 80" % sr(sWS, 2))
    g.e("s_load_dwordx2 %s, s[0:1], 0" % sr(sX, 2))
    g.e("s_load_dwordx2 %s, s[0:1], 56" % sr(sGW, 2))
    g.e("s_load_dwordx2 s[40:41], s[0:1], 16")
    g.e("s_load_dwordx2 s[42:43], s[0:1], 48")
    g.e("v_lshrrev_b32 v1, 6, v0")
    g.e("v_and_b32 v0, 63, v0")
    g.e("v_readfirstlane_b32 %s, v1" % sr(sW))
    vL16 = 2
    g.e("v_lshlrev_b32 %s, 4, v0" % vr(vL16))
    g.e("s_waitcnt lgkmcnt(0)")
    g.e("s_mov_b32 %s, %s" % (sr(SRD), sr(sWS)))
    g.e("s_and_b32 %s, %s, 0xffff" % (sr(SRD + 1), sr(sWS + 1)))
    g.e("s_mov_b32 %s, 0x%x" % (sr(SRD + 2), WS_BYTES))
    g.e("s_mov_b32 %s, 0x00020000" % sr(SRD + 3))
    sRow = 38
    g.e("s_lshl_b32 %s, s2, 2" % sr(sRow))
    g.e("s_add_u32 %s, %s, %s" % (sr(sRow), sr(sRow), sr(sW)))
    g.e("s_lshl_b32 %s, %s, 11" % (sr(sT), sr(sRow)))
    g.e("v_lshlrev_b32 v3, 5, v0")
    g.e("v_add_u32 v20, %s, v3" % sr(sT))
    g.e("global_load_dwordx4 v[60:63], v3, %s" % sr(sGW, 2))
    g.e("global_load_dwordx4 v[64:67], v3, %s offset:16" % sr(sGW, 2))
    g.e("global_load_dwordx4 v[68:71], v20, %s" % sr(sX, 2))
    g.e("global_load_dwordx4 v[72:75], v20, %s offset:16" % sr(sX, 2))
    g.e("s_and_b32 %s, s2, 31" % sr(sHd))
    g.e("s_lshr_b32 %s, s2, 5" % sr(sQB))
    g.e("s_lshl_b32 %s, %s, 3" % (sr(sT), sr(sQB)))
    g.e("s_add_u32 %s, %s, %s" % (sr(sT), sr(sT), sr(sW)))
    g.e("s_sub_u32 %s, %s, 16" % (sr(sT), sr(sT)))
    g.e("s_lshl_b32 %s, %s, 17" % (sr(sT + 1), sr(sHd)))
    g.e("s_add_u32 %s, %s, 0x%x" % (sr(sT + 1), sr(sT + 1), QKV_OFF + 32 * 128 * 1024))
    g.e("s_lshl_b32 %s, %s, 10" % (sr(sT + 4), sr(sW)))
    for i in range(6):
        g.e("s_add_u32 %s, %s, %d" % (sr(sT + 2), sr(sT), 4 * i))
        g.e("s_max_i32 %s, %s, 0" % (sr(sT + 2), sr(sT + 2)))
        g.e("s_lshl_b32 %s, %s, 10" % (sr(sT + 2), sr(sT + 2)))
        g.e("s_add_u32 %s, %s, %s" % (sr(sT + 2), sr(sT + 2), sr(sT + 1)))
        g.e("s_add_u32 %s, %s, 0x%x" % (sr(sT + 3), sr(sT + 2), 32 * 128 * 1024))
        g.e("s_add_u32 m0, %s, %d" % (sr(sT + 4), 4096 * i))
        g.e("s_nop 0")
        g.e("buffer_load_dwordx4 %s, %s, %s offen lds" % (vr(vL16), sr(SRD, 4), sr(sT + 2)))
        g.e("s_add_u32 m0, %s, %d" % (sr(sT + 4), 24576 + 4096 * i))
        g.e("s_nop 0")
        g.e("buffer_load_dwordx4 %s, %s, %s offen lds" % (vr(vL16), sr(SRD, 4), sr(sT + 3)))
    QF = 4
    g.e("s_lshl_b32 %s, %s, 3" % (sr(sT), sr(sQB)))
    g.e("s_lshl_b32 %s, %s, 1" % (sr(sT + 2), sr(sW)))
    g.e("s_add_u32 %s, %s, %s" % (sr(sT + 5), sr(sT), sr(sT + 2)))
    g.e("s_lshl_b32 %s, %s, 7" % (sr(sT + 2), sr(sHd)))
    g.e("s_add_u32 %s, %s, %s" % (sr(sT + 2), sr(sT + 2), sr(sT + 5)))
    g.e("s_lshl_b32 %s, %s, 10" % (sr(sT + 2), sr(sT + 2)))
    g.e("s_add_u32 %s, %s, 0x%x" % (sr(sT + 2), sr(sT + 2), QKV_OFF))
    g.e("buffer_load_dwordx4 %s, %s, %s, %s offen" % (vr(QF, 4), vr(vL16), sr(SRD, 4), sr(sT + 2)))
    g.e("buffer_load_dwordx4 %s, %s, %s, %s offen offset:1024" % (vr(QF + 4, 4), vr(vL16), sr(SRD, 4), sr(sT + 2)))
    g.e("s_sub_u32 %s, 16, %s" % (sr(sNneg), sr(sT + 5)))
    g.e("s_max_i32 %s, %s, 0" % (sr(sNneg), sr(sNneg)))
    vI, vQ4, vNI, vKrd, vVrd = 12, 13, 14, 15, 16
    g.e("v_and_b32 %s, 15, v0" % vr(vI))
    g.e("v_lshrrev_b32 %s, 4, v0" % vr(vQ4))
    g.e("v_lshlrev_b32 %s, 2, %s" % (vr(17), vr(vQ4)))
    for r in range(4):
        g.e("v_add_u32 %s, %d, %s" % (vr(18), r, vr(17)))
        g.e("v_cmp_gt_u32 %s, %s, %s" % (sr(sMk + 2 * r, 2), vr(18), vr(vI)))
    g.e("v_mov_b32 %s, 0xff800000" % vr(vNI))
    g.e("s_lshl_b32 %s, %s, 11" % (sr(sT), sr(sW)))
    g.e("v_add_u32 %s, %s, %s" % (vr(vKrd), sr(sT), vr(vL16)))
    g.e("v_and_b32 %s, 3, %s" % (vr(18), vr(vI)))
    g.e("v_lshlrev_b32 %s, 4, %s" % (vr(18), vr(18)))
    g.e("v_add_u32 %s, %s, %s" % (vr(18), vr(18), vr(17)))
    g.e("v_lshrrev_b32 %s, 2, %s" % (vr(19), vr(vI)))
    g.e("v_add_u32 %s, %s, %s" % (vr(18), vr(18), vr(19)))
    g.e("v_lshlrev_b32 %s, 4, %s" % (vr(18), vr(18)))
    g.e("s_add_u32 %s, %s, 24576" % (sr(sT), sr(sT)))
    g.e("v_add_u32 %s, %s, %s" % (vr(vVrd), sr(sT), vr(18)))
    g.e("s_mov_b32 %s, 0x%x" % (sr(sC), f2u(32 ** -0.5)))
    g.e("s_mov_b32 %s, 0x%x" % (sr(sC + 1), f2u(32 ** -0.5)))
    g.e("s_mov_b32 %s, 0x%x" % (sr(sL2), f2u(LOG2E)))
    g.e("s_mov_b32 %s, 0x%x" % (sr(sL2 + 1), f2u(LOG2E)))
    g.e("s_waitcnt vmcnt(0)")
    g.e("s_barrier")
    if "nopf" not in ABL:
        g.e("s_lshl_b32 %s, %s, 10" % (sr(sT), sr(sRow)))
        g.e("v_lshlrev_b32 v100, 7, v0")
        g.e("v_add_u32 v101, %s, v100" % sr(sT))
        g.e("s_mul_i32 %s, %s, %d" % (sr(sT), sr(sRow), 28 * 128))
        g.e("v_add_u32 v102, %s, v100" % sr(sT))
        g.e("s_mov_b64 exec, 0xff")
        g.e("global_load_dword v254, v101, s[40:41]")
        g.e("s_mov_b64 exec, 0xfffffff")
        g.e("global_load_dword v255, v102, s[42:43]")
        g.e("s_mov_b64 exec, -1")
    KF = 20
    SA = 52
    SB = 120
    VF = 188
    OA = 220
    TM = 236
    def S(grp, t):
        return SA + 4 * t if grp == 0 else SB + 4 * (t - 1)
    def kread(t):
        g.lds("ds_read_b128 %s, %s offset:%d" % (vr(KF + 4 * (t % 8), 4), vr(vKrd), t * 1024), ("k", t))
    for t in range(6):
        kread(t)
    for k in range(8):
        a = 76 + 4 * (k % 2)
        g.e("v_lshlrev_b32 %s, 16, %s" % (vr(a), vr(60 + k)))
        g.e("v_and_b32 %s, 0xffff0000, %s" % (vr(a + 1), vr(60 + k)))
        g.e("v_lshlrev_b32 %s, 16, %s" % (vr(a + 2), vr(68 + k)))
        g.e("v_and_b32 %s, 0xffff0000, %s" % (vr(a + 3), vr(68 + k)))
        g.e("v_pk_mul_f32 %s, %s, %s" % (vr(a, 2), vr(a, 2), vr(a + 2, 2)))
        round_pair(g, a)
        if k == 0:
            g.e("v_mov_b32 v84, %s" % vr(a))
            g.e("v_mov_b32 v85, %s" % vr(a + 1))
        else:
            g.e("v_pk_add_f32 v[84:85], v[84:85], %s" % vr(a, 2))
    g.e("v_add_f32 v84, v84, v85")
    g.e("s_nop 1")
    g.e("v_add_f32_dpp v84, v84, v84 quad_perm:[1,0,3,2] row_mask:0xf bank_mask:0xf")
    g.e("s_nop 1")
    g.e("v_add_f32_dpp v84, v84, v84 quad_perm:[2,3,0,1] row_mask:0xf bank_mask:0xf")
    g.e("s_nop 1")
    g.e("v_add_f32_dpp v84, v84, v84 row_half_mirror row_mask:0xf bank_mask:0xf")
    g.e("s_nop 1")
    g.e("v_add_f32_dpp v84, v84, v84 row_mirror row_mask:0xf bank_mask:0xf")
    g.e("v_mov_b32 v85, v84")
    g.e("s_nop 1")
    g.e("v_permlane32_swap_b32 v84, v85")
    g.e("v_add_f32 v84, v84, v85")
    g.e("v_mov_b32 v85, v84")
    g.e("s_nop 1")
    g.e("v_permlane16_swap_b32 v84, v85")
    g.e("v_add_f32 v84, v84, v85")
    g.e("v_cvt_pk_bf16_f32 v84, 0, v84")
    g.e("v_mul_f32 v84, 0x%x, v84" % f2u(-LOG2E))
    g.e("v_exp_f32 v84, v84")
    g.e("s_nop 0")
    g.e("v_add_f32 v84, 1.0, v84")
    g.e("v_rcp_f32 v84, v84")
    g.e("s_lshl_b32 %s, %s, 2" % (sr(sT), sr(sRow)))
    g.e("v_cvt_pk_bf16_f32 v84, 0, v84")
    g.e("v_mov_b32 v85, 0")
    g.e("s_add_u32 %s, %s, 0x%x" % (sr(sT), sr(sT), G_OFF))
    g.e("s_mov_b64 exec, 1")
    g.e("buffer_store_dword v84, v85, %s, %s offen" % (sr(SRD, 4), sr(sT)))
    g.e("s_mov_b64 exec, -1")
    for t in range(18):
        if t + 6 < 18:
            kread(t + 6)
        g.need(ltags=[("k", t)])
        kreg = KF + 4 * (t % 8)
        if t <= 16:
            g.e("v_mfma_f32_16x16x32_bf16 %s, %s, %s, 0" % (vr(S(0, t), 4), vr(kreg, 4), vr(QF, 4)))
        if t >= 1:
            g.e("v_mfma_f32_16x16x32_bf16 %s, %s, %s, 0" % (vr(S(1, t), 4), vr(kreg, 4), vr(QF + 4, 4)))
    def vread(j, d):
        n = j * 2 + d
        reg = VF + 4 * (n % 8)
        g.lds("ds_read_b64_tr_b16 %s, %s offset:%d" % (vr(reg, 2), vr(vVrd), (2 * j) * 1024 + 8 * d), ("v", n))
        g.lds("ds_read_b64_tr_b16 %s, %s offset:%d" % (vr(reg + 2, 2), vr(vVrd), (2 * j + 1) * 1024 + 8 * d), ("v", n))
    for n in range(6):
        vread(n // 2, n % 2)
    g.e("s_nop 7")
    for (grp, t, gt) in ((0, 0, True), (0, 16, False), (1, 1, True), (1, 17, False)):
        for r in range(4):
            a = S(grp, t) + r
            if gt:
                g.e("v_cndmask_b32 %s, %s, %s, %s" % (vr(a), vr(vNI), vr(a), sr(sMk + 2 * r, 2)))
            else:
                g.e("v_cndmask_b32 %s, %s, %s, %s" % (vr(a), vr(a), vr(vNI), sr(sMk + 2 * r, 2)))
    for t in range(16):
        g.e("s_cmp_le_u32 %s, %d" % (sr(sNneg), t))
        g.e("s_cbranch_scc1 K2_NEGDONE")
        for r in range(4):
            g.e("v_mov_b32 %s, %s" % (vr(S(0, t) + r), vr(vNI)))
        if t >= 1:
            for r in range(4):
                g.e("v_mov_b32 %s, %s" % (vr(S(1, t) + r), vr(vNI)))
    g.label("K2_NEGDONE")
    for grp in range(2):
        base = SA if grp == 0 else SB
        m0_, m1_ = TM, TM + 1
        g.e("v_max3_f32 %s, %s, %s, %s" % (vr(m0_), vr(base), vr(base + 1), vr(base + 2)))
        g.e("v_max3_f32 %s, %s, %s, %s" % (vr(m1_), vr(base + 3), vr(base + 4), vr(base + 5)))
        i = 6
        tog = 0
        while i + 1 < 68:
            mm = m0_ if tog == 0 else m1_
            g.e("v_max3_f32 %s, %s, %s, %s" % (vr(mm), vr(mm), vr(base + i), vr(base + i + 1)))
            i += 2; tog ^= 1
        g.e("v_max_f32 %s, %s, %s" % (vr(m0_), vr(m0_), vr(m1_)))
        g.e("v_mov_b32 %s, %s" % (vr(m1_), vr(m0_)))
        g.e("s_nop 1")
        g.e("v_permlane32_swap_b32 %s, %s" % (vr(m0_), vr(m1_)))
        g.e("v_max_f32 %s, %s, %s" % (vr(m0_), vr(m0_), vr(m1_)))
        g.e("v_mov_b32 %s, %s" % (vr(m1_), vr(m0_)))
        g.e("s_nop 1")
        g.e("v_permlane16_swap_b32 %s, %s" % (vr(m0_), vr(m1_)))
        g.e("v_max_f32 %s, %s, %s" % (vr(m0_), vr(m0_), vr(m1_)))
        g.e("v_mov_b32 %s, %s" % (vr(m1_), vr(m0_)))
        round_pair(g, m0_, TM + 2)
        g.e("v_pk_mul_f32 %s, %s, %s" % (vr(m0_, 2), vr(m0_, 2), sr(sC, 2)))
        round_pair(g, m0_, TM + 2)
        g.e("v_pk_mul_f32 %s, %s, %s" % (vr(m0_, 2), vr(m0_, 2), sr(sL2, 2)))
        g.e("v_sub_f32 %s, 0, %s" % (vr(m0_), vr(m0_)))
        g.e("v_sub_f32 %s, 0, %s" % (vr(m1_), vr(m1_)))
        sm = TM + 4
        for p in range(34):
            a = base + 2 * p
            tm = TM + 8 + (p % 4)
            round_pair(g, a, tm)
            g.e("v_pk_mul_f32 %s, %s, %s" % (vr(a, 2), vr(a, 2), sr(sC, 2)))
            round_pair(g, a, tm)
            g.e("v_pk_fma_f32 %s, %s, %s, %s" % (vr(a, 2), vr(a, 2), sr(sL2, 2), vr(m0_, 2)))
            g.e("v_exp_f32 %s, %s" % (vr(a), vr(a)))
            g.e("v_exp_f32 %s, %s" % (vr(a + 1), vr(a + 1)))
            if p >= 1:
                pa = base + 2 * (p - 1)
                ss = sm + 2 * ((p - 1) % 2)
                if p - 1 < 2:
                    g.e("v_mov_b32 %s, %s" % (vr(ss), vr(pa)))
                    g.e("v_mov_b32 %s, %s" % (vr(ss + 1), vr(pa + 1)))
                else:
                    g.e("v_pk_add_f32 %s, %s, %s" % (vr(ss, 2), vr(ss, 2), vr(pa, 2)))
        g.e("s_nop 0")
        pa = base + 2 * 33
        g.e("v_pk_add_f32 %s, %s, %s" % (vr(sm + 2, 2), vr(sm + 2, 2), vr(pa, 2)))
        g.e("v_pk_add_f32 %s, %s, %s" % (vr(sm, 2), vr(sm, 2), vr(sm + 2, 2)))
        g.e("v_add_f32 %s, %s, %s" % (vr(sm), vr(sm), vr(sm + 1)))
        g.e("v_mov_b32 %s, %s" % (vr(sm + 1), vr(sm)))
        g.e("s_nop 1")
        g.e("v_permlane32_swap_b32 %s, %s" % (vr(sm), vr(sm + 1)))
        g.e("v_add_f32 %s, %s, %s" % (vr(sm), vr(sm), vr(sm + 1)))
        g.e("v_mov_b32 %s, %s" % (vr(sm + 1), vr(sm)))
        g.e("s_nop 1")
        g.e("v_permlane16_swap_b32 %s, %s" % (vr(sm), vr(sm + 1)))
        g.e("v_add_f32 %s, %s, %s" % (vr(sm), vr(sm), vr(sm + 1)))
        g.e("v_rcp_f32 %s, %s" % (vr(sm), vr(sm)))
        g.e("s_nop 0")
        g.e("v_mov_b32 %s, %s" % (vr(sm + 1), vr(sm)))
        for p in range(34):
            a = base + 2 * p
            g.e("v_pk_mul_f32 %s, %s, %s" % (vr(a, 2), vr(a, 2), vr(sm, 2)))
        for ti in range(17):
            a = base + 4 * ti
            g.e("v_cvt_pk_bf16_f32 %s, %s, %s" % (vr(a), vr(a), vr(a + 1)))
            g.e("v_cvt_pk_bf16_f32 %s, %s, %s" % (vr(a + 1), vr(a + 2), vr(a + 3)))
    for j in range(9):
        a = SA + 8 * j
        if j < 8:
            g.e("v_mov_b32 %s, %s" % (vr(a + 2), vr(a + 4)))
            g.e("v_mov_b32 %s, %s" % (vr(a + 3), vr(a + 5)))
        else:
            g.e("v_mov_b32 %s, 0" % vr(a + 2))
            g.e("v_mov_b32 %s, 0" % vr(a + 3))
    for j in range(9):
        a = SB + 8 * j
        g.e("v_mov_b32 %s, %s" % (vr(a + 2), vr(a)))
        g.e("v_mov_b32 %s, %s" % (vr(a + 3), vr(a + 1)))
        if j > 0:
            g.e("v_mov_b32 %s, %s" % (vr(a), vr(a - 4)))
            g.e("v_mov_b32 %s, %s" % (vr(a + 1), vr(a - 3)))
        else:
            g.e("v_mov_b32 %s, 0" % vr(a))
            g.e("v_mov_b32 %s, 0" % vr(a + 1))
    g.e("s_nop 1")
    for n in range(18):
        j, d = n // 2, n % 2
        if n + 6 < 18:
            vread((n + 6) // 2, (n + 6) % 2)
        g.need(ltags=[("v", n)])
        vreg = VF + 4 * (n % 8)
        for grp in range(2):
            o = OA + 8 * grp + 4 * d
            pf = (SA if grp == 0 else SB) + 8 * j
            cin = "0" if j == 0 else vr(o, 4)
            g.e("v_mfma_f32_16x16x32_bf16 %s, %s, %s, %s" % (vr(o, 4), vr(vreg, 4), vr(pf, 4), cin))
    g.e("s_mul_i32 %s, %s, %d" % (sr(sT), sr(sT + 5), NKB))
    g.e("s_add_u32 %s, %s, %s" % (sr(sT), sr(sT), sr(sHd)))
    g.e("s_lshl_b32 %s, %s, 10" % (sr(sT), sr(sT)))
    g.e("s_add_u32 %s, %s, %d" % (sr(sT + 1), sr(sT), NKB * 1024))
    g.e("s_nop 7")
    for grp in range(2):
        o = OA + 8 * grp
        for k in range(4):
            g.e("v_cvt_pk_bf16_f32 %s, %s, %s" % (vr(TM + 4 * grp + k), vr(o + 2 * k), vr(o + 2 * k + 1)))
        g.e("buffer_store_dwordx4 %s, %s, %s, %s offen" % (vr(TM + 4 * grp, 4), vr(vL16), sr(SRD, 4), sr(sT + grp)))
    stamp_end(g)
    g.e("s_endpgm")
    g.label("K2_END")
    g.e("s_endpgm")
    return name

def gen_k3(g):
    name = "k3_gemm2_kernel"
    kstart(g, name)
    g.lq = []; g.vq = []
    NST = 72
    RING = int(os.environ.get("RING", "6"))
    WLDS = 98304
    sWS, sWo, sWd, sOut = 4, 6, 8, 10
    sRB, sCB, sW, sWM, sWN, sT = 12, 13, 14, 15, 16, 17
    sXb, sWb = 24, 26
    sXm0, sWm0 = 28, 29
    SRDO = 32
    SRD = 36
    g.e("s_cmp_ge_u32 s2, 256")
    g.e("s_cbranch_scc1 K3_END")
    stamp_begin(g)
    g.e("s_load_dwordx2 %s, s[0:1], 80" % sr(sWS, 2))
    g.e("s_load_dwordx2 %s, s[0:1], 16" % sr(sWo, 2))
    g.e("s_load_dwordx2 %s, s[0:1], 48" % sr(sWd, 2))
    g.e("s_load_dwordx2 %s, s[0:1], 64" % sr(sOut, 2))
    g.e("s_and_b32 %s, s2, 7" % sr(sT))
    g.e("s_lshr_b32 %s, s2, 3" % sr(sT + 1))
    g.e("s_lshr_b32 %s, %s, 1" % (sr(sRB), sr(sT)))
    g.e("s_lshl_b32 %s, %s, 2" % (sr(sRB), sr(sRB)))
    g.e("s_and_b32 %s, %s, 3" % (sr(sT + 2), sr(sT + 1)))
    g.e("s_add_u32 %s, %s, %s" % (sr(sRB), sr(sRB), sr(sT + 2)))
    g.e("s_and_b32 %s, %s, 1" % (sr(sCB), sr(sT)))
    g.e("s_lshl_b32 %s, %s, 3" % (sr(sCB), sr(sCB)))
    g.e("s_lshr_b32 %s, %s, 2" % (sr(sT + 2), sr(sT + 1)))
    g.e("s_add_u32 %s, %s, %s" % (sr(sCB), sr(sCB), sr(sT + 2)))
    g.e("v_lshrrev_b32 v1, 6, v0")
    g.e("v_and_b32 v0, 63, v0")
    g.e("v_readfirstlane_b32 %s, v1" % sr(sW))
    g.e("s_and_b32 %s, %s, 1" % (sr(sWM), sr(sW)))
    g.e("s_lshr_b32 %s, %s, 1" % (sr(sWN), sr(sW)))
    vXo = 2
    vWo = 4
    vXrd = 6
    vWrd = 8
    vG = 10
    vOo = 14
    t0, t1, t2, t3, t4 = 16, 17, 18, 19, 20
    XF = 24
    WF = 72
    ACA = 96
    ACB = 128
    TM = 24
    g.e("s_lshl_b32 %s, %s, 3" % (sr(sT), sr(sRB)))
    g.e("s_lshl_b32 %s, %s, 1" % (sr(sT + 1), sr(sW)))
    g.e("s_add_u32 %s, %s, %s" % (sr(sT), sr(sT), sr(sT + 1)))
    g.e("s_mul_i32 %s, %s, %d" % (sr(sT), sr(sT), NKB * 1024))
    g.e("v_lshlrev_b32 %s, 4, v0" % vr(t0))
    g.e("v_add_u32 %s, %s, %s" % (vr(vXo), sr(sT), vr(t0)))
    g.e("v_add_u32 %s, %d, %s" % (vr(vXo + 1), NKB * 1024, vr(vXo)))
    g.e("s_lshl_b32 %s, %s, 13" % (sr(sT), sr(sWM)))
    g.e("v_add_u32 %s, %s, %s" % (vr(vXrd), sr(sT), vr(t0)))
    g.e("v_add_u32 %s, %d, %s" % (vr(vXrd + 1), 3 * 16384, vr(vXrd)))
    g.e("v_lshrrev_b32 %s, 3, v0" % vr(t1))
    g.e("v_and_b32 %s, 6, %s" % (vr(t2), vr(t1)))
    g.e("v_and_b32 %s, 7, v0" % vr(t3))
    g.e("v_xor_b32 %s, %s, %s" % (vr(t3), vr(t3), vr(t2)))
    g.e("s_lshl_b32 %s, %s, 4" % (sr(sT), sr(sW)))
    g.e("v_add_u32 %s, %s, %s" % (vr(t1), sr(sT), vr(t1)))
    g.e("v_lshlrev_b32 %s, 11, %s" % (vr(t1), vr(t1)))
    g.e("v_lshl_add_u32 %s, %s, 4, %s" % (vr(t1), vr(t3), vr(t1)))
    g.e("s_lshl_b32 %s, %s, 7" % (sr(sT), sr(sCB)))
    g.e("v_add_u32 %s, %s, %s" % (vr(vWo), sr(sT), vr(t1)))
    g.e("v_add_u32 %s, %d, %s" % (vr(vWo + 1), 8 * 2048, vr(vWo)))
    g.e("v_and_b32 %s, 15, v0" % vr(t0))
    g.e("v_lshrrev_b32 %s, 4, v0" % vr(t1))
    g.e("v_lshrrev_b32 %s, 2, %s" % (vr(t2), vr(t0)))
    g.e("v_lshl_add_u32 %s, %s, 2, %s" % (vr(t2), vr(t1), vr(t2)))
    g.e("v_bfe_u32 %s, %s, 1, 2" % (vr(t3), vr(t2)))
    g.e("v_lshlrev_b32 %s, 7, %s" % (vr(t2), vr(t2)))
    g.e("v_and_b32 %s, 3, %s" % (vr(t4), vr(t0)))
    g.e("v_lshl_add_u32 %s, %s, 3, %s" % (vr(t2), vr(t4), vr(t2)))
    g.e("v_add_u32 %s, %d, %s" % (vr(t2), WLDS, vr(t2)))
    for tl in range(2):
        g.e("s_lshl_b32 %s, %s, 1" % (sr(sT), sr(sWN)))
        g.e("s_add_u32 %s, %s, %d" % (sr(sT), sr(sT), tl))
        g.e("v_xor_b32 %s, %s, %s" % (vr(t4), sr(sT), vr(t3)))
        g.e("v_lshl_add_u32 %s, %s, 5, %s" % (vr(vWrd + tl), vr(t4), vr(t2)))
    g.e("s_lshl_b32 %s, %s, 7" % (sr(sT), sr(sRB)))
    g.e("s_lshl_b32 %s, %s, 6" % (sr(sT + 1), sr(sWM)))
    g.e("s_add_u32 %s, %s, %s" % (sr(sT), sr(sT), sr(sT + 1)))
    g.e("v_add_u32 %s, %s, %s" % (vr(t2), sr(sT), vr(t0)))
    g.e("v_lshlrev_b32 %s, 2, %s" % (vr(t4), vr(t2)))
    g.e("v_lshlrev_b32 %s, 11, %s" % (vr(t2), vr(t2)))
    g.e("v_lshl_add_u32 %s, %s, 3, %s" % (vr(t2), vr(t1), vr(t2)))
    g.e("s_lshl_b32 %s, %s, 7" % (sr(sT), sr(sCB)))
    g.e("s_lshl_b32 %s, %s, 6" % (sr(sT + 1), sr(sWN)))
    g.e("s_add_u32 %s, %s, %s" % (sr(sT), sr(sT), sr(sT + 1)))
    g.e("v_add_u32 %s, %s, %s" % (vr(vOo), sr(sT), vr(t2)))
    g.e("s_lshl_b32 %s, %s, 12" % (sr(sXm0), sr(sW)))
    g.e("s_lshl_b32 %s, %s, 11" % (sr(sWm0), sr(sW)))
    g.e("s_add_u32 %s, %s, %d" % (sr(sWm0), sr(sWm0), WLDS))
    g.e("s_waitcnt lgkmcnt(0)")
    g.e("s_mov_b32 %s, %s" % (sr(SRD), sr(sWS)))
    g.e("s_and_b32 %s, %s, 0xffff" % (sr(SRD + 1), sr(sWS + 1)))
    g.e("s_mov_b32 %s, 0x%x" % (sr(SRD + 2), WS_BYTES))
    g.e("s_mov_b32 %s, 0x00020000" % sr(SRD + 3))
    g.e("s_mov_b32 %s, %s" % (sr(SRDO), sr(sOut)))
    g.e("s_and_b32 %s, %s, 0xffff" % (sr(SRDO + 1), sr(sOut + 1)))
    g.e("s_mov_b32 %s, 0x400000" % sr(SRDO + 2))
    g.e("s_mov_b32 %s, 0x00020000" % sr(SRDO + 3))
    g.e("s_mov_b64 %s, %s" % (sr(sXb, 2), sr(sWS, 2)))
    g.e("s_mov_b64 %s, %s" % (sr(sWb, 2), sr(sWo, 2)))
    g.e("s_mov_b32 %s, 0x%x" % (sr(sT), G_OFF))
    for rg in range(4):
        g.vm("buffer_load_dword %s, %s, %s, %s offen offset:%d" % (vr(vG + rg), vr(t4), sr(SRD, 4), sr(sT), rg * 64), ("g",))

    def dma(st, idx):
        slot = st % RING
        tag = ("dma", st)
        if idx < 4:
            m, kb = idx // 2, idx % 2
            g.e("s_add_u32 m0, %s, %d" % (sr(sXm0), slot * 16384 + m * 2048))
            g.e("s_nop 0")
            g.vm("global_load_lds_dwordx4 %s, %s offset:%d" % (vr(vXo + m), sr(sXb, 2), kb * 1024), tag)
            if idx == 3 and "3samek" not in ABL:
                g.e("s_add_u32 %s, %s, 2048" % (sr(sXb), sr(sXb)))
                g.e("s_addc_u32 %s, %s, 0" % (sr(sXb + 1), sr(sXb + 1)))
        else:
            i = idx - 4
            g.e("s_add_u32 m0, %s, %d" % (sr(sWm0), slot * 8192 + i * 1024))
            g.e("s_nop 0")
            g.vm("global_load_lds_dwordx4 %s, %s" % (vr(vWo + i), sr(sWb, 2)), tag)
            if i == 1 and "3samek" not in ABL:
                if st == 15:
                    g.e("s_mov_b64 %s, %s" % (sr(sWb, 2), sr(sWd, 2)))
                else:
                    g.e("s_add_u32 %s, %s, %d" % (sr(sWb), sr(sWb), 64 * 2048))
                    g.e("s_addc_u32 %s, %s, 0" % (sr(sWb + 1), sr(sWb + 1)))
    def fread_items(n):
        st, kb = divmod(n, 2)
        slot = st % RING
        xb = vXrd + (slot // 3)
        it = []
        for tl in range(2):
            reg = WF + 8 * (n % 3) + 4 * tl
            off = slot * 8192 + kb * 4096
            it.append(lambda reg=reg, off=off, tl=tl: g.lds("ds_read_b64_tr_b16 %s, %s offset:%d" % (vr(reg, 2), vr(vWrd + tl), off), ("f", n)))
            it.append(lambda reg=reg, off=off, tl=tl: g.lds("ds_read_b64_tr_b16 %s, %s offset:%d" % (vr(reg + 2, 2), vr(vWrd + tl), off + 2048), ("f", n)))
        for rg in range(4):
            it.append(lambda rg=rg: g.lds("ds_read_b128 %s, %s offset:%d" % (vr(XF + 16 * (n % 3) + 4 * rg, 4), vr(xb), (slot % 3) * 16384 + (rg * 2 + kb) * 1024), ("f", n)))
        return it
    stamp(g)
    for st in range(RING - 1):
        for idx in range(6):
            dma(st, idx)
    g.need(vtags=[("dma", 0)])
    g.e("s_barrier")
    stamp(g)
    for it in fread_items(0) + fread_items(1):
        it()
    for s in range(NST):
        g.c("---- stage %d" % s)
        if s + 1 < NST:
            g.need(vtags=[("dma", s + 1)])
            if "3nobar" not in ABL:
                g.e("s_barrier")
        for kb in range(2):
            n = 2 * s + kb
            fill = []
            if n + 2 < 2 * NST and "3nolds" not in ABL:
                fill += fread_items(n + 2)
            dm = []
            if s + RING - 1 < NST and "3nodma" not in ABL:
                for idx in range(3 * kb, 3 * kb + 3):
                    dm.append(lambda idx=idx: dma(s + RING - 1, idx))
            order = []
            while fill or dm:
                if dm: order.append(dm.pop(0))
                for _ in range(3):
                    if fill: order.append(fill.pop(0))
            g.need(ltags=[("f", n)])
            AC = ACA if n < 32 else ACB
            first = (n == 0 or n == 32)
            k = 0
            for rg in range(4):
                for tl in range(2):
                    a = AC + (rg * 2 + tl) * 4
                    cin = "0" if first else vr(a, 4)
                    if not ("3nomfma" in ABL and n not in (0, 32)):
                        g.e("v_mfma_f32_16x16x32_bf16 %s, %s, %s, %s" % (vr(a, 4), vr(WF + 8 * (n % 3) + 4 * tl, 4), vr(XF + 16 * (n % 3) + 4 * rg, 4), cin))
                    k += 1
                    left = 8 - k + 1
                    cnt = (len(order) + left - 1) // left
                    for _ in range(cnt):
                        if order: order.pop(0)()
    g.c("---- epilogue")
    stamp(g)
    g.e("s_nop 7")
    for rg in range(4):
        gp, op = TM, TM + 2
        g.e("v_mov_b32 %s, %s" % (vr(gp), vr(vG + rg)))
        g.e("v_mov_b32 %s, %s" % (vr(gp + 1), vr(vG + rg)))
        g.e("v_sub_f32 %s, 1.0, %s" % (vr(op), vr(vG + rg)))
        g.e("v_sub_f32 %s, 1.0, %s" % (vr(op + 1), vr(vG + rg)))
        round_pair(g, op, TM + 4)
        for tl in range(2):
            ob = TM + 8 + 2 * ((rg * 2 + tl) % 4)
            for pr in range(2):
                a = ACA + (rg * 2 + tl) * 4 + 2 * pr
                b = ACB + (rg * 2 + tl) * 4 + 2 * pr
                round_pair(g, a, TM + 5)
                round_pair(g, b, TM + 6)
                g.e("v_pk_mul_f32 %s, %s, %s" % (vr(a, 2), vr(a, 2), vr(gp, 2)))
                g.e("v_pk_mul_f32 %s, %s, %s" % (vr(b, 2), vr(b, 2), vr(op, 2)))
                round_pair(g, a, TM + 5)
                round_pair(g, b, TM + 6)
                g.e("v_pk_add_f32 %s, %s, %s" % (vr(a, 2), vr(a, 2), vr(b, 2)))
                g.e("v_cvt_pk_bf16_f32 %s, %s, %s" % (vr(ob + pr), vr(a), vr(a + 1)))
            g.e("s_mov_b32 %s, %d" % (sr(sT), rg * 16 * 2048))
            g.e("buffer_store_dwordx2 %s, %s, %s, %s offen offset:%d" % (vr(ob, 2), vr(vOo), sr(SRDO, 4), sr(sT), tl * 32))
    stamp_end(g)
    g.label("K3_END")
    g.e("s_endpgm")
    return name


def gen_k23(g):
    name = "k23_kernel"
    if not FUSED:
        kstart(g, name)
    g.lq = []; g.vq = []
    NST = 72
    WR = 8
    PW = WR - 1
    XQ = 10
    XD = XQ - 1
    WLDS = 65536
    NBAR = NST
    sWS, sWo, sWd, sOut, sX, sGW, sDbg = 4, 6, 8, 10, 12, 14, 16
    sW, sT = 18, 19
    SRD, SRDO = 28, 32
    if not FUSED:
        g.e("s_cmp_ge_u32 s2, 256")
        g.e("s_cbranch_scc1 K23_END")
        stamp_begin(g)
    g.e("s_load_dwordx2 %s, s[0:1], 80" % sr(sWS, 2))
    g.e("s_load_dwordx2 %s, s[0:1], 16" % sr(sWo, 2))
    g.e("s_load_dwordx2 %s, s[0:1], 48" % sr(sWd, 2))
    g.e("s_load_dwordx2 %s, s[0:1], 64" % sr(sOut, 2))
    g.e("s_load_dwordx2 %s, s[0:1], 0" % sr(sX, 2))
    g.e("s_load_dwordx2 %s, s[0:1], 56" % sr(sGW, 2))
    g.e("s_load_dwordx2 %s, s[0:1], 72" % sr(sDbg, 2))
    if not FUSED:
        g.e("v_lshrrev_b32 v1, 6, v0")
        g.e("v_and_b32 v0, 63, v0")
        g.e("v_readfirstlane_b32 %s, v1" % sr(sW))
    g.e("s_waitcnt lgkmcnt(0)")
    def k1wait(gg, voff, vtmp, nl, mask_lo):
        lp, ld = gg.newlab("K1W"), gg.newlab("K1D")
        gg.e("s_mov_b32 %s, 0" % sr(sT + 2))
        gg.label(lp)
        gg.e("s_mov_b64 exec, 0x%x" % ((1 << nl) - 1))
        gg.e("global_load_dword %s, %s, %s sc1" % (vr(vtmp), vr(voff), sr(sDbg, 2)))
        gg.e("s_waitcnt vmcnt(0)")
        gg.e("v_or_b32 %s, %s, %s" % (vr(vtmp), vr(vtmp), vr(mask_lo)))
        gg.e("v_cmp_ne_u32 vcc, 0x01010101, %s" % vr(vtmp))
        gg.e("s_mov_b64 exec, -1")
        gg.e("s_cmp_eq_u64 vcc, 0")
        gg.e("s_cbranch_scc1 %s" % ld)
        gg.e("s_add_u32 %s, %s, 1" % (sr(sT + 2), sr(sT + 2)))
        gg.e("s_cmp_ge_u32 %s, 0x40000" % sr(sT + 2))
        gg.e("s_cbranch_scc1 %s" % ld)
        gg.e("s_sleep %s" % os.environ.get("PSL", "16"))
        gg.e("s_branch %s" % lp)
        gg.label(ld)
    g.e("s_mov_b32 %s, %s" % (sr(SRD), sr(sWS)))
    g.e("s_and_b32 %s, %s, 0xffff" % (sr(SRD + 1), sr(sWS + 1)))
    g.e("s_mov_b32 %s, 0x%x" % (sr(SRD + 2), WS_BYTES))
    g.e("s_mov_b32 %s, 0x00020000" % sr(SRD + 3))
    g.nst_att = getattr(g, "nst", 1)
    g.e("s_cmp_ge_u32 %s, 4" % sr(sW))
    g.e("s_cbranch_scc1 K23_ATT")
    sRB, sCB = 36, 37
    sXk, sWb = 38, 40
    sWm0 = 42
    sMo = 44
    vL16g, vWo, vWrd, vG, vOo, vPoll, vZ, vRd, vGo = 1, 2, 4, 8, 10, 12, 11, 14, 15
    vWr = 96
    WF, XR, BF, AC = 16, 48, 96, 128
    XS = 12
    XD = 11
    NL = 36
    NLB = 28
    WSL = 4
    WLDS = 98304
    t0, t1, t2, t3, t4 = 48, 49, 50, 51, 52
    sRw = 52
    g.e("s_mov_b32 %s, %s" % (sr(SRDO), sr(sOut)))
    g.e("s_and_b32 %s, %s, 0xffff" % (sr(SRDO + 1), sr(sOut + 1)))
    g.e("s_mov_b32 %s, 0x400000" % sr(SRDO + 2))
    g.e("s_mov_b32 %s, 0x00020000" % sr(SRDO + 3))
    g.e("s_and_b32 %s, s2, 7" % sr(sT))
    g.e("s_lshr_b32 %s, s2, 3" % sr(sT + 1))
    g.e("s_lshr_b32 %s, %s, 1" % (sr(sRB), sr(sT)))
    g.e("s_lshl_b32 %s, %s, 2" % (sr(sRB), sr(sRB)))
    g.e("s_and_b32 %s, %s, 3" % (sr(sT + 2), sr(sT + 1)))
    g.e("s_add_u32 %s, %s, %s" % (sr(sRB), sr(sRB), sr(sT + 2)))
    g.e("s_and_b32 %s, %s, 1" % (sr(sCB), sr(sT)))
    g.e("s_lshl_b32 %s, %s, 3" % (sr(sCB), sr(sCB)))
    g.e("s_lshr_b32 %s, %s, 2" % (sr(sT + 2), sr(sT + 1)))
    g.e("s_add_u32 %s, %s, %s" % (sr(sCB), sr(sCB), sr(sT + 2)))
    g.e("v_lshlrev_b32 %s, 4, v0" % vr(vL16g))
    g.e("s_lshl_b32 %s, %s, 3" % (sr(sT), sr(sRB)))
    g.e("s_lshl_b32 %s, %s, 1" % (sr(sT + 1), sr(sW)))
    for m in range(8):
        g.e("s_add_u32 %s, %s, %d" % (sr(sT + 2), sr(sT + 1), m))
        g.e("s_and_b32 %s, %s, 7" % (sr(sT + 2), sr(sT + 2)))
        g.e("s_add_u32 %s, %s, %s" % (sr(sT + 2), sr(sT + 2), sr(sT)))
        g.e("s_mul_i32 %s, %s, %d" % (sr(sMo + m), sr(sT + 2), NKB * 1024))
    g.e("s_lshl_b32 %s, %s, 10" % (sr(sXk), sr(sW)))
    g.e("s_add_u32 %s, %s, %d" % (sr(sXk), sr(sXk), 32 * 1024))
    g.e("v_lshrrev_b32 %s, 3, v0" % vr(t1))
    g.e("v_and_b32 %s, 6, %s" % (vr(t2), vr(t1)))
    g.e("v_and_b32 %s, 7, v0" % vr(t3))
    g.e("v_xor_b32 %s, %s, %s" % (vr(t3), vr(t3), vr(t2)))
    g.e("s_lshl_b32 %s, %s, 5" % (sr(sT), sr(sW)))
    g.e("v_add_u32 %s, %s, %s" % (vr(t1), sr(sT), vr(t1)))
    g.e("v_lshlrev_b32 %s, 11, %s" % (vr(t1), vr(t1)))
    g.e("v_lshl_add_u32 %s, %s, 4, %s" % (vr(t1), vr(t3), vr(t1)))
    g.e("s_lshl_b32 %s, %s, 7" % (sr(sT), sr(sCB)))
    g.e("v_add_u32 %s, %s, %s" % (vr(vWo), sr(sT), vr(t1)))
    g.e("v_add_u32 %s, %d, %s" % (vr(vWo + 1), 16 * 2048, vr(vWo)))
    g.e("s_lshl_b32 %s, %s, 14" % (sr(sWm0), sr(sW)))
    g.e("s_add_u32 %s, %s, %d" % (sr(sWm0), sr(sWm0), WLDS))
    g.e("v_and_b32 %s, 15, v0" % vr(t0))
    g.e("v_lshrrev_b32 %s, 4, v0" % vr(t1))
    g.e("v_lshrrev_b32 %s, 2, %s" % (vr(t2), vr(t0)))
    g.e("v_lshl_add_u32 %s, %s, 2, %s" % (vr(t2), vr(t1), vr(t2)))
    g.e("v_bfe_u32 %s, %s, 1, 2" % (vr(t3), vr(t2)))
    g.e("v_lshlrev_b32 %s, 7, %s" % (vr(t2), vr(t2)))
    g.e("v_and_b32 %s, 3, %s" % (vr(t4), vr(t0)))
    g.e("v_lshl_add_u32 %s, %s, 3, %s" % (vr(t2), vr(t4), vr(t2)))
    g.e("v_add_u32 %s, %s, %s" % (vr(t2), sr(sWm0), vr(t2)))
    for tl in range(4):
        g.e("v_xor_b32 %s, %d, %s" % (vr(t4), tl, vr(t3)))
        g.e("v_lshl_add_u32 %s, %s, 5, %s" % (vr(vWrd + tl), vr(t4), vr(t2)))
    g.e("s_lshl_b32 %s, %s, 7" % (sr(sT), sr(sRB)))
    g.e("s_lshl_b32 %s, %s, 5" % (sr(sT + 1), sr(sW)))
    g.e("s_add_u32 %s, %s, %s" % (sr(sT), sr(sT), sr(sT + 1)))
    g.e("v_add_u32 %s, %s, %s" % (vr(t2), sr(sT), vr(t0)))
    g.e("v_lshlrev_b32 %s, 2, %s" % (vr(vGo), vr(t2)))
    g.e("v_lshlrev_b32 %s, 11, %s" % (vr(t2), vr(t2)))
    g.e("v_lshl_add_u32 %s, %s, 3, %s" % (vr(t2), vr(t1), vr(t2)))
    g.e("s_lshl_b32 %s, %s, 7" % (sr(sT), sr(sCB)))
    g.e("v_add_u32 %s, %s, %s" % (vr(vOo), sr(sT), vr(t2)))
    g.e("s_lshl_b32 %s, %s, 9" % (sr(sT), sr(sRB)))
    g.e("s_add_u32 %s, %s, 0x%x" % (sr(sT), sr(sT), FLAG_OFF))
    g.e("v_lshlrev_b32 %s, 3, v0" % vr(vZ))
    g.e("v_add_u32 %s, %s, %s" % (vr(vZ), sr(sT), vr(vZ)))
    for j in range(1, 4):
        g.e("s_add_u32 %s, %s, %d" % (sr(sT), sr(sW), j))
        g.e("s_and_b32 %s, %s, 3" % (sr(sT), sr(sT)))
        g.e("s_mul_i32 %s, %s, 3" % (sr(sT), sr(sT)))
        g.e("s_add_u32 %s, %s, %d" % (sr(sT), sr(sT), j - 1))
        g.e("s_lshl_b32 %s, %s, 13" % (sr(sRw + j - 1), sr(sT)))
    g.e("s_mul_i32 %s, %s, %d" % (sr(sT), sr(sW), 3 * 8192))
    g.e("v_add_u32 %s, %s, %s" % (vr(vRd), sr(sT), vr(vL16g)))
    T3 = int(os.environ.get("T3", "0"))
    sTx, sTw, sTwo = 58, 60, 62
    if T3:
        g.e("s_lshr_b32 %s, s2, 3" % sr(sT))
        g.e("s_lshl_b32 %s, %s, 2" % (sr(sT), sr(sT)))
        g.e("s_add_u32 %s, %s, %s" % (sr(sT), sr(sT), sr(sW)))
        g.e("s_and_b32 %s, %s, 12" % (sr(sT + 1), sr(sRB)))
        g.e("s_lshr_b32 %s, %s, 5" % (sr(sT + 2), sr(sT)))
        g.e("s_add_u32 %s, %s, %s" % (sr(sT + 1), sr(sT + 1), sr(sT + 2)))
        g.e("s_lshl_b32 %s, %s, 3" % (sr(sT + 1), sr(sT + 1)))
        g.e("s_lshr_b32 %s, %s, 2" % (sr(sT + 2), sr(sT)))
        g.e("s_and_b32 %s, %s, 7" % (sr(sT + 2), sr(sT + 2)))
        g.e("s_add_u32 %s, %s, %s" % (sr(sT + 1), sr(sT + 1), sr(sT + 2)))
        g.e("s_mul_i32 %s, %s, %d" % (sr(sT + 1), sr(sT + 1), NKB))
        g.e("s_and_b32 %s, %s, 3" % (sr(sT + 2), sr(sT)))
        g.e("s_add_u32 %s, %s, %s" % (sr(sT + 1), sr(sT + 1), sr(sT + 2)))
        g.e("s_add_u32 %s, %s, %d" % (sr(sT + 1), sr(sT + 1), 32 + 4 * T3))
        g.e("s_lshl_b32 %s, %s, 10" % (sr(sT + 1), sr(sT + 1)))
        g.e("s_add_u32 %s, %s, %s" % (sr(sTx), sr(sWS), sr(sT + 1)))
        g.e("s_addc_u32 %s, %s, 0" % (sr(sTx + 1), sr(sWS + 1)))
        g.e("s_and_b32 %s, %s, 8" % (sr(sT + 1), sr(sCB)))
        g.e("s_lshr_b32 %s, %s, 4" % (sr(sT + 2), sr(sT)))
        g.e("s_add_u32 %s, %s, %s" % (sr(sT + 1), sr(sT + 1), sr(sT + 2)))
        g.e("s_lshl_b32 %s, %s, 7" % (sr(sT + 1), sr(sT + 1)))
        g.e("s_and_b32 %s, %s, 15" % (sr(sT + 2), sr(sT)))
        g.e("s_lshl_b32 %s, %s, 14" % (sr(sT + 2), sr(sT + 2)))
        g.e("s_add_u32 %s, %s, %s" % (sr(sTwo), sr(sT + 1), sr(sT + 2)))
        g.e("s_add_u32 %s, %s, %d" % (sr(sT + 1), sr(sTwo), T3 * 128 * 2048))
        g.e("s_add_u32 %s, %s, %s" % (sr(sTw), sr(sWd), sr(sT + 1)))
        g.e("s_addc_u32 %s, %s, 0" % (sr(sTw + 1), sr(sWd + 1)))
    def touch_items(i):
        r = i + T3
        it = []
        if not T3 or r >= NL:
            return it
        if r < NLB:
            for k in range(8):
                it.append(lambda k=k: g.e("s_load_dword s63, %s, %d" % (sr(sTx, 2), 128 * k)))
            def advx():
                g.e("s_add_u32 %s, %s, 4096" % (sr(sTx), sr(sTx)))
                g.e("s_addc_u32 %s, %s, 0" % (sr(sTx + 1), sr(sTx + 1)))
            it.append(advx)
        for k in range(8):
            it.append(lambda k=k: g.e("s_load_dword s63, %s, %d" % (sr(sTw, 2), 2048 * k)))
        def advw():
            if r == NLB - 1:
                g.e("s_add_u32 %s, %s, %s" % (sr(sTw), sr(sWo), sr(sTwo)))
                g.e("s_addc_u32 %s, %s, 0" % (sr(sTw + 1), sr(sWo + 1)))
            else:
                g.e("s_add_u32 %s, %s, %d" % (sr(sTw), sr(sTw), 128 * 2048))
                g.e("s_addc_u32 %s, %s, 0" % (sr(sTw + 1), sr(sTw + 1)))
        it.append(advw)
        return it
    sWb2 = 56
    g.e("s_mov_b64 %s, %s" % (sr(sWb, 2), sr(sWd, 2)))
    g.e("s_add_u32 %s, %s, %d" % (sr(sWb2), sr(sWd), 8 * 2048))
    g.e("s_addc_u32 %s, %s, 0" % (sr(sWb2 + 1), sr(sWd + 1)))

    def wdma(i, j):
        slot = i % WSL
        g.e("s_add_u32 m0, %s, %d" % (sr(sWm0), slot * 4096 + j * 1024))
        g.e("s_nop 0")
        g.vm("global_load_lds_dwordx4 %s, %s" % (vr(vWo + (j >> 1)), sr(sWb2 if j & 1 else sWb, 2)), ("w", i))
        if j == 3:
            if i == NLB - 1:
                g.e("s_mov_b64 %s, %s" % (sr(sWb, 2), sr(sWo, 2)))
                g.e("s_add_u32 %s, %s, %d" % (sr(sWb2), sr(sWo), 8 * 2048))
                g.e("s_addc_u32 %s, %s, 0" % (sr(sWb2 + 1), sr(sWo + 1)))
            else:
                for sb in (sWb, sWb2):
                    g.e("s_add_u32 %s, %s, %d" % (sr(sb), sr(sb), 128 * 2048))
                    g.e("s_addc_u32 %s, %s, 0" % (sr(sb + 1), sr(sb + 1)))
    XEXT = int(os.environ.get("XEXT", "8"))
    xfree = [XR + 4 * k for k in range(XS)] + [BF + 4 * k for k in range(XEXT)]
    xreg = {}
    xnext = [0]
    def xpump(cur):
        out = []
        while xnext[0] < NL * 8:
            f = xnext[0]
            cand = [r for r in xfree if r < BF or f < NLB * 8]
            if not cand:
                break
            if f >= NLB * 8 and not polled[0]:
                if cur + 12 < f:
                    break
                pollcheck(); polled[0] = True
            r = cand[-1] if f < NLB * 8 else cand[0]
            xfree.remove(r)
            xreg[f] = r
            xnext[0] += 1
            xload(f)
    polled = [False]
    def xload(f):
        i, m = divmod(f, 8)
        reg = xreg[f]
        fl = " sc1" if i >= NLB else ""
        tmp = sT + (f % 2)
        g.e("s_add_u32 %s, %s, %s" % (sr(tmp), sr(sXk), sr(sMo + m)))
        g.vm("buffer_load_dwordx4 %s, %s, %s, %s offen%s" % (vr(reg, 4), vr(vL16g), sr(SRD, 4), sr(tmp), fl), ("x", f))
        if m == 7:
            if i == NLB - 1:
                g.e("s_lshl_b32 %s, %s, 10" % (sr(sXk), sr(sW)))
            else:
                g.e("s_add_u32 %s, %s, 4096" % (sr(sXk), sr(sXk)))
    def wread_items(i):
        off = (i % WSL) * 4096
        it = [lambda: g.need(vtags=[("w", i)])]
        for tl in range(4):
            reg = WF + 16 * (i % 2) + 4 * tl
            it.append(lambda reg=reg, tl=tl: g.lds("ds_read_b64_tr_b16 %s, %s offset:%d" % (vr(reg, 2), vr(vWrd + tl), off), ("f", i)))
            it.append(lambda reg=reg, tl=tl: g.lds("ds_read_b64_tr_b16 %s, %s offset:%d" % (vr(reg + 2, 2), vr(vWrd + tl), off + 2048), ("f", i)))
        return it
    def pollcheck():
        lok, lsl = g.newlab("K23_OK"), g.newlab("K23_SL")
        def chk():
            g.e("v_cmp_ne_u32 vcc, 0, %s" % vr(vPoll))
            g.e("v_cmp_ne_u32 %s, 0, %s" % (sr(sT + 3, 2), vr(vPoll + 1)))
            g.e("s_and_b64 %s, %s, vcc" % (sr(sT + 3, 2), sr(sT + 3, 2)))
            g.e("s_cmp_eq_u64 %s, -1" % sr(sT + 3, 2))
        g.need(vtags=[("poll",)])
        chk()
        g.e("s_cbranch_scc1 %s" % lok)
        g.e("s_mov_b32 %s, 0" % sr(sT + 2))
        g.label(lsl)
        g.e("s_add_u32 %s, %s, 1" % (sr(sT + 2), sr(sT + 2)))
        g.e("s_cmp_ge_u32 %s, 0x40000" % sr(sT + 2))
        g.e("s_cbranch_scc1 %s" % lok)
        g.e("s_sleep 4")
        g.e("global_load_dwordx2 %s, %s, %s sc1" % (vr(vPoll, 2), vr(vZ), sr(sWS, 2)))
        g.e("s_waitcnt vmcnt(0)")
        chk()
        g.e("s_cbranch_scc0 %s" % lsl)
        g.label(lok)
        g.e("s_mov_b32 %s, 0x%x" % (sr(sT + 2), G_OFF))
        for rg in range(2):
            g.vm("buffer_load_dword %s, %s, %s, %s offen offset:%d sc1" % (vr(vG + rg), vr(vGo), sr(SRD, 4), sr(sT + 2), rg * 64), ("g",))
    def acc(m, tl): return AC + (m * 4 + tl) * 4
    def reduce_to(dst, first_bar):
        g.e("s_nop 7")
        if first_bar:
            g.e("s_barrier")
        v = WF + 16 * 0
        for j in range(1, 4):
            g.e("v_add_u32 %s, %s, %s" % (vr(vPoll), sr(sRw + j - 1), vr(vL16g)))
            for r in range(2):
                for tl in range(4):
                    g.lds("ds_write_b128 %s, %s offset:%d" % (vr(vPoll), vr(acc(2 * j + r, tl), 4), r * 4096 + tl * 1024), ("rw",))
        g.e("s_waitcnt lgkmcnt(0)"); g.lq = []
        g.e("s_barrier")
        for j in range(1, 4):
            for r in range(2):
                for tl in range(4):
                    g.lds("ds_read_b128 %s, %s offset:%d" % (vr(acc(2 * j + r, tl), 4), vr(vRd), (j - 1) * 8192 + r * 4096 + tl * 1024), ("rr", j))
        for j in range(1, 4):
            g.need(ltags=[("rr", j)])
            for r in range(2):
                for tl in range(4):
                    for p in range(2):
                        d = dst + (r * 4 + tl) * 4 + 2 * p
                        s0 = acc(r, tl) + 2 * p if j == 1 else d
                        g.e("v_pk_add_f32 %s, %s, %s" % (vr(d, 2), vr(s0, 2), vr(acc(2 * j + r, tl) + 2 * p, 2)))
    stamp(g)
    for i in range(WSL - 1):
        for j in range(4):
            wdma(i, j)
        if i == 0 and not FUSED:
            xpump(0)
    if FUSED:
        lnp = g.newlab("K23_NP")
        g.e("s_cmp_lg_u32 %s, 0" % sr(sW))
        g.e("s_cbranch_scc1 %s" % lnp)
        g.e("s_lshr_b32 %s, %s, 1" % (sr(sT), sr(sRB)))
        g.e("s_lshl_b32 %s, %s, 5" % (sr(sT), sr(sT)))
        g.e("s_lshr_b32 %s, s2, 5" % sr(sT + 1))
        g.e("s_sub_u32 %s, %s, 1" % (sr(sT + 1), sr(sT + 1)))
        g.e("s_max_i32 %s, %s, 0" % (sr(sT + 1), sr(sT + 1)))
        g.e("s_min_i32 %s, %s, 6" % (sr(sT + 1), sr(sT + 1)))
        g.e("s_lshl_b32 %s, %s, 5" % (sr(sT + 1), sr(sT + 1)))
        g.e("s_sub_u32 %s, %s, 32" % (sr(sT + 1), sr(sT + 1)))
        g.e("v_lshlrev_b32 %s, 2, v0" % vr(t0))
        g.e("v_add_u32 %s, %s, %s" % (vr(t3), sr(sT + 1), vr(t0)))
        g.e("v_add_u32 %s, %s, %s" % (vr(t0), sr(sT), vr(t0)))
        g.e("v_cmp_lt_u32 vcc, 7, v0")
        g.e("v_and_b32 %s, 7, v0" % vr(t4))
        g.e("v_mov_b32 %s, 0x01010101" % vr(t2))
        g.e("v_cndmask_b32 %s, %s, %s, vcc" % (vr(t0), vr(t0), vr(t3)))
        g.e("v_mov_b32 %s, 0" % vr(t3))
        g.e("v_cndmask_b32 %s, %s, %s, vcc" % (vr(t2), vr(t3), vr(t2)))
        g.e("v_cmp_eq_u32 vcc, 5, %s" % vr(t4))
        g.e("v_and_b32 %s, 0x0000ffff, %s" % (vr(t1), vr(t2)))
        g.e("s_nop 0")
        g.e("v_cndmask_b32 %s, %s, %s, vcc" % (vr(t2), vr(t2), vr(t1)))
        g.e("v_cmp_lt_u32 vcc, 5, %s" % vr(t4))
        g.e("s_nop 1")
        g.e("v_cndmask_b32 %s, %s, %s, vcc" % (vr(t2), vr(t2), vr(t3)))
        k1wait(g, t0, t1, 24, t2)
        g.label(lnp)
    g.e("s_barrier")
    if FUSED:
        rtmark(g, sWS, 3)
        xpump(0)
    for it in wread_items(0):
        it()
    stamp(g)
    for i in range(NL):
        g.c("---- local kblk %d" % i)
        if i in ((8,) if FUSED else (8, 16, 24)):
            stamp(g)
        if i == NLB - 3:
            g.vm("global_load_dwordx2 %s, %s, %s sc1" % (vr(vPoll, 2), vr(vZ), sr(sWS, 2)), ("poll",))
        if i == NLB:
            stamp(g)
            reduce_to(BF, True)
            stamp(g)
        order = []
        if i + WSL - 1 < NL:
            for j in range(4):
                order.append(lambda i=i, j=j: wdma(i + WSL - 1, j))
        order += touch_items(i)
        late = wread_items(i + 1) if i + 1 < NL else []
        g.need(ltags=[("f", i)])
        first = (i == 0 or i == NLB)
        for m in range(8):
            f = i * 8 + m
            if f > 0:
                xfree.append(xreg[f - 1])
            xpump(f)
            g.need(vtags=[("x", f)])
            if m == 4:
                order = late + order
            for tl in range(4):
                a_ = acc(m, tl)
                cin = "0" if first else vr(a_, 4)
                g.e("v_mfma_f32_16x16x32_bf16 %s, %s, %s, %s" % (vr(a_, 4), vr(WF + 16 * (i % 2) + 4 * tl, 4), vr(xreg[f], 4), cin))
                if order:
                    order.pop(0)()
        while order:
            order.pop(0)()
    g.c("---- epilogue")
    stamp(g)
    AF = XR
    reduce_to(AF, True)
    g.need(vtags=[("g",)])
    TM = WF
    for rg in range(2):
        gp, op = TM, TM + 2
        g.e("v_mov_b32 %s, %s" % (vr(gp), vr(vG + rg)))
        g.e("v_mov_b32 %s, %s" % (vr(gp + 1), vr(vG + rg)))
        g.e("v_sub_f32 %s, 1.0, %s" % (vr(op), vr(vG + rg)))
        g.e("v_sub_f32 %s, 1.0, %s" % (vr(op + 1), vr(vG + rg)))
        round_pair(g, op)
        g.e("s_mov_b32 %s, %d" % (sr(sT + rg), rg * 16 * 2048))
        for tl in range(4):
            ob = TM + 8 + 2 * tl
            for pr in range(2):
                a_ = AF + (rg * 4 + tl) * 4 + 2 * pr
                b_ = BF + (rg * 4 + tl) * 4 + 2 * pr
                round_pair(g, a_)
                round_pair(g, b_)
                g.e("v_pk_mul_f32 %s, %s, %s" % (vr(a_, 2), vr(a_, 2), vr(gp, 2)))
                g.e("v_pk_mul_f32 %s, %s, %s" % (vr(b_, 2), vr(b_, 2), vr(op, 2)))
                round_pair(g, a_)
                round_pair(g, b_)
                g.e("v_pk_add_f32 %s, %s, %s" % (vr(a_, 2), vr(a_, 2), vr(b_, 2)))
                g.e("v_cvt_pk_bf16_f32 %s, %s, %s" % (vr(ob + pr), vr(a_), vr(a_ + 1)))
            g.e("buffer_store_dwordx2 %s, %s, %s, %s offen offset:%d" % (vr(ob, 2), vr(vOo), sr(SRDO, 4), sr(sT + rg), tl * 32))
    stamp_end(g, 2)
    g.e("s_endpgm")

    g.label("K23_ATT")
    a = Gen()
    a.nlab = 1000
    def mul2(d, x, y, ys=False):
        for k in range(2):
            if ys:
                a.e("v_mul_f32 %s, %s, %s" % (vr(d + k), sr(y), vr(x + k)))
            else:
                a.e("v_mul_f32 %s, %s, %s" % (vr(d + k), vr(x + k), vr(y + k)))
    def add2(d, x, y):
        for k in range(2):
            a.e("v_add_f32 %s, %s, %s" % (vr(d + k), vr(x + k), vr(y + k)))
    a.nst = g.nst_att if FUSED and STAMP else 1
    a.kidx = g.kidx
    sHd, sMB, sAW = 36, 37, 38
    sMk = 40
    sNneg = 48
    sC, sL2 = 50, 52
    sM0u = 54
    vL16 = 2
    QF = 4
    vI, vQ4, vNI, vKrd, vVrd, vOne, vCnt = 20, 21, 22, 23, 24, 25, 26
    KF, SA, SB, VF, OA, TM = 28, 60, 128, 196, 228, 244
    a.e("s_setprio %s" % os.environ.get("APRIO", "2"))
    a.e("s_sub_u32 %s, %s, 4" % (sr(sAW), sr(sW)))
    a.e("s_and_b32 %s, s2, 7" % sr(sHd))
    a.e("s_lshr_b32 %s, s2, 3" % sr(sT))
    a.e("s_and_b32 %s, %s, 3" % (sr(sT), sr(sT)))
    a.e("s_lshl_b32 %s, %s, 3" % (sr(sT), sr(sT)))
    a.e("s_add_u32 %s, %s, %s" % (sr(sHd), sr(sHd), sr(sT)))
    a.e("s_lshr_b32 %s, s2, 5" % sr(sMB))
    a.e("s_lshl_b32 %s, %s, 4" % (sr(sMB), sr(sMB)))
    a.e("v_lshlrev_b32 %s, 4, v0" % vr(vL16))
    a.e("s_lshl_b32 %s, %s, 2" % (sr(sT), sr(sAW)))
    a.e("s_add_u32 %s, %s, 65536" % (sr(sT), sr(sT)))
    a.e("v_mov_b32 v27, %s" % sr(sT))
    a.e("v_mov_b32 v3, 0")
    a.e("ds_write_b32 v27, v3")
    if FUSED:
        a.e("s_waitcnt lgkmcnt(0)")
        a.raw(";BAR")
    a.e("s_add_u32 %s, %s, %s" % (sr(sT), sr(sMB), sr(sAW)))
    a.e("s_sub_u32 %s, %s, 16" % (sr(sT), sr(sT)))
    a.e("s_lshl_b32 %s, %s, 17" % (sr(sT + 1), sr(sHd)))
    a.e("s_add_u32 %s, %s, 0x%x" % (sr(sT + 1), sr(sT + 1), QKV_OFF + 32 * 128 * 1024))
    a.e("s_lshl_b32 %s, %s, 10" % (sr(sT + 4), sr(sAW)))
    for i in range(8):
        a.e("s_add_u32 %s, %s, %d" % (sr(sT + 2), sr(sT), 4 * i))
        a.e("s_max_i32 %s, %s, 0" % (sr(sT + 2), sr(sT + 2)))
        a.e("s_lshl_b32 %s, %s, 10" % (sr(sT + 2), sr(sT + 2)))
        a.e("s_add_u32 %s, %s, %s" % (sr(sT + 2), sr(sT + 2), sr(sT + 1)))
        a.e("s_add_u32 %s, %s, 0x%x" % (sr(sT + 3), sr(sT + 2), 32 * 128 * 1024))
        a.e("s_add_u32 m0, %s, %d" % (sr(sT + 4), 4096 * i))
        a.e("s_nop 0")
        a.e("buffer_load_dwordx4 %s, %s, %s offen lds" % (vr(vL16), sr(SRD, 4), sr(sT + 2)))
        a.e("s_add_u32 m0, %s, %d" % (sr(sT + 4), 32768 + 4096 * i))
        a.e("s_nop 0")
        a.e("buffer_load_dwordx4 %s, %s, %s offen lds" % (vr(vL16), sr(SRD, 4), sr(sT + 3)))
    if not FUSED:
        a.e("s_waitcnt lgkmcnt(0)")
        a.raw(";BAR")
    a.e("s_lshl_b32 %s, %s, 1" % (sr(sT), sr(sAW)))
    a.e("s_add_u32 %s, %s, %s" % (sr(sM0u), sr(sMB), sr(sT)))
    a.e("s_lshl_b32 %s, %s, 7" % (sr(sT + 2), sr(sHd)))
    a.e("s_add_u32 %s, %s, %s" % (sr(sT + 2), sr(sT + 2), sr(sM0u)))
    a.e("s_lshl_b32 %s, %s, 10" % (sr(sT + 2), sr(sT + 2)))
    a.e("s_add_u32 %s, %s, 0x%x" % (sr(sT + 2), sr(sT + 2), QKV_OFF))
    a.e("s_add_u32 %s, %s, 8192" % (sr(sT + 3), sr(sT + 2)))
    for it in range(2):
        for grp in range(2):
            a.e("buffer_load_dwordx4 %s, %s, %s, %s offen offset:%d" % (vr(QF + 8 * it + 4 * grp, 4), vr(vL16), sr(SRD, 4), sr(sT + 2 + it), 1024 * grp))
    sRow = 56
    a.e("s_lshl_b32 %s, %s, 4" % (sr(sRow), sr(sMB)))
    a.e("s_lshl_b32 %s, %s, 2" % (sr(sT), sr(sHd)))
    a.e("s_add_u32 %s, %s, %s" % (sr(sRow), sr(sRow), sr(sT)))
    a.e("s_add_u32 %s, %s, %s" % (sr(sRow), sr(sRow), sr(sAW)))
    a.e("s_lshl_b32 %s, %s, 11" % (sr(sT), sr(sRow)))
    a.e("v_lshlrev_b32 v3, 5, v0")
    a.e("v_add_u32 v28, %s, v3" % sr(sT))
    a.e("v_add_u32 v29, 0x40000, v28")
    a.e("global_load_dwordx4 v[60:63], v3, %s" % sr(sGW, 2))
    a.e("global_load_dwordx4 v[64:67], v3, %s offset:16" % sr(sGW, 2))
    a.e("global_load_dwordx4 v[68:71], v28, %s" % sr(sX, 2))
    a.e("global_load_dwordx4 v[72:75], v28, %s offset:16" % sr(sX, 2))
    a.e("global_load_dwordx4 v[76:79], v29, %s" % sr(sX, 2))
    a.e("global_load_dwordx4 v[80:83], v29, %s offset:16" % sr(sX, 2))
    a.e("v_and_b32 %s, 15, v0" % vr(vI))
    a.e("v_lshrrev_b32 %s, 4, v0" % vr(vQ4))
    a.e("v_lshlrev_b32 v30, 2, %s" % vr(vQ4))
    for r in range(4):
        a.e("v_add_u32 v31, %d, v30" % r)
        a.e("v_cmp_gt_u32 %s, v31, %s" % (sr(sMk + 2 * r, 2), vr(vI)))
    a.e("v_mov_b32 %s, 0xff800000" % vr(vNI))
    a.e("v_mov_b32 %s, 1" % vr(vOne))
    a.e("s_lshl_b32 %s, %s, 11" % (sr(sT), sr(sAW)))
    a.e("v_add_u32 %s, %s, %s" % (vr(vKrd), sr(sT), vr(vL16)))
    a.e("v_and_b32 v31, 3, %s" % vr(vI))
    a.e("v_lshlrev_b32 v31, 4, v31")
    a.e("v_add_u32 v31, v31, v30")
    a.e("v_lshrrev_b32 v32, 2, %s" % vr(vI))
    a.e("v_add_u32 v31, v31, v32")
    a.e("v_lshlrev_b32 v31, 4, v31")
    a.e("s_add_u32 %s, %s, 32768" % (sr(sT), sr(sT)))
    a.e("v_add_u32 %s, %s, v31" % (vr(vVrd), sr(sT)))
    a.e("s_mov_b32 %s, 0x%x" % (sr(sC), f2u(32 ** -0.5)))
    a.e("s_mov_b32 %s, 0x%x" % (sr(sC + 1), f2u(32 ** -0.5)))
    a.e("s_mov_b32 %s, 0x%x" % (sr(sL2), f2u(LOG2E)))
    a.e("s_mov_b32 %s, 0x%x" % (sr(sL2 + 1), f2u(LOG2E)))
    a.e("s_lshl_b32 %s, %s, 2" % (sr(sT), sr(sRow)))
    a.e("s_add_u32 %s, %s, 0x%x" % (sr(sT), sr(sT), FLAG_OFF))
    a.e("v_mov_b32 %s, %s" % (vr(vCnt), sr(sT)))
    a.e("s_waitcnt vmcnt(0)")
    a.e("ds_write_b32 v27, %s" % vr(vOne))
    a.e("v_mov_b32 v27, 65536")
    a.label("K23_KVW")
    a.e("ds_read_b128 v[28:31], v27")
    a.e("s_waitcnt lgkmcnt(0)")
    a.e("v_and_b32 v28, v28, v29")
    a.e("v_and_b32 v30, v30, v31")
    a.e("v_and_b32 v28, v28, v30")
    a.e("s_nop 0")
    a.e("v_readfirstlane_b32 %s, v28" % sr(sT))
    a.e("s_cmp_eq_u32 %s, 1" % sr(sT))
    a.e("s_cbranch_scc0 K23_KVW")
    stamp(a)
    for it in range(2):
        xb = 68 + 8 * it
        for k in range(8):
            r = 84 + 4 * (k % 2)
            a.e("v_lshlrev_b32 %s, 16, %s" % (vr(r), vr(60 + k)))
            a.e("v_and_b32 %s, 0xffff0000, %s" % (vr(r + 1), vr(60 + k)))
            a.e("v_lshlrev_b32 %s, 16, %s" % (vr(r + 2), vr(xb + k)))
            a.e("v_and_b32 %s, 0xffff0000, %s" % (vr(r + 3), vr(xb + k)))
            mul2(r, r, r + 2)
            round_pair(a, r)
            if k == 0:
                a.e("v_mov_b32 v92, %s" % vr(r))
                a.e("v_mov_b32 v93, %s" % vr(r + 1))
            else:
                add2(92, 92, r)
        a.e("v_add_f32 v92, v92, v93")
        for dp in ("quad_perm:[1,0,3,2]", "quad_perm:[2,3,0,1]", "row_half_mirror", "row_mirror"):
            a.e("s_nop 1")
            a.e("v_add_f32_dpp v92, v92, v92 %s row_mask:0xf bank_mask:0xf" % dp)
        for pl in ("32", "16"):
            a.e("v_mov_b32 v93, v92")
            a.e("s_nop 1")
            a.e("v_permlane%s_swap_b32 v92, v93" % pl)
            a.e("v_add_f32 v92, v92, v93")
        a.e("v_cvt_pk_bf16_f32 v92, 0, v92")
        a.e("v_mul_f32 v92, 0x%x, v92" % f2u(-LOG2E))
        a.e("v_exp_f32 v92, v92")
        a.e("s_nop 0")
        a.e("v_add_f32 v92, 1.0, v92")
        a.e("v_rcp_f32 v92, v92")
        a.e("s_lshl_b32 %s, %s, 2" % (sr(sT), sr(sRow)))
        a.e("v_cvt_pk_bf16_f32 %s, 0, v92" % vr(94 + it))
        a.e("v_mov_b32 v93, 0")
        a.e("s_add_u32 %s, %s, 0x%x" % (sr(sT), sr(sT), G_OFF + 512 * it))
        a.e("s_mov_b64 exec, 1")
        a.e("buffer_store_dword %s, v93, %s, %s offen sc1" % (vr(94 + it), sr(SRD, 4), sr(sT)))
        a.e("s_mov_b64 exec, -1")
    def signal(it):
        a.e("s_waitcnt vmcnt(0)")
        a.e("s_mov_b64 exec, 1")
        a.e("global_store_dword %s, %s, %s offset:%d sc1" % (vr(vCnt), vr(vOne), sr(sWS, 2), 512 * it))
        a.e("s_mov_b64 exec, -1")
    def S(grp, t):
        return SA + 4 * t if grp == 0 else SB + 4 * (t - 1)
    for it in range(2):
        a.lq = []
        stamp(a)
        qf = QF + 8 * it
        lo = 8192 * it
        a.e("s_sub_u32 %s, 16, %s" % (sr(sNneg), sr(sM0u)))
        a.e("s_max_i32 %s, %s, 0" % (sr(sNneg), sr(sNneg)))
        def kread(t):
            a.lds("ds_read_b128 %s, %s offset:%d" % (vr(KF + 4 * (t % 8), 4), vr(vKrd), lo + t * 1024), ("k", t))
        for t in range(6):
            kread(t)
        for t in range(18):
            if t + 6 < 18:
                kread(t + 6)
            a.need(ltags=[("k", t)])
            kreg = KF + 4 * (t % 8)
            if t <= 16:
                a.e("v_mfma_f32_16x16x32_bf16 %s, %s, %s, 0" % (vr(S(0, t), 4), vr(kreg, 4), vr(qf, 4)))
            if t >= 1:
                a.e("v_mfma_f32_16x16x32_bf16 %s, %s, %s, 0" % (vr(S(1, t), 4), vr(kreg, 4), vr(qf + 4, 4)))
        def vread(j, d):
            n = j * 2 + d
            reg = VF + 4 * (n % 8)
            a.lds("ds_read_b64_tr_b16 %s, %s offset:%d" % (vr(reg, 2), vr(vVrd), lo + (2 * j) * 1024 + 8 * d), ("v", n))
            a.lds("ds_read_b64_tr_b16 %s, %s offset:%d" % (vr(reg + 2, 2), vr(vVrd), lo + (2 * j + 1) * 1024 + 8 * d), ("v", n))
        for n in range(6):
            vread(n // 2, n % 2)
        a.e("s_nop 7")
        for (grp, t, gt) in ((0, 0, True), (0, 16, False), (1, 1, True), (1, 17, False)):
            for r in range(4):
                x = S(grp, t) + r
                if gt:
                    a.e("v_cndmask_b32 %s, %s, %s, %s" % (vr(x), vr(vNI), vr(x), sr(sMk + 2 * r, 2)))
                else:
                    a.e("v_cndmask_b32 %s, %s, %s, %s" % (vr(x), vr(x), vr(vNI), sr(sMk + 2 * r, 2)))
        a.raw(";NOBAR")
        lneg = "K23_NEG%d" % it
        for t in range(16):
            a.e("s_cmp_le_u32 %s, %d" % (sr(sNneg), t))
            a.e("s_cbranch_scc1 %s" % lneg)
            for r in range(4):
                a.e("v_mov_b32 %s, %s" % (vr(S(0, t) + r), vr(vNI)))
            if t >= 1:
                for r in range(4):
                    a.e("v_mov_b32 %s, %s" % (vr(S(1, t) + r), vr(vNI)))
        a.label(lneg)
        a.raw(";BAROK")
        stamp(a)
        if it == 1:
            signal(0)
            stamp(a)
        for grp in range(2):
            base = SA if grp == 0 else SB
            m0_, m1_ = TM, TM + 1
            a.e("v_max3_f32 %s, %s, %s, %s" % (vr(m0_), vr(base), vr(base + 1), vr(base + 2)))
            a.e("v_max3_f32 %s, %s, %s, %s" % (vr(m1_), vr(base + 3), vr(base + 4), vr(base + 5)))
            i = 6; tog = 0
            while i + 1 < 68:
                mm = m0_ if tog == 0 else m1_
                a.e("v_max3_f32 %s, %s, %s, %s" % (vr(mm), vr(mm), vr(base + i), vr(base + i + 1)))
                i += 2; tog ^= 1
            a.e("v_max_f32 %s, %s, %s" % (vr(m0_), vr(m0_), vr(m1_)))
            for pl in ("32", "16"):
                a.e("v_mov_b32 %s, %s" % (vr(m1_), vr(m0_)))
                a.e("s_nop 1")
                a.e("v_permlane%s_swap_b32 %s, %s" % (pl, vr(m0_), vr(m1_)))
                a.e("v_max_f32 %s, %s, %s" % (vr(m0_), vr(m0_), vr(m1_)))
            a.e("v_cvt_pk_bf16_f32 %s, 0, %s" % (vr(m0_), vr(m0_)))
            a.e("v_mul_f32 %s, %s, %s" % (vr(m0_), sr(sC), vr(m0_)))
            a.e("v_cvt_pk_bf16_f32 %s, 0, %s" % (vr(m0_), vr(m0_)))
            a.e("v_mul_f32 %s, %s, %s" % (vr(m0_), sr(sL2), vr(m0_)))
            a.e("v_sub_f32 %s, 0, %s" % (vr(m0_), vr(m0_)))
            a.e("v_mov_b32 %s, %s" % (vr(m1_), vr(m0_)))
            sm = TM + 4
            for p in range(34):
                x = base + 2 * p
                round_pair(a, x)
                mul2(x, x, sC, True)
                round_pair(a, x)
                a.e("v_fma_f32 %s, %s, %s, %s" % (vr(x), vr(x), sr(sL2), vr(m0_)))
                a.e("v_fma_f32 %s, %s, %s, %s" % (vr(x + 1), vr(x + 1), sr(sL2), vr(m0_)))
                a.e("v_exp_f32 %s, %s" % (vr(x), vr(x)))
                a.e("v_exp_f32 %s, %s" % (vr(x + 1), vr(x + 1)))
                if p >= 1:
                    pa = base + 2 * (p - 1)
                    ss = sm + 2 * ((p - 1) % 2)
                    if p - 1 < 2:
                        a.e("v_mov_b32 %s, %s" % (vr(ss), vr(pa)))
                        a.e("v_mov_b32 %s, %s" % (vr(ss + 1), vr(pa + 1)))
                    else:
                        add2(ss, ss, pa)
            a.e("s_nop 0")
            pa = base + 2 * 33
            add2(sm + 2, sm + 2, pa)
            add2(sm, sm, sm + 2)
            a.e("v_add_f32 %s, %s, %s" % (vr(sm), vr(sm), vr(sm + 1)))
            for pl in ("32", "16"):
                a.e("v_mov_b32 %s, %s" % (vr(sm + 1), vr(sm)))
                a.e("s_nop 1")
                a.e("v_permlane%s_swap_b32 %s, %s" % (pl, vr(sm), vr(sm + 1)))
                a.e("v_add_f32 %s, %s, %s" % (vr(sm), vr(sm), vr(sm + 1)))
            a.e("v_rcp_f32 %s, %s" % (vr(sm), vr(sm)))
            a.e("s_nop 0")
            a.e("v_mov_b32 %s, %s" % (vr(sm + 1), vr(sm)))
            for ti in (range(17) if grp == 0 else range(16, -1, -1)):
                x = base + 4 * ti
                mul2(x, x, sm)
                mul2(x + 2, x + 2, sm)
                t = ti if grp == 0 else ti + 1
                j, h = t // 2, t % 2
                dst = base + 8 * j + 2 * h
                a.e("v_cvt_pk_bf16_f32 %s, %s, %s" % (vr(TM + 8), vr(x), vr(x + 1)))
                a.e("v_cvt_pk_bf16_f32 %s, %s, %s" % (vr(dst + 1), vr(x + 2), vr(x + 3)))
                a.e("v_mov_b32 %s, %s" % (vr(dst), vr(TM + 8)))
            if grp == 0:
                a.e("v_mov_b32 %s, 0" % vr(SA + 66))
                a.e("v_mov_b32 %s, 0" % vr(SA + 67))
        a.e("v_mov_b32 %s, 0" % vr(SB))
        a.e("v_mov_b32 %s, 0" % vr(SB + 1))
        stamp(a)
        a.e("s_nop 1")
        for n in range(18):
            j, d = n // 2, n % 2
            if n + 6 < 18:
                vread((n + 6) // 2, (n + 6) % 2)
            a.need(ltags=[("v", n)])
            vreg = VF + 4 * (n % 8)
            for grp in range(2):
                o = OA + 8 * grp + 4 * d
                pf = (SA if grp == 0 else SB) + 8 * j
                cin = "0" if j == 0 else vr(o, 4)
                a.e("v_mfma_f32_16x16x32_bf16 %s, %s, %s, %s" % (vr(o, 4), vr(vreg, 4), vr(pf, 4), cin))
        a.e("s_mul_i32 %s, %s, %d" % (sr(sT), sr(sM0u), NKB))
        a.e("s_add_u32 %s, %s, %s" % (sr(sT), sr(sT), sr(sHd)))
        a.e("s_lshl_b32 %s, %s, 10" % (sr(sT), sr(sT)))
        a.e("s_add_u32 %s, %s, %d" % (sr(sT + 1), sr(sT), NKB * 1024))
        a.e("s_nop 7")
        for grp in range(2):
            o = OA + 8 * grp
            for k in range(4):
                a.e("v_cvt_pk_bf16_f32 %s, %s, %s" % (vr(TM + 4 * grp + k), vr(o + 2 * k), vr(o + 2 * k + 1)))
            a.e("buffer_store_dwordx4 %s, %s, %s, %s offen sc1" % (vr(TM + 4 * grp, 4), vr(vL16), sr(SRD, 4), sr(sT + grp)))
        a.e("s_add_u32 %s, %s, 8" % (sr(sM0u), sr(sM0u)))
    stamp(a)
    signal(1)
    if STAMP:
        a.raw(";NOBAR")
        stamp_end(a, 2, 1)
        a.raw(";BAROK")
    PACE = int(os.environ.get("PACE", "64"))
    out = []; nb = 0; cnt = 0; pace = False; ok = True
    for l in a.lines:
        if l == ";BAR":
            out.append("    s_barrier"); nb += 1; cnt = 0; continue
        if l == ";PACE": pace = True; cnt = 0; continue
        if l == ";NOBAR": ok = False; continue
        if l == ";BAROK": ok = True; continue
        out.append(l)
        if pace and not l.endswith(":"):
            cnt += 1
            if ok and cnt >= PACE:
                out.append("    s_barrier"); nb += 1; cnt = 0
    sys.stderr.write("attention barriers used %d of %d\n" % (nb, NBAR))
    assert nb == 1
    g.lines += out
    g.label("K23_END")
    g.e("s_endpgm")
    return name

def main():
    hdr = []
    ref = open("cdna_kernels/%s.s.ref" % NAME).read().splitlines()
    for l in ref:
        if l.startswith(";") and "@launch" not in l:
            hdr.append(l)
        elif not l.startswith(";"):
            break
    if FUSED:
        hdr.append("; @launch kernel=%s_kernel grid=(256,1,1) block=(512,1,1) lds=163840" % NAME)
    else:
        hdr.append("; @launch kernel=k1_gemm1_kernel grid=(256,1,1) block=(512,1,1) lds=147456")
        hdr.append("; @launch kernel=k23_kernel grid=(256,1,1) block=(512,1,1) lds=163840")
    g = Gen()
    g.raw('.amdgcn_target "amdgcn-amd-amdhsa--gfx950"')
    g.raw(".text")
    k1 = gen_k1(g)
    k23 = gen_k23(g)
    out = "\n".join(hdr) + "\n" + "\n".join(g.lines) + "\n"
    sg = lambda n: 102 if STAMP else n
    out += kd(k1, 256, sg(80), 256)
    if not FUSED:
        out += kd(k23, 256, sg(72), 256)
    path = sys.argv[1] if len(sys.argv) > 1 else "cdna_kernels/%s.s" % NAME
    open(path, "w").write(out)

if __name__ == "__main__":
    main()
```

```python
import sys, struct

NAME = "gated_mix__sliding_block__geglu_ffn__prompt"

A2_OFF = 0
NKB = 144
QKV_OFF = 0x1400000
G_OFF = 0x2400000
FLAG_OFF = 0x2404000
WS_BYTES = 0x10000000

def f2u(x):
    return struct.unpack("<I", struct.pack("<f", x))[0]

class Gen:
    def __init__(self):
        self.lines = []
        self.lq = []
        self.vq = []
        self.nlab = 0
    def e(self, s):
        self.lines.append("    " + s)
    def c(self, s):
        self.lines.append("    ; " + s)
    def label(self, s):
        self.lines.append(s + ":")
    def newlab(self, p="L"):
        self.nlab += 1
        return "%s_%d" % (p, self.nlab)
    def raw(self, s):
        self.lines.append(s)
    def lds(self, s, tag):
        self.e(s); self.lq.append(tag)
    def vm(self, s, tag):
        self.e(s); self.vq.append(tag)
    def _need(self, q, tags):
        last = -1
        for i, t in enumerate(q):
            if t in tags:
                last = i
        if last < 0:
            return None
        return len(q) - 1 - last, last
    def need(self, ltags=(), vtags=()):
        w = []
        r = self._need(self.lq, set(ltags))
        if r is not None:
            n, last = r
            if n > 15:
                n = 15
                last = len(self.lq) - 1 - 15
            self.lq = self.lq[last + 1:]
            w.append("lgkmcnt(%d)" % n)
        r = self._need(self.vq, set(vtags))
        if r is not None:
            n, last = r
            if n > 63:
                n = 63
                last = len(self.vq) - 1 - 63
            self.vq = self.vq[last + 1:]
            w.insert(0, "vmcnt(%d)" % n)
        if w:
            self.e("s_waitcnt " + " ".join(w))
    def waitall(self):
        self.e("s_waitcnt vmcnt(0) lgkmcnt(0)")
        self.lq = []; self.vq = []

def vr(a, n=1):
    return "v%d" % a if n == 1 else "v[%d:%d]" % (a, a + n - 1)
def sr(a, n=1):
    return "s%d" % a if n == 1 else "s[%d:%d]" % (a, a + n - 1)

def kd(name, vgpr, sgpr, accum):
    return """.section .rodata,"a"
.p2align 6
.amdhsa_kernel %s
  .amdhsa_next_free_vgpr %d
  .amdhsa_next_free_sgpr %d
  .amdhsa_accum_offset %d
  .amdhsa_group_segment_fixed_size 0
  .amdhsa_kernarg_size 88
  .amdhsa_user_sgpr_count 2
  .amdhsa_user_sgpr_kernarg_segment_ptr 1
  .amdhsa_system_sgpr_workgroup_id_x 1
.end_amdhsa_kernel
.text
""" % (name, vgpr, sgpr, accum)

import os
STAMP = bool(os.environ.get("STAMP"))
ABL = os.environ.get("ABL", "").split(",")
FUSED = os.environ.get("FUSED", "0") == "1"
STF = os.environ.get("STF", "sc1" if FUSED else "")
def stamp_begin(g):
    if not STAMP: return
    g.nst = 1
    g.e("s_memtime s[74:75]")
    g.e("s_memrealtime s[98:99]")
def stamp(g, force=False):
    if not STAMP: return
    if g.nst >= 10 and not force: return
    g.e("s_memtime s[%d:%d]" % (74 + 2 * g.nst, 75 + 2 * g.nst))
    g.nst += 1
def stamp_end(g, tmpv=0, slot=0):
    if not STAMP: return
    lab = g.newlab("STP")
    tmpv = 32
    stamp(g, True)
    g.e("s_waitcnt vmcnt(0) lgkmcnt(0)")
    stamp(g, True)
    g.e("s_memrealtime s[100:101]")
    g.e("s_load_dwordx2 s[72:73], s[0:1], 80")
    g.e("s_waitcnt lgkmcnt(0)")
    g.e("s_mov_b64 exec, 1")
    g.e("v_mov_b32 v60, s98")
    g.e("v_mov_b32 v61, s100")
    g.e("s_lshl_b32 s3, s2, 3")
    g.e("s_add_u32 s3, s3, 0x%x" % (0x2410000 + 0x1000 * g.kidx + 0x800 * slot))
    g.e("v_mov_b32 v62, s3")
    g.e("global_store_dwordx2 v62, v[60:61], s[72:73]")
    g.e("s_cmp_lg_u32 s2, %s" % os.environ.get("STWG", "0"))
    g.e("s_cbranch_scc1 %s" % lab)
    g.e("s_mov_b64 exec, 1")
    g.e("s_sub_u32 s100, s100, s98")
    g.e("v_mov_b32 %s, s100" % vr(tmpv))
    for i in range(1, g.nst):
        g.e("s_sub_u32 s100, s%d, s74" % (74 + 2 * i))
        g.e("v_mov_b32 %s, s100" % vr(tmpv + i))
    g.e("s_load_dwordx2 s[100:101], s[0:1], 72")
    g.e("v_mov_b32 %s, %d" % (vr(tmpv + 15), 256 + 64 * slot))
    g.e("s_waitcnt lgkmcnt(0)")
    for i in range(g.nst):
        g.e("global_store_dword %s, %s, s[100:101] offset:%d" % (vr(tmpv + 15), vr(tmpv + i), 4 * i))
    g.label(lab)

def rtmark(g, sws, idx):
    if not STAMP: return
    g.e("s_memrealtime s[100:101]")
    g.e("s_waitcnt lgkmcnt(0)")
    g.e("s_mov_b64 exec, 1")
    g.e("v_mov_b32 v60, s100")
    g.e("s_lshl_b32 s3, s2, 3")
    g.e("s_add_u32 s3, s3, 0x%x" % (0x2410000 + 0x1000 * idx))
    g.e("v_mov_b32 v62, s3")
    g.e("global_store_dword v62, v60, %s" % sr(sws, 2))
    g.e("s_mov_b64 exec, -1")

def kstart(g, name):
    g.kidx = getattr(g, "kidx", -1) + 1
    g.raw(".globl %s" % name)
    g.raw(".p2align 8")
    g.raw(".type %s,@function" % name)
    g.label(name)

LOG2E = 1.4426950408889634
GK1 = -2.0 * LOG2E * 0.7978845608028654
GK2 = GK1 * 0.044715

def round_pair(g, a, tmp=None):
    g.e("v_cvt_pk_bf16_f32 %s, 0, %s" % (vr(a), vr(a)))
    g.e("v_cvt_pk_bf16_f32 %s, 0, %s" % (vr(a + 1), vr(a + 1)))

def gen_k1(g):
    name = NAME + "_kernel" if FUSED else "k1_gemm1_kernel"
    kstart(g, name)
    NST = 32
    D = int(os.environ.get("KD", "4"))
    DG = int(os.environ.get("DG", "0"))
    XG = int(os.environ.get("XG", "2"))
    BMID = int(os.environ.get("BMID", "1"))
    WSL = 8
    XBASE = 81920
    vXo = 2
    vWp = 4
    vWs = 10
    vXrd = 13
    vWrd = 14
    vL16 = 24
    XF = 32
    WF = 64
    ACC = 96
    def acc(t, rg): return ACC + (t * 4 + rg) * 4
    sX, sQ, sG, sU, sWS = 4, 6, 8, 10, 12
    sRB, sCB, sW, sWM, sWN = 14, 15, 16, 17, 18
    sXm0, sWm0, sWm0h = 19, 20, 21
    sN1, sColF, sColQA, sColQB = 22, 23, 24, 25
    sT = 26
    SRD = 40
    g.e("s_cmp_ge_u32 s2, %d" % (0 if "k1empty" in ABL else 256))
    g.e("s_cbranch_scc1 %s" % ("K23_END" if FUSED else "K1_END"))
    stamp_begin(g)
    g.e("s_load_dwordx2 %s, s[0:1], 0" % sr(sX, 2))
    g.e("s_load_dwordx2 %s, s[0:1], 8" % sr(sQ, 2))
    g.e("s_load_dwordx4 %s, s[0:1], 32" % sr(sG, 4))
    g.e("s_load_dwordx2 %s, s[0:1], 80" % sr(sWS, 2))
    g.e("s_load_dwordx2 s[56:57], s[0:1], 16")
    g.e("s_load_dwordx2 s[58:59], s[0:1], 48")
    g.e("s_load_dwordx2 s[54:55], s[0:1], 56")
    g.e("s_and_b32 %s, s2, 7" % sr(sT))
    g.e("s_lshr_b32 %s, s2, 3" % sr(sT + 1))
    g.e("s_and_b32 %s, s2, 31" % sr(sCB))
    g.e("s_lshr_b32 %s, %s, 2" % (sr(sRB), sr(sT + 1)))
    g.e("v_lshrrev_b32 v1, 6, v0")
    g.e("v_and_b32 v0, 63, v0")
    g.e("v_readfirstlane_b32 %s, v1" % sr(sW))
    g.e("s_and_b32 %s, %s, 3" % (sr(sWM), sr(sW)))
    g.e("s_lshr_b32 %s, %s, 2" % (sr(sWN), sr(sW)))
    g.e("v_lshlrev_b32 %s, 4, v0" % vr(vL16))
    if os.environ.get("CPF"):
        g.e("s_getpc_b64 s[26:27]")
        g.label("K1_PC")
        g.e("s_lshl_b32 s28, %s, 12" % sr(sW))
        g.e("v_lshlrev_b32 v30, 6, v0")
        g.e("v_add_u32 v30, s28, v30")
        g.e("v_min_u32 v30, K1_END - K1_PC, v30")
        g.e("global_load_dword v31, v30, s[26:27]")
    g.e("s_lshl_b32 %s, %s, 11" % (sr(sXm0), sr(sW)))
    g.e("s_add_u32 %s, %s, %d" % (sr(sXm0), sr(sXm0), XBASE))
    g.e("s_lshl_b32 %s, %s, 10" % (sr(sWm0), sr(sW)))
    g.e("s_lshl_b32 %s, %s, 9" % (sr(sWm0h), sr(sW)))
    g.e("s_mul_i32 %s, %s, 160" % (sr(sColF), sr(sCB)))
    g.e("s_mul_i32 %s, %s, 320" % (sr(sColQA), sr(sCB)))
    g.e("s_sub_u32 %s, %s, %d" % (sr(sColQA), sr(sColQA), 320 * 23 - 192))
    g.e("s_add_u32 %s, %s, 160" % (sr(sColQB), sr(sColQA)))
    g.e("s_mov_b32 %s, 0" % sr(sN1))
    g.e("s_cmp_eq_u32 %s, 22" % sr(sCB))
    g.e("s_cselect_b32 %s, -64, %s" % (sr(sColQA), sr(sColQA)))
    g.e("s_cselect_b32 %s, 32, %s" % (sr(sColQB), sr(sColQB)))
    g.e("s_cselect_b32 %s, 8, %s" % (sr(sN1), sr(sN1)))
    g.e("s_cmp_lt_u32 %s, 22" % sr(sCB))
    g.e("s_cselect_b32 %s, 20, %s" % (sr(sN1), sr(sN1)))
    t0, t1, t2, t3, t4, t5, t6, t7, t8, t9 = range(XF, XF + 10)
    g.e("v_lshrrev_b32 %s, 2, v0" % vr(t0))
    g.e("v_lshrrev_b32 %s, 4, v0" % vr(t1))
    g.e("v_and_b32 %s, 2, %s" % (vr(t1), vr(t1)))
    g.e("v_and_b32 %s, 3, v0" % vr(t2))
    g.e("v_xor_b32 %s, %s, %s" % (vr(t2), vr(t2), vr(t1)))
    g.e("s_lshl_b32 %s, %s, 8" % (sr(sT), sr(sRB)))
    g.e("s_lshl_b32 %s, %s, 5" % (sr(sT + 1), sr(sW)))
    g.e("s_add_u32 %s, %s, %s" % (sr(sT), sr(sT), sr(sT + 1)))
    g.e("v_add_u32 %s, %s, %s" % (vr(t0), sr(sT), vr(t0)))
    g.e("v_lshlrev_b32 %s, 11, %s" % (vr(t0), vr(t0)))
    g.e("v_lshl_add_u32 %s, %s, 4, %s" % (vr(vXo), vr(t2), vr(t0)))
    g.e("v_add_u32 %s, 0x8000, %s" % (vr(vXo + 1), vr(vXo)))
    g.e("s_lshl_b32 s53, s2, 3")
    g.e("s_add_u32 s53, s53, %s" % sr(sW))
    g.e("s_lshl_b32 %s, s53, 11" % sr(sT))
    g.e("v_lshlrev_b32 v96, 5, v0")
    g.e("v_add_u32 v97, %s, v96" % sr(sT))
    g.e("s_waitcnt lgkmcnt(0)")
    def xdma0(st):
        for idx in range(2):
            g.e("s_add_u32 m0, %s, %d" % (sr(sXm0), (st % 4) * 16384 + idx * 1024 - st * 64))
            g.e("s_nop 0")
            g.vm("global_load_lds_dwordx4 %s, %s offset:%d" % (vr(vXo + idx), sr(sX, 2), st * 64), ("dma", st))
    xdma0(0)
    g.e("s_waitcnt lgkmcnt(0)")
    for n in range(3):
        if n < 2:
            g.e("s_lshl_b32 %s, %s, 6" % (sr(sT), sr(sW)))
            g.e("s_add_u32 %s, %s, %d" % (sr(sT), sr(sT), 512 * n))
            g.e("v_add_u32 %s, %s, v0" % (vr(t0), sr(sT)))
        else:
            g.e("s_lshl_b32 %s, %s, 5" % (sr(sT), sr(sW)))
            g.e("s_add_u32 %s, %s, 1024" % (sr(sT), sr(sT)))
            g.e("v_and_b32 %s, 31, v0" % vr(t0))
            g.e("v_add_u32 %s, %s, %s" % (vr(t0), sr(sT), vr(t0)))
        g.e("v_mul_u32_u24 %s, 52429, %s" % (vr(t1), vr(t0)))
        g.e("v_lshrrev_b32 %s, 21, %s" % (vr(t1), vr(t1)))
        g.e("v_mul_u32_u24 %s, 40, %s" % (vr(t2), vr(t1)))
        g.e("v_sub_u32 %s, %s, %s" % (vr(t2), vr(t0), vr(t2)))
        g.e("v_bfe_u32 %s, %s, 1, 1" % (vr(t3), vr(t1)))
        g.e("v_lshrrev_b32 %s, 2, %s" % (vr(t4), vr(t1)))
        g.e("v_and_b32 %s, 2, %s" % (vr(t4), vr(t4)))
        g.e("v_or_b32 %s, %s, %s" % (vr(t3), vr(t3), vr(t4)))
        g.e("v_lshlrev_b32 %s, 1, %s" % (vr(t3), vr(t3)))
        g.e("v_xor_b32 %s, %s, %s" % (vr(t2), vr(t2), vr(t3)))
        g.e("v_cmp_le_u32 vcc, 20, %s" % vr(t2))
        g.e("v_subrev_u32 %s, 20, %s" % (vr(t3), vr(t2)))
        g.e("s_nop 1")
        g.e("v_cndmask_b32 %s, %s, %s, vcc" % (vr(t2), vr(t2), vr(t3)))
        g.e("v_mov_b32 %s, %s" % (vr(t3), sr(sG)))
        g.e("v_mov_b32 %s, %s" % (vr(t4), sr(sU)))
        g.e("v_cndmask_b32 %s, %s, %s, vcc" % (vr(t3), vr(t3), vr(t4)))
        g.e("v_mov_b32 %s, %s" % (vr(t4), sr(sG + 1)))
        g.e("v_mov_b32 %s, %s" % (vr(t5), sr(sU + 1)))
        g.e("v_cndmask_b32 %s, %s, %s, vcc" % (vr(t4), vr(t4), vr(t5)))
        g.e("v_mov_b32 %s, %s" % (vr(t5), sr(sColQA)))
        g.e("v_mov_b32 %s, %s" % (vr(t6), sr(sColQB)))
        g.e("v_cndmask_b32 %s, %s, %s, vcc" % (vr(t5), vr(t5), vr(t6)))
        g.e("v_cmp_gt_u32 vcc, %s, %s" % (sr(sN1), vr(t2)))
        g.e("v_mov_b32 %s, %s" % (vr(t6), sr(sQ)))
        g.e("v_mov_b32 %s, %s" % (vr(t7), sr(sQ + 1)))
        g.e("v_cndmask_b32 %s, %s, %s, vcc" % (vr(t3), vr(t6), vr(t3)))
        g.e("v_cndmask_b32 %s, %s, %s, vcc" % (vr(t4), vr(t7), vr(t4)))
        g.e("v_mov_b32 %s, %s" % (vr(t6), sr(sColF)))
        g.e("v_cndmask_b32 %s, %s, %s, vcc" % (vr(t5), vr(t5), vr(t6)))
        g.e("v_mov_b32 %s, 6144" % vr(t6))
        g.e("v_mov_b32 %s, 7168" % vr(t7))
        g.e("v_cndmask_b32 %s, %s, %s, vcc" % (vr(t6), vr(t6), vr(t7)))
        g.e("v_lshl_add_u32 %s, %s, 3, %s" % (vr(t5), vr(t2), vr(t5)))
        g.e("v_mul_u32_u24 %s, %s, %s" % (vr(t7), vr(t1), vr(t6)))
        g.e("v_lshl_add_u32 %s, %s, 1, %s" % (vr(t7), vr(t5), vr(t7)))
        g.e("v_add_co_u32 %s, vcc, %s, %s" % (vr(vWp + 2 * n), vr(t3), vr(t7)))
        g.e("v_addc_co_u32 %s, vcc, 0, %s, vcc" % (vr(vWp + 2 * n + 1), vr(t4)))
        g.e("v_lshlrev_b32 %s, 5, %s" % (vr(vWs + n), vr(t6)))
        if n < 2:
            g.e("s_add_u32 m0, %s, %d" % (sr(sWm0), n * 8192))
            g.e("s_nop 0")
            g.vm("global_load_lds_dwordx4 %s, off" % vr(vWp + 2 * n, 2), ("dma", 0))
        else:
            g.e("s_add_u32 m0, %s, %d" % (sr(sWm0h), 16384))
            g.e("s_mov_b32 exec_hi, 0")
            g.vm("global_load_lds_dwordx4 %s, off" % vr(vWp + 2 * n, 2), ("dma", 0))
            g.e("s_mov_b32 exec_hi, -1")
        g.e("v_add_co_u32 %s, vcc, %s, %s" % (vr(vWp + 2 * n), vr(vWp + 2 * n), vr(vWs + n)))
        g.e("v_addc_co_u32 %s, vcc, 0, %s, vcc" % (vr(vWp + 2 * n + 1), vr(vWp + 2 * n + 1)))
    g.e("v_and_b32 %s, 15, v0" % vr(t0))
    g.e("v_lshrrev_b32 %s, 4, v0" % vr(t1))
    g.e("v_lshrrev_b32 %s, 2, %s" % (vr(t2), vr(t0)))
    g.e("v_and_b32 %s, 2, %s" % (vr(t2), vr(t2)))
    g.e("v_xor_b32 %s, %s, %s" % (vr(t2), vr(t2), vr(t1)))
    g.e("v_lshlrev_b32 %s, 6, %s" % (vr(t3), vr(t0)))
    g.e("v_lshl_add_u32 %s, %s, 4, %s" % (vr(t3), vr(t2), vr(t3)))
    g.e("s_lshl_b32 %s, %s, 12" % (sr(sT), sr(sWM)))
    g.e("s_add_u32 %s, %s, %d" % (sr(sT), sr(sT), XBASE))
    g.e("v_add_u32 %s, %s, %s" % (vr(vXrd), sr(sT), vr(t3)))
    g.e("v_lshrrev_b32 %s, 2, %s" % (vr(t2), vr(t0)))
    g.e("v_lshl_add_u32 %s, %s, 3, %s" % (vr(t2), vr(t1), vr(t2)))
    g.e("v_mul_u32_u24 %s, 640, %s" % (vr(t2), vr(t2)))
    g.e("v_and_b32 %s, 3, %s" % (vr(t3), vr(t0)))
    g.e("v_lshl_add_u32 %s, %s, 3, %s" % (vr(t2), vr(t3), vr(t2)))
    g.e("v_bfe_u32 %s, %s, 3, 1" % (vr(t3), vr(t0)))
    g.e("v_and_b32 %s, 1, %s" % (vr(t4), vr(t1)))
    g.e("v_lshl_or_b32 %s, %s, 1, %s" % (vr(t3), vr(t4), vr(t3)))
    g.e("s_mul_i32 %s, %s, 6" % (sr(sT), sr(sWN)))
    g.e("s_add_u32 %s, %s, 4" % (sr(sT + 1), sr(sWN)))
    for j in range(5):
        for hf in range(2):
            if j < 4:
                g.e("s_add_u32 %s, %s, %d" % (sr(sT + 2), sr(sT), j + 10 * hf))
            else:
                g.e("s_add_u32 %s, %s, %d" % (sr(sT + 2), sr(sT + 1), 10 * hf))
            g.e("v_xor_b32 %s, %s, %s" % (vr(t4), sr(sT + 2), vr(t3)))
            g.e("v_lshl_add_u32 %s, %s, 5, %s" % (vr(vWrd + j + 5 * hf), vr(t4), vr(t2)))
    g.e("s_mov_b32 %s, %s" % (sr(SRD), sr(sWS)))
    g.e("s_and_b32 %s, %s, 0xffff" % (sr(SRD + 1), sr(sWS + 1)))
    g.e("s_mov_b32 %s, 0x%x" % (sr(SRD + 2), WS_BYTES))
    g.e("s_mov_b32 %s, 0x00020000" % sr(SRD + 3))

    TP = int(os.environ.get("TP", "0"))
    sTp, sTi = 60, 66
    if TP:
        g.e("s_lshl_b32 %s, s2, 3" % sr(sT))
        g.e("s_add_u32 %s, %s, %s" % (sr(sT), sr(sT), sr(sW)))
        g.e("s_mul_i32 %s, %s, 3" % (sr(sT), sr(sT)))
        for j in range(3):
            p, ie, io = sTp + 2 * j, sTi + 2 * j, sTi + 2 * j + 1
            l1, l2, l3, le = g.newlab("K1_T"), g.newlab("K1_T"), g.newlab("K1_T"), g.newlab("K1_T")
            g.e("s_add_u32 %s, %s, %d" % (sr(sT + 1), sr(sT), j))
            g.e("s_cmp_ge_u32 %s, 1536" % sr(sT + 1))
            g.e("s_cbranch_scc1 %s" % l1)
            g.e("s_lshl_b32 %s, %s, 7" % (sr(sT + 2), sr(sT + 1)))
            g.e("s_add_u32 %s, %s, %d" % (sr(sT + 2), sr(sT + 2), TP * 32 * 6144))
            g.e("s_add_u32 %s, %s, %s" % (sr(p), sr(sQ), sr(sT + 2)))
            g.e("s_addc_u32 %s, %s, 0" % (sr(p + 1), sr(sQ + 1)))
            g.e("s_mov_b32 %s, %d" % (sr(ie), 32 * 6144))
            g.e("s_mov_b32 %s, %d" % (sr(io), 32 * 6144))
            g.e("s_branch %s" % le)
            g.label(l1)
            g.e("s_cmp_ge_u32 %s, 3328" % sr(sT + 1))
            g.e("s_cbranch_scc1 %s" % l2)
            g.e("s_sub_u32 %s, %s, 1536" % (sr(sT + 2), sr(sT + 1)))
            g.e("s_lshl_b32 %s, %s, 7" % (sr(sT + 2), sr(sT + 2)))
            g.e("s_add_u32 %s, %s, %d" % (sr(sT + 2), sr(sT + 2), TP * 32 * 7168))
            g.e("s_add_u32 %s, %s, %s" % (sr(p), sr(sG), sr(sT + 2)))
            g.e("s_addc_u32 %s, %s, 0" % (sr(p + 1), sr(sG + 1)))
            g.e("s_mov_b32 %s, %d" % (sr(ie), 32 * 7168))
            g.e("s_mov_b32 %s, %d" % (sr(io), 32 * 7168))
            g.e("s_branch %s" % le)
            g.label(l2)
            g.e("s_cmp_ge_u32 %s, 5120" % sr(sT + 1))
            g.e("s_cbranch_scc1 %s" % l3)
            g.e("s_sub_u32 %s, %s, 3328" % (sr(sT + 2), sr(sT + 1)))
            g.e("s_lshl_b32 %s, %s, 7" % (sr(sT + 2), sr(sT + 2)))
            g.e("s_add_u32 %s, %s, %d" % (sr(sT + 2), sr(sT + 2), TP * 32 * 7168))
            g.e("s_add_u32 %s, %s, %s" % (sr(p), sr(sU), sr(sT + 2)))
            g.e("s_addc_u32 %s, %s, 0" % (sr(p + 1), sr(sU + 1)))
            g.e("s_mov_b32 %s, %d" % (sr(ie), 32 * 7168))
            g.e("s_mov_b32 %s, %d" % (sr(io), 32 * 7168))
            g.e("s_branch %s" % le)
            g.label(l3)
            g.e("s_sub_u32 %s, %s, 5120" % (sr(sT + 2), sr(sT + 1)))
            g.e("s_lshl_b32 %s, %s, 12" % (sr(sT + 2), sr(sT + 2)))
            g.e("s_add_u32 %s, %s, %d" % (sr(sT + 2), sr(sT + 2), (TP // 2) * 128))
            g.e("s_add_u32 %s, %s, %s" % (sr(p), sr(sX), sr(sT + 2)))
            g.e("s_addc_u32 %s, %s, 0" % (sr(p + 1), sr(sX + 1)))
            g.e("s_mov_b32 %s, 2048" % sr(ie))
            g.e("s_mov_b32 %s, %d" % (sr(io), -2048 + 128))
            g.label(le)
    def touch(s, j):
        p = sTp + 2 * j
        inc = sTi + 2 * j + ((s + TP) & 1)
        g.e("s_load_dword s72, %s, 0" % sr(p, 2))
        g.e("s_ashr_i32 s73, %s, 31" % sr(inc))
        g.e("s_add_u32 %s, %s, %s" % (sr(p), sr(p), sr(inc)))
        g.e("s_addc_u32 %s, %s, s73" % (sr(p + 1), sr(p + 1)))
    lz = g.newlab("K1_Z")
    g.e("s_cmp_lg_u32 %s, 0" % sr(sW))
    g.e("s_cbranch_scc1 %s" % lz)
    if FUSED:
        g.e("s_lshr_b32 %s, s2, 5" % sr(sT))
        g.e("s_lshl_b32 %s, %s, 10" % (sr(sT), sr(sT)))
        g.e("s_and_b32 %s, s2, 31" % sr(sT + 1))
        g.e("s_lshl_b32 %s, %s, 4" % (sr(sT + 1), sr(sT + 1)))
        g.e("s_add_u32 %s, %s, %s" % (sr(sT), sr(sT), sr(sT + 1)))
        g.e("s_add_u32 %s, %s, 0x%x" % (sr(sT), sr(sT), FLAG_OFF))
        g.e("v_lshrrev_b32 %s, 2, v0" % vr(t0))
        g.e("v_lshlrev_b32 %s, 9, %s" % (vr(t0), vr(t0)))
        g.e("v_and_b32 %s, 3, v0" % vr(t1))
        g.e("v_lshl_add_u32 %s, %s, 2, %s" % (vr(t0), vr(t1), vr(t0)))
    else:
        g.e("s_lshl_b32 %s, s2, 5" % sr(sT))
        g.e("s_add_u32 %s, %s, 0x%x" % (sr(sT), sr(sT), FLAG_OFF))
        g.e("v_lshlrev_b32 %s, 2, v0" % vr(t0))
    g.e("v_mov_b32 %s, 0" % vr(t1))
    g.e("s_mov_b64 exec, 0xff")
    g.e("buffer_store_dword %s, %s, %s, %s offen %s" % (vr(t1), vr(t0), sr(SRD, 4), sr(sT), STF))
    g.e("s_mov_b64 exec, -1")
    g.label(lz)

    def dma(st, idx):
        slot = st % 4
        tag = ("dma", st)
        if "samek" in ABL:
            if idx < 2:
                g.e("s_add_u32 m0, %s, %d" % (sr(sXm0), slot * 16384 + idx * 1024))
                g.e("s_nop 0")
                g.vm("global_load_lds_dwordx4 %s, %s" % (vr(vXo + idx), sr(sX, 2)), tag)
            elif idx < 4:
                n = idx - 2
                g.e("s_add_u32 m0, %s, %d" % (sr(sWm0), slot * 20480 + n * 8192))
                g.e("s_nop 0")
                g.vm("global_load_lds_dwordx4 %s, off" % vr(vWp + 2 * n, 2), tag)
            else:
                g.e("s_add_u32 m0, %s, %d" % (sr(sWm0h), slot * 20480 + 16384))
                g.e("s_mov_b32 exec_hi, 0")
                g.vm("global_load_lds_dwordx4 %s, off" % vr(vWp + 4, 2), tag)
                g.e("s_mov_b32 exec_hi, -1")
            return
        if idx < 2:
            g.e("s_add_u32 m0, %s, %d" % (sr(sXm0), slot * 16384 + idx * 1024 - st * 64))
            g.e("s_nop 0")
            g.vm("global_load_lds_dwordx4 %s, %s offset:%d" % (vr(vXo + idx), sr(sX, 2), st * 64), tag)
        elif idx < 4:
            n = idx - 2
            g.e("s_add_u32 m0, %s, %d" % (sr(sWm0), slot * 20480 + n * 8192))
            g.e("s_nop 0")
            g.vm("global_load_lds_dwordx4 %s, off" % vr(vWp + 2 * n, 2), tag)
            g.e("v_add_co_u32 %s, vcc, %s, %s" % (vr(vWp + 2 * n), vr(vWp + 2 * n), vr(vWs + n)))
            g.e("v_addc_co_u32 %s, vcc, 0, %s, vcc" % (vr(vWp + 2 * n + 1), vr(vWp + 2 * n + 1)))
        else:
            n = 2
            g.e("s_add_u32 m0, %s, %d" % (sr(sWm0h), slot * 20480 + 16384))
            g.e("s_mov_b32 exec_hi, 0")
            g.vm("global_load_lds_dwordx4 %s, off" % vr(vWp + 2 * n, 2), tag)
            g.e("s_mov_b32 exec_hi, -1")
            g.e("v_add_co_u32 %s, vcc, %s, %s" % (vr(vWp + 2 * n), vr(vWp + 2 * n), vr(vWs + n)))
            g.e("v_addc_co_u32 %s, vcc, 0, %s, vcc" % (vr(vWp + 2 * n + 1), vr(vWp + 2 * n + 1)))
    def wread(f):
        s, t = divmod(f, 10)
        reg = WF + 4 * (f % WSL)
        off = (s % 4) * 20480
        g.lds("ds_read_b64_tr_b16 %s, %s offset:%d" % (vr(reg, 2), vr(vWrd + t), off), ("w", f))
        g.lds("ds_read_b64_tr_b16 %s, %s offset:%d" % (vr(reg + 2, 2), vr(vWrd + t), off + 2560), ("w", f))
    def xread(s, rg):
        reg = XF + 16 * (s % 2) + 4 * rg
        g.lds("ds_read_b128 %s, %s offset:%d" % (vr(reg, 4), vr(vXrd), (s % 4) * 16384 + rg * 1024), ("x", s))

    stamp(g)
    g.vm("global_load_dwordx4 v[100:103], v96, s[54:55]", ("gate",))
    g.vm("global_load_dwordx4 v[104:107], v96, s[54:55] offset:16", ("gate",))
    g.vm("global_load_dwordx4 v[108:111], v97, %s" % sr(sX, 2), ("gate",))
    g.vm("global_load_dwordx4 v[112:115], v97, %s offset:16" % sr(sX, 2), ("gate",))
    for idx in range(5):
        dma(1, idx)
    if not BMID:
        for idx in range(5):
            dma(2, idx)
    g.need(vtags=[("gate",)])
    for k in range(8):
        r = 116 + 4 * (k % 2)
        g.e("v_lshlrev_b32 %s, 16, %s" % (vr(r), vr(100 + k)))
        g.e("v_and_b32 %s, 0xffff0000, %s" % (vr(r + 1), vr(100 + k)))
        g.e("v_lshlrev_b32 %s, 16, %s" % (vr(r + 2), vr(108 + k)))
        g.e("v_and_b32 %s, 0xffff0000, %s" % (vr(r + 3), vr(108 + k)))
        g.e("v_pk_mul_f32 %s, %s, %s" % (vr(r, 2), vr(r, 2), vr(r + 2, 2)))
        round_pair(g, r)
        if k == 0:
            g.e("v_mov_b32 v124, %s" % vr(r))
            g.e("v_mov_b32 v125, %s" % vr(r + 1))
        else:
            g.e("v_pk_add_f32 v[124:125], v[124:125], %s" % vr(r, 2))
    g.e("v_add_f32 v124, v124, v125")
    for dp in ("quad_perm:[1,0,3,2]", "quad_perm:[2,3,0,1]", "row_half_mirror", "row_mirror"):
        g.e("s_nop 1")
        g.e("v_add_f32_dpp v124, v124, v124 %s row_mask:0xf bank_mask:0xf" % dp)
    for pl in ("32", "16"):
        g.e("v_mov_b32 v125, v124")
        g.e("s_nop 1")
        g.e("v_permlane%s_swap_b32 v124, v125" % pl)
        g.e("v_add_f32 v124, v124, v125")
    g.e("v_cvt_pk_bf16_f32 v124, 0, v124")
    g.e("v_mul_f32 v124, 0x%x, v124" % f2u(-LOG2E))
    g.e("v_exp_f32 v124, v124")
    g.e("s_nop 0")
    g.e("v_add_f32 v124, 1.0, v124")
    g.e("v_rcp_f32 v124, v124")
    g.e("s_lshl_b32 %s, s53, 2" % sr(sT))
    g.e("v_cvt_pk_bf16_f32 v28, 0, v124")
    g.e("v_mov_b32 v29, 0")
    g.e("s_add_u32 %s, %s, 0x%x" % (sr(sT), sr(sT), G_OFF))
    g.e("s_mov_b64 exec, 1")
    g.vm("buffer_store_dword v28, v29, %s, %s offen %s" % (sr(SRD, 4), sr(sT), STF), ("gst",))
    g.e("s_mov_b64 exec, -1")
    g.need(vtags=[("dma", 0)])
    g.e("s_barrier")
    stamp(g)
    for rg in range(4):
        xread(0, rg)
    for f in range(D):
        wread(f)
    for s in range(NST):
        g.c("---- stage %d" % s)
        if s + 1 < NST and not BMID:
            g.need(vtags=[("dma", s + 1)])
            g.e("s_barrier")
        if s == NST - 1 and "nopf" not in ABL:
            g.e("s_lshl_b32 %s, s2, 3" % sr(sT))
            g.e("s_add_u32 %s, %s, %s" % (sr(sT), sr(sT), sr(sW)))
            g.e("s_lshl_b32 %s, %s, 10" % (sr(sT + 1), sr(sT)))
            g.e("v_lshlrev_b32 v28, 7, v0")
            g.e("v_add_u32 v29, %s, v28" % sr(sT + 1))
            g.e("s_mul_i32 %s, %s, %d" % (sr(sT + 1), sr(sT), 28 * 128))
            g.e("v_add_u32 v28, %s, v28" % sr(sT + 1))
            g.e("s_mov_b64 exec, 0xff")
            g.e("global_load_dword v30, v29, s[56:57]")
            g.e("s_mov_b64 exec, 0xfffffff")
            g.e("global_load_dword v31, v28, s[58:59]")
            g.e("s_mov_b64 exec, -1")
        for gi in range(10):
            BM = 10 - D
            if BMID and s == 0 and gi < 5:
                dma(2, gi); dma(3, gi) if False else None
            if BMID and s == 0 and gi == 5:
                for idx in range(5):
                    dma(3, idx)
            if BMID:
                if gi == BM and s + 1 < NST:
                    g.need(ltags=[("w", s * 10 + 9)], vtags=[("dma", s + 1)])
                    g.e("s_barrier")
                if gi >= BM and s + 4 < NST:
                    k = gi - BM
                    if k == 0:
                        dma(s + 4, 0); dma(s + 4, 1)
                    elif k < 4:
                        dma(s + 4, k + 1)
                if TP and gi in (1, 2, 3) and s + TP < NST:
                    touch(s, gi - 1)
            else:
                if DG <= gi < DG + 5 and s + 3 < NST:
                    dma(s + 3, gi - DG)
                if TP and gi in (6, 7, 8) and s + TP < NST:
                    touch(s, gi - 6)
            if BMID and os.environ.get("EARLY", "1") == "1":
                sched = {0: (4, 5), 1: (6, 7), 2: (8, 9), 6: (10,), 7: (11,), 8: (12,), 9: (13,)}
                for t in sched.get(gi, ()):
                    if s * 10 + t < NST * 10:
                        wread(s * 10 + t)
            else:
                f = s * 10 + gi + D
                if f < NST * 10 and "nolds" not in ABL:
                    wread(f)
            if BMID:
                if gi in (BM, BM + 1) and s + 1 < NST:
                    xread(s + 1, 2 * (gi - BM)); xread(s + 1, 2 * (gi - BM) + 1)
            elif XG <= gi < XG + 4 and s + 1 < NST:
                xread(s + 1, gi - XG)
            g.need(ltags=[("w", s * 10 + gi), ("x", s)])
            if "nomfma" in ABL and s > 0:
                continue
            wreg = WF + 4 * ((s * 10 + gi) % WSL)
            for rg in range(4):
                xreg = XF + 16 * (s % 2) + 4 * rg
                a = acc(gi, rg)
                cin = "0" if s == 0 else vr(a, 4)
                g.e("v_mfma_f32_16x16x32_bf16 %s, %s, %s, %s" % (vr(a, 4), vr(wreg, 4), vr(xreg, 4), cin))
    g.c("---- epilogue")
    stamp(g)
    if "k1noepi" in ABL:
        g.e("s_branch K1_END")
    sK1, sK2, sOne = 44, 46, 48
    vK1 = 26
    g.e("s_mov_b32 %s, 0x%x" % (sr(sK2), f2u(GK2)))
    g.e("s_mov_b32 %s, 0x%x" % (sr(sK2 + 1), f2u(GK2)))
    g.e("s_mov_b32 %s, 1.0" % sr(sOne))
    g.e("s_mov_b32 %s, 1.0" % sr(sOne + 1))
    g.e("v_mov_b32 %s, 0x%x" % (vr(vK1), f2u(GK1)))
    g.e("v_mov_b32 %s, 0x%x" % (vr(vK1 + 1), f2u(GK1)))
    sM0, sB, sDA, sDB, sJA = 50, 51, 52, 53, 54
    g.e("s_lshl_b32 %s, %s, 4" % (sr(sM0), sr(sRB)))
    g.e("s_lshl_b32 %s, %s, 2" % (sr(sT), sr(sWM)))
    g.e("s_add_u32 %s, %s, %s" % (sr(sM0), sr(sM0), sr(sT)))
    vL16s = 25
    g.e("s_lshl_b32 %s, %s, 3" % (sr(sT), sr(sWN)))
    g.e("v_add_u32 %s, %s, %s" % (vr(vL16s), sr(sT), vr(vL16)))
    g.e("s_nop 7")
    TMP = 32
    for u in range(3):
        lq, ldone = g.newlab("K1_Q"), g.newlab("K1_D")
        if u < 2:
            g.e("s_mul_i32 %s, %s, 3" % (sr(sB), sr(sWN)))
            g.e("s_add_u32 %s, %s, %d" % (sr(sB), sr(sB), u))
        else:
            g.e("s_mov_b32 %s, 2" % sr(sB))
        g.e("s_lshl_b32 %s, %s, 2" % (sr(sT), sr(sB)))
        g.e("s_cmp_lt_u32 %s, %s" % (sr(sT), sr(sN1)))
        g.e("s_cbranch_scc0 %s" % lq)
        g.e("s_mul_i32 %s, %s, 5" % (sr(sT), sr(sCB)))
        g.e("s_add_u32 %s, %s, %s" % (sr(sT), sr(sT), sr(sB)))
        g.e("s_add_u32 %s, %s, 32" % (sr(sT), sr(sT)))
        g.e("s_mul_i32 %s, %s, %d" % (sr(sDA), sr(sM0), NKB))
        g.e("s_add_u32 %s, %s, %s" % (sr(sDA), sr(sDA), sr(sT)))
        g.e("s_lshl_b32 %s, %s, 10" % (sr(sDA), sr(sDA)))
        tiles = [2 * u, 2 * u + 1] if u < 2 else [4]
        for rg in range(4):
            outb = TMP + 8 * (rg % 2)
            k = 0
            for t in tiles:
                for pr in range(2):
                    ga = acc(t, rg) + 2 * pr
                    ua = acc(t + 5, rg) + 2 * pr
                    tm = TMP + 16 + 8 * (k % 2)
                    round_pair(g, ga, tm)
                    round_pair(g, ua, tm + 1)
                    g.e("v_pk_mul_f32 %s, %s, %s" % (vr(tm + 2, 2), vr(ga, 2), vr(ga, 2)))
                    g.e("v_pk_fma_f32 %s, %s, %s, %s" % (vr(tm + 2, 2), vr(tm + 2, 2), sr(sK2, 2), vr(vK1, 2)))
                    g.e("v_pk_mul_f32 %s, %s, %s" % (vr(tm + 2, 2), vr(tm + 2, 2), vr(ga, 2)))
                    g.e("v_exp_f32 %s, %s" % (vr(tm + 2), vr(tm + 2)))
                    g.e("v_exp_f32 %s, %s" % (vr(tm + 3), vr(tm + 3)))
                    g.e("s_nop 0")
                    g.e("v_pk_add_f32 %s, %s, %s" % (vr(tm + 2, 2), vr(tm + 2, 2), sr(sOne, 2)))
                    g.e("v_rcp_f32 %s, %s" % (vr(tm + 2), vr(tm + 2)))
                    g.e("v_rcp_f32 %s, %s" % (vr(tm + 3), vr(tm + 3)))
                    g.e("s_nop 0")
                    g.e("v_pk_mul_f32 %s, %s, %s" % (vr(ga, 2), vr(tm + 2, 2), vr(ga, 2)))
                    round_pair(g, ga, tm)
                    g.e("v_pk_mul_f32 %s, %s, %s" % (vr(ga, 2), vr(ga, 2), vr(ua, 2)))
                    g.e("v_cvt_pk_bf16_f32 %s, %s, %s" % (vr(outb + k), vr(ga), vr(ga + 1)))
                    k += 1
            if u < 2:
                g.e("buffer_store_dwordx4 %s, %s, %s, %s offen %s" % (vr(outb, 4), vr(vL16), sr(SRD, 4), sr(sDA), STF))
            else:
                g.e("buffer_store_dwordx2 %s, %s, %s, %s offen %s" % (vr(outb, 2), vr(vL16s), sr(SRD, 4), sr(sDA), STF))
            if rg < 3:
                g.e("s_add_u32 %s, %s, %d" % (sr(sDA), sr(sDA), NKB * 1024))
        g.e("s_branch %s" % ldone)
        g.label(lq)
        for (sc, sd) in ((sColQA, sDA), (sColQB, sDB)):
            g.e("s_ashr_i32 %s, %s, 5" % (sr(sT), sr(sc)))
            g.e("s_add_u32 %s, %s, %s" % (sr(sT), sr(sT), sr(sB)))
            g.e("s_lshl_b32 %s, %s, 7" % (sr(sT), sr(sT)))
            g.e("s_add_u32 %s, %s, %s" % (sr(sT), sr(sT), sr(sM0)))
            g.e("s_lshl_b32 %s, %s, 10" % (sr(sT), sr(sT)))
            g.e("s_add_u32 %s, %s, 0x%x" % (sr(sd), sr(sT), QKV_OFF))
        n = 0
        for rg in range(4):
            for hf, sd in ((0, sDA), (1, sDB)):
                outb = TMP + 4 * (n % 8)
                n += 1
                k = 0
                for t in tiles:
                    for pr in range(2):
                        a = acc(t + 5 * hf, rg) + 2 * pr
                        g.e("v_cvt_pk_bf16_f32 %s, %s, %s" % (vr(outb + k), vr(a), vr(a + 1)))
                        k += 1
                if u < 2:
                    g.e("buffer_store_dwordx4 %s, %s, %s, %s offen offset:%d %s" % (vr(outb, 4), vr(vL16), sr(SRD, 4), sr(sd), rg * 1024, STF))
                else:
                    g.e("buffer_store_dwordx2 %s, %s, %s, %s offen offset:%d %s" % (vr(outb, 2), vr(vL16s), sr(SRD, 4), sr(sd), rg * 1024, STF))
        g.label(ldone)
        if u < 2:
            g.e("s_nop 1")
    if FUSED:
        lf = g.newlab("K1_F")
        g.e("s_load_dwordx2 s[44:45], s[0:1], 72")
        g.e("s_waitcnt vmcnt(0) lgkmcnt(0)")
        g.e("s_barrier")
        g.e("s_cmp_lg_u32 %s, 0" % sr(sW))
        g.e("s_cbranch_scc1 %s" % lf)
        g.e("v_mov_b32 v2, s2")
        g.e("v_mov_b32 v3, 1")
        g.e("s_mov_b64 exec, 1")
        g.e("global_store_byte v2, v3, s[44:45] sc1")
        g.e("s_mov_b64 exec, -1")
        g.label(lf)
        rtmark(g, sWS, 2)
        stamp(g)
        g.e("s_mov_b32 s18, %s" % sr(sW))
        return name
    stamp_end(g)
    g.label("K1_END")
    g.e("s_endpgm")
    return name

def gen_k2(g):
    name = "k2_attn_kernel"
    kstart(g, name)
    g.lq = []; g.vq = []
    sWS, sX, sGW = 4, 6, 8
    sHd, sQB, sW, sT = 10, 11, 12, 13
    SRD = 20
    sMk = 24
    sNneg = 32
    sC, sL2 = 34, 36
    g.e("s_cmp_ge_u32 s2, 512")
    g.e("s_cbranch_scc1 K2_END")
    stamp_begin(g)
    g.e("s_load_dwordx2 %s, s[0:1], 80" % sr(sWS, 2))
    g.e("s_load_dwordx2 %s, s[0:1], 0" % sr(sX, 2))
    g.e("s_load_dwordx2 %s, s[0:1], 56" % sr(sGW, 2))
    g.e("s_load_dwordx2 s[40:41], s[0:1], 16")
    g.e("s_load_dwordx2 s[42:43], s[0:1], 48")
    g.e("v_lshrrev_b32 v1, 6, v0")
    g.e("v_and_b32 v0, 63, v0")
    g.e("v_readfirstlane_b32 %s, v1" % sr(sW))
    vL16 = 2
    g.e("v_lshlrev_b32 %s, 4, v0" % vr(vL16))
    g.e("s_waitcnt lgkmcnt(0)")
    g.e("s_mov_b32 %s, %s" % (sr(SRD), sr(sWS)))
    g.e("s_and_b32 %s, %s, 0xffff" % (sr(SRD + 1), sr(sWS + 1)))
    g.e("s_mov_b32 %s, 0x%x" % (sr(SRD + 2), WS_BYTES))
    g.e("s_mov_b32 %s, 0x00020000" % sr(SRD + 3))
    sRow = 38
    g.e("s_lshl_b32 %s, s2, 2" % sr(sRow))
    g.e("s_add_u32 %s, %s, %s" % (sr(sRow), sr(sRow), sr(sW)))
    g.e("s_lshl_b32 %s, %s, 11" % (sr(sT), sr(sRow)))
    g.e("v_lshlrev_b32 v3, 5, v0")
    g.e("v_add_u32 v20, %s, v3" % sr(sT))
    g.e("global_load_dwordx4 v[60:63], v3, %s" % sr(sGW, 2))
    g.e("global_load_dwordx4 v[64:67], v3, %s offset:16" % sr(sGW, 2))
    g.e("global_load_dwordx4 v[68:71], v20, %s" % sr(sX, 2))
    g.e("global_load_dwordx4 v[72:75], v20, %s offset:16" % sr(sX, 2))
    g.e("s_and_b32 %s, s2, 31" % sr(sHd))
    g.e("s_lshr_b32 %s, s2, 5" % sr(sQB))
    g.e("s_lshl_b32 %s, %s, 3" % (sr(sT), sr(sQB)))
    g.e("s_add_u32 %s, %s, %s" % (sr(sT), sr(sT), sr(sW)))
    g.e("s_sub_u32 %s, %s, 16" % (sr(sT), sr(sT)))
    g.e("s_lshl_b32 %s, %s, 17" % (sr(sT + 1), sr(sHd)))
    g.e("s_add_u32 %s, %s, 0x%x" % (sr(sT + 1), sr(sT + 1), QKV_OFF + 32 * 128 * 1024))
    g.e("s_lshl_b32 %s, %s, 10" % (sr(sT + 4), sr(sW)))
    for i in range(6):
        g.e("s_add_u32 %s, %s, %d" % (sr(sT + 2), sr(sT), 4 * i))
        g.e("s_max_i32 %s, %s, 0" % (sr(sT + 2), sr(sT + 2)))
        g.e("s_lshl_b32 %s, %s, 10" % (sr(sT + 2), sr(sT + 2)))
        g.e("s_add_u32 %s, %s, %s" % (sr(sT + 2), sr(sT + 2), sr(sT + 1)))
        g.e("s_add_u32 %s, %s, 0x%x" % (sr(sT + 3), sr(sT + 2), 32 * 128 * 1024))
        g.e("s_add_u32 m0, %s, %d" % (sr(sT + 4), 4096 * i))
        g.e("s_nop 0")
        g.e("buffer_load_dwordx4 %s, %s, %s offen lds" % (vr(vL16), sr(SRD, 4), sr(sT + 2)))
        g.e("s_add_u32 m0, %s, %d" % (sr(sT + 4), 24576 + 4096 * i))
        g.e("s_nop 0")
        g.e("buffer_load_dwordx4 %s, %s, %s offen lds" % (vr(vL16), sr(SRD, 4), sr(sT + 3)))
    QF = 4
    g.e("s_lshl_b32 %s, %s, 3" % (sr(sT), sr(sQB)))
    g.e("s_lshl_b32 %s, %s, 1" % (sr(sT + 2), sr(sW)))
    g.e("s_add_u32 %s, %s, %s" % (sr(sT + 5), sr(sT), sr(sT + 2)))
    g.e("s_lshl_b32 %s, %s, 7" % (sr(sT + 2), sr(sHd)))
    g.e("s_add_u32 %s, %s, %s" % (sr(sT + 2), sr(sT + 2), sr(sT + 5)))
    g.e("s_lshl_b32 %s, %s, 10" % (sr(sT + 2), sr(sT + 2)))
    g.e("s_add_u32 %s, %s, 0x%x" % (sr(sT + 2), sr(sT + 2), QKV_OFF))
    g.e("buffer_load_dwordx4 %s, %s, %s, %s offen" % (vr(QF, 4), vr(vL16), sr(SRD, 4), sr(sT + 2)))
    g.e("buffer_load_dwordx4 %s, %s, %s, %s offen offset:1024" % (vr(QF + 4, 4), vr(vL16), sr(SRD, 4), sr(sT + 2)))
    g.e("s_sub_u32 %s, 16, %s" % (sr(sNneg), sr(sT + 5)))
    g.e("s_max_i32 %s, %s, 0" % (sr(sNneg), sr(sNneg)))
    vI, vQ4, vNI, vKrd, vVrd = 12, 13, 14, 15, 16
    g.e("v_and_b32 %s, 15, v0" % vr(vI))
    g.e("v_lshrrev_b32 %s, 4, v0" % vr(vQ4))
    g.e("v_lshlrev_b32 %s, 2, %s" % (vr(17), vr(vQ4)))
    for r in range(4):
        g.e("v_add_u32 %s, %d, %s" % (vr(18), r, vr(17)))
        g.e("v_cmp_gt_u32 %s, %s, %s" % (sr(sMk + 2 * r, 2), vr(18), vr(vI)))
    g.e("v_mov_b32 %s, 0xff800000" % vr(vNI))
    g.e("s_lshl_b32 %s, %s, 11" % (sr(sT), sr(sW)))
    g.e("v_add_u32 %s, %s, %s" % (vr(vKrd), sr(sT), vr(vL16)))
    g.e("v_and_b32 %s, 3, %s" % (vr(18), vr(vI)))
    g.e("v_lshlrev_b32 %s, 4, %s" % (vr(18), vr(18)))
    g.e("v_add_u32 %s, %s, %s" % (vr(18), vr(18), vr(17)))
    g.e("v_lshrrev_b32 %s, 2, %s" % (vr(19), vr(vI)))
    g.e("v_add_u32 %s, %s, %s" % (vr(18), vr(18), vr(19)))
    g.e("v_lshlrev_b32 %s, 4, %s" % (vr(18), vr(18)))
    g.e("s_add_u32 %s, %s, 24576" % (sr(sT), sr(sT)))
    g.e("v_add_u32 %s, %s, %s" % (vr(vVrd), sr(sT), vr(18)))
    g.e("s_mov_b32 %s, 0x%x" % (sr(sC), f2u(32 ** -0.5)))
    g.e("s_mov_b32 %s, 0x%x" % (sr(sC + 1), f2u(32 ** -0.5)))
    g.e("s_mov_b32 %s, 0x%x" % (sr(sL2), f2u(LOG2E)))
    g.e("s_mov_b32 %s, 0x%x" % (sr(sL2 + 1), f2u(LOG2E)))
    g.e("s_waitcnt vmcnt(0)")
    g.e("s_barrier")
    if "nopf" not in ABL:
        g.e("s_lshl_b32 %s, %s, 10" % (sr(sT), sr(sRow)))
        g.e("v_lshlrev_b32 v100, 7, v0")
        g.e("v_add_u32 v101, %s, v100" % sr(sT))
        g.e("s_mul_i32 %s, %s, %d" % (sr(sT), sr(sRow), 28 * 128))
        g.e("v_add_u32 v102, %s, v100" % sr(sT))
        g.e("s_mov_b64 exec, 0xff")
        g.e("global_load_dword v254, v101, s[40:41]")
        g.e("s_mov_b64 exec, 0xfffffff")
        g.e("global_load_dword v255, v102, s[42:43]")
        g.e("s_mov_b64 exec, -1")
    KF = 20
    SA = 52
    SB = 120
    VF = 188
    OA = 220
    TM = 236
    def S(grp, t):
        return SA + 4 * t if grp == 0 else SB + 4 * (t - 1)
    def kread(t):
        g.lds("ds_read_b128 %s, %s offset:%d" % (vr(KF + 4 * (t % 8), 4), vr(vKrd), t * 1024), ("k", t))
    for t in range(6):
        kread(t)
    for k in range(8):
        a = 76 + 4 * (k % 2)
        g.e("v_lshlrev_b32 %s, 16, %s" % (vr(a), vr(60 + k)))
        g.e("v_and_b32 %s, 0xffff0000, %s" % (vr(a + 1), vr(60 + k)))
        g.e("v_lshlrev_b32 %s, 16, %s" % (vr(a + 2), vr(68 + k)))
        g.e("v_and_b32 %s, 0xffff0000, %s" % (vr(a + 3), vr(68 + k)))
        g.e("v_pk_mul_f32 %s, %s, %s" % (vr(a, 2), vr(a, 2), vr(a + 2, 2)))
        round_pair(g, a)
        if k == 0:
            g.e("v_mov_b32 v84, %s" % vr(a))
            g.e("v_mov_b32 v85, %s" % vr(a + 1))
        else:
            g.e("v_pk_add_f32 v[84:85], v[84:85], %s" % vr(a, 2))
    g.e("v_add_f32 v84, v84, v85")
    g.e("s_nop 1")
    g.e("v_add_f32_dpp v84, v84, v84 quad_perm:[1,0,3,2] row_mask:0xf bank_mask:0xf")
    g.e("s_nop 1")
    g.e("v_add_f32_dpp v84, v84, v84 quad_perm:[2,3,0,1] row_mask:0xf bank_mask:0xf")
    g.e("s_nop 1")
    g.e("v_add_f32_dpp v84, v84, v84 row_half_mirror row_mask:0xf bank_mask:0xf")
    g.e("s_nop 1")
    g.e("v_add_f32_dpp v84, v84, v84 row_mirror row_mask:0xf bank_mask:0xf")
    g.e("v_mov_b32 v85, v84")
    g.e("s_nop 1")
    g.e("v_permlane32_swap_b32 v84, v85")
    g.e("v_add_f32 v84, v84, v85")
    g.e("v_mov_b32 v85, v84")
    g.e("s_nop 1")
    g.e("v_permlane16_swap_b32 v84, v85")
    g.e("v_add_f32 v84, v84, v85")
    g.e("v_cvt_pk_bf16_f32 v84, 0, v84")
    g.e("v_mul_f32 v84, 0x%x, v84" % f2u(-LOG2E))
    g.e("v_exp_f32 v84, v84")
    g.e("s_nop 0")
    g.e("v_add_f32 v84, 1.0, v84")
    g.e("v_rcp_f32 v84, v84")
    g.e("s_lshl_b32 %s, %s, 2" % (sr(sT), sr(sRow)))
    g.e("v_cvt_pk_bf16_f32 v84, 0, v84")
    g.e("v_mov_b32 v85, 0")
    g.e("s_add_u32 %s, %s, 0x%x" % (sr(sT), sr(sT), G_OFF))
    g.e("s_mov_b64 exec, 1")
    g.e("buffer_store_dword v84, v85, %s, %s offen" % (sr(SRD, 4), sr(sT)))
    g.e("s_mov_b64 exec, -1")
    for t in range(18):
        if t + 6 < 18:
            kread(t + 6)
        g.need(ltags=[("k", t)])
        kreg = KF + 4 * (t % 8)
        if t <= 16:
            g.e("v_mfma_f32_16x16x32_bf16 %s, %s, %s, 0" % (vr(S(0, t), 4), vr(kreg, 4), vr(QF, 4)))
        if t >= 1:
            g.e("v_mfma_f32_16x16x32_bf16 %s, %s, %s, 0" % (vr(S(1, t), 4), vr(kreg, 4), vr(QF + 4, 4)))
    def vread(j, d):
        n = j * 2 + d
        reg = VF + 4 * (n % 8)
        g.lds("ds_read_b64_tr_b16 %s, %s offset:%d" % (vr(reg, 2), vr(vVrd), (2 * j) * 1024 + 8 * d), ("v", n))
        g.lds("ds_read_b64_tr_b16 %s, %s offset:%d" % (vr(reg + 2, 2), vr(vVrd), (2 * j + 1) * 1024 + 8 * d), ("v", n))
    for n in range(6):
        vread(n // 2, n % 2)
    g.e("s_nop 7")
    for (grp, t, gt) in ((0, 0, True), (0, 16, False), (1, 1, True), (1, 17, False)):
        for r in range(4):
            a = S(grp, t) + r
            if gt:
                g.e("v_cndmask_b32 %s, %s, %s, %s" % (vr(a), vr(vNI), vr(a), sr(sMk + 2 * r, 2)))
            else:
                g.e("v_cndmask_b32 %s, %s, %s, %s" % (vr(a), vr(a), vr(vNI), sr(sMk + 2 * r, 2)))
    for t in range(16):
        g.e("s_cmp_le_u32 %s, %d" % (sr(sNneg), t))
        g.e("s_cbranch_scc1 K2_NEGDONE")
        for r in range(4):
            g.e("v_mov_b32 %s, %s" % (vr(S(0, t) + r), vr(vNI)))
        if t >= 1:
            for r in range(4):
                g.e("v_mov_b32 %s, %s" % (vr(S(1, t) + r), vr(vNI)))
    g.label("K2_NEGDONE")
    for grp in range(2):
        base = SA if grp == 0 else SB
        m0_, m1_ = TM, TM + 1
        g.e("v_max3_f32 %s, %s, %s, %s" % (vr(m0_), vr(base), vr(base + 1), vr(base + 2)))
        g.e("v_max3_f32 %s, %s, %s, %s" % (vr(m1_), vr(base + 3), vr(base + 4), vr(base + 5)))
        i = 6
        tog = 0
        while i + 1 < 68:
            mm = m0_ if tog == 0 else m1_
            g.e("v_max3_f32 %s, %s, %s, %s" % (vr(mm), vr(mm), vr(base + i), vr(base + i + 1)))
            i += 2; tog ^= 1
        g.e("v_max_f32 %s, %s, %s" % (vr(m0_), vr(m0_), vr(m1_)))
        g.e("v_mov_b32 %s, %s" % (vr(m1_), vr(m0_)))
        g.e("s_nop 1")
        g.e("v_permlane32_swap_b32 %s, %s" % (vr(m0_), vr(m1_)))
        g.e("v_max_f32 %s, %s, %s" % (vr(m0_), vr(m0_), vr(m1_)))
        g.e("v_mov_b32 %s, %s" % (vr(m1_), vr(m0_)))
        g.e("s_nop 1")
        g.e("v_permlane16_swap_b32 %s, %s" % (vr(m0_), vr(m1_)))
        g.e("v_max_f32 %s, %s, %s" % (vr(m0_), vr(m0_), vr(m1_)))
        g.e("v_mov_b32 %s, %s" % (vr(m1_), vr(m0_)))
        round_pair(g, m0_, TM + 2)
        g.e("v_pk_mul_f32 %s, %s, %s" % (vr(m0_, 2), vr(m0_, 2), sr(sC, 2)))
        round_pair(g, m0_, TM + 2)
        g.e("v_pk_mul_f32 %s, %s, %s" % (vr(m0_, 2), vr(m0_, 2), sr(sL2, 2)))
        g.e("v_sub_f32 %s, 0, %s" % (vr(m0_), vr(m0_)))
        g.e("v_sub_f32 %s, 0, %s" % (vr(m1_), vr(m1_)))
        sm = TM + 4
        for p in range(34):
            a = base + 2 * p
            tm = TM + 8 + (p % 4)
            round_pair(g, a, tm)
            g.e("v_pk_mul_f32 %s, %s, %s" % (vr(a, 2), vr(a, 2), sr(sC, 2)))
            round_pair(g, a, tm)
            g.e("v_pk_fma_f32 %s, %s, %s, %s" % (vr(a, 2), vr(a, 2), sr(sL2, 2), vr(m0_, 2)))
            g.e("v_exp_f32 %s, %s" % (vr(a), vr(a)))
            g.e("v_exp_f32 %s, %s" % (vr(a + 1), vr(a + 1)))
            if p >= 1:
                pa = base + 2 * (p - 1)
                ss = sm + 2 * ((p - 1) % 2)
                if p - 1 < 2:
                    g.e("v_mov_b32 %s, %s" % (vr(ss), vr(pa)))
                    g.e("v_mov_b32 %s, %s" % (vr(ss + 1), vr(pa + 1)))
                else:
                    g.e("v_pk_add_f32 %s, %s, %s" % (vr(ss, 2), vr(ss, 2), vr(pa, 2)))
        g.e("s_nop 0")
        pa = base + 2 * 33
        g.e("v_pk_add_f32 %s, %s, %s" % (vr(sm + 2, 2), vr(sm + 2, 2), vr(pa, 2)))
        g.e("v_pk_add_f32 %s, %s, %s" % (vr(sm, 2), vr(sm, 2), vr(sm + 2, 2)))
        g.e("v_add_f32 %s, %s, %s" % (vr(sm), vr(sm), vr(sm + 1)))
        g.e("v_mov_b32 %s, %s" % (vr(sm + 1), vr(sm)))
        g.e("s_nop 1")
        g.e("v_permlane32_swap_b32 %s, %s" % (vr(sm), vr(sm + 1)))
        g.e("v_add_f32 %s, %s, %s" % (vr(sm), vr(sm), vr(sm + 1)))
        g.e("v_mov_b32 %s, %s" % (vr(sm + 1), vr(sm)))
        g.e("s_nop 1")
        g.e("v_permlane16_swap_b32 %s, %s" % (vr(sm), vr(sm + 1)))
        g.e("v_add_f32 %s, %s, %s" % (vr(sm), vr(sm), vr(sm + 1)))
        g.e("v_rcp_f32 %s, %s" % (vr(sm), vr(sm)))
        g.e("s_nop 0")
        g.e("v_mov_b32 %s, %s" % (vr(sm + 1), vr(sm)))
        for p in range(34):
            a = base + 2 * p
            g.e("v_pk_mul_f32 %s, %s, %s" % (vr(a, 2), vr(a, 2), vr(sm, 2)))
        for ti in range(17):
            a = base + 4 * ti
            g.e("v_cvt_pk_bf16_f32 %s, %s, %s" % (vr(a), vr(a), vr(a + 1)))
            g.e("v_cvt_pk_bf16_f32 %s, %s, %s" % (vr(a + 1), vr(a + 2), vr(a + 3)))
    for j in range(9):
        a = SA + 8 * j
        if j < 8:
            g.e("v_mov_b32 %s, %s" % (vr(a + 2), vr(a + 4)))
            g.e("v_mov_b32 %s, %s" % (vr(a + 3), vr(a + 5)))
        else:
            g.e("v_mov_b32 %s, 0" % vr(a + 2))
            g.e("v_mov_b32 %s, 0" % vr(a + 3))
    for j in range(9):
        a = SB + 8 * j
        g.e("v_mov_b32 %s, %s" % (vr(a + 2), vr(a)))
        g.e("v_mov_b32 %s, %s" % (vr(a + 3), vr(a + 1)))
        if j > 0:
            g.e("v_mov_b32 %s, %s" % (vr(a), vr(a - 4)))
            g.e("v_mov_b32 %s, %s" % (vr(a + 1), vr(a - 3)))
        else:
            g.e("v_mov_b32 %s, 0" % vr(a))
            g.e("v_mov_b32 %s, 0" % vr(a + 1))
    g.e("s_nop 1")
    for n in range(18):
        j, d = n // 2, n % 2
        if n + 6 < 18:
            vread((n + 6) // 2, (n + 6) % 2)
        g.need(ltags=[("v", n)])
        vreg = VF + 4 * (n % 8)
        for grp in range(2):
            o = OA + 8 * grp + 4 * d
            pf = (SA if grp == 0 else SB) + 8 * j
            cin = "0" if j == 0 else vr(o, 4)
            g.e("v_mfma_f32_16x16x32_bf16 %s, %s, %s, %s" % (vr(o, 4), vr(vreg, 4), vr(pf, 4), cin))
    g.e("s_mul_i32 %s, %s, %d" % (sr(sT), sr(sT + 5), NKB))
    g.e("s_add_u32 %s, %s, %s" % (sr(sT), sr(sT), sr(sHd)))
    g.e("s_lshl_b32 %s, %s, 10" % (sr(sT), sr(sT)))
    g.e("s_add_u32 %s, %s, %d" % (sr(sT + 1), sr(sT), NKB * 1024))
    g.e("s_nop 7")
    for grp in range(2):
        o = OA + 8 * grp
        for k in range(4):
            g.e("v_cvt_pk_bf16_f32 %s, %s, %s" % (vr(TM + 4 * grp + k), vr(o + 2 * k), vr(o + 2 * k + 1)))
        g.e("buffer_store_dwordx4 %s, %s, %s, %s offen" % (vr(TM + 4 * grp, 4), vr(vL16), sr(SRD, 4), sr(sT + grp)))
    stamp_end(g)
    g.e("s_endpgm")
    g.label("K2_END")
    g.e("s_endpgm")
    return name

def gen_k3(g):
    name = "k3_gemm2_kernel"
    kstart(g, name)
    g.lq = []; g.vq = []
    NST = 72
    RING = int(os.environ.get("RING", "6"))
    WLDS = 98304
    sWS, sWo, sWd, sOut = 4, 6, 8, 10
    sRB, sCB, sW, sWM, sWN, sT = 12, 13, 14, 15, 16, 17
    sXb, sWb = 24, 26
    sXm0, sWm0 = 28, 29
    SRDO = 32
    SRD = 36
    g.e("s_cmp_ge_u32 s2, 256")
    g.e("s_cbranch_scc1 K3_END")
    stamp_begin(g)
    g.e("s_load_dwordx2 %s, s[0:1], 80" % sr(sWS, 2))
    g.e("s_load_dwordx2 %s, s[0:1], 16" % sr(sWo, 2))
    g.e("s_load_dwordx2 %s, s[0:1], 48" % sr(sWd, 2))
    g.e("s_load_dwordx2 %s, s[0:1], 64" % sr(sOut, 2))
    g.e("s_and_b32 %s, s2, 7" % sr(sT))
    g.e("s_lshr_b32 %s, s2, 3" % sr(sT + 1))
    g.e("s_lshr_b32 %s, %s, 1" % (sr(sRB), sr(sT)))
    g.e("s_lshl_b32 %s, %s, 2" % (sr(sRB), sr(sRB)))
    g.e("s_and_b32 %s, %s, 3" % (sr(sT + 2), sr(sT + 1)))
    g.e("s_add_u32 %s, %s, %s" % (sr(sRB), sr(sRB), sr(sT + 2)))
    g.e("s_and_b32 %s, %s, 1" % (sr(sCB), sr(sT)))
    g.e("s_lshl_b32 %s, %s, 3" % (sr(sCB), sr(sCB)))
    g.e("s_lshr_b32 %s, %s, 2" % (sr(sT + 2), sr(sT + 1)))
    g.e("s_add_u32 %s, %s, %s" % (sr(sCB), sr(sCB), sr(sT + 2)))
    g.e("v_lshrrev_b32 v1, 6, v0")
    g.e("v_and_b32 v0, 63, v0")
    g.e("v_readfirstlane_b32 %s, v1" % sr(sW))
    g.e("s_and_b32 %s, %s, 1" % (sr(sWM), sr(sW)))
    g.e("s_lshr_b32 %s, %s, 1" % (sr(sWN), sr(sW)))
    vXo = 2
    vWo = 4
    vXrd = 6
    vWrd = 8
    vG = 10
    vOo = 14
    t0, t1, t2, t3, t4 = 16, 17, 18, 19, 20
    XF = 24
    WF = 72
    ACA = 96
    ACB = 128
    TM = 24
    g.e("s_lshl_b32 %s, %s, 3" % (sr(sT), sr(sRB)))
    g.e("s_lshl_b32 %s, %s, 1" % (sr(sT + 1), sr(sW)))
    g.e("s_add_u32 %s, %s, %s" % (sr(sT), sr(sT), sr(sT + 1)))
    g.e("s_mul_i32 %s, %s, %d" % (sr(sT), sr(sT), NKB * 1024))
    g.e("v_lshlrev_b32 %s, 4, v0" % vr(t0))
    g.e("v_add_u32 %s, %s, %s" % (vr(vXo), sr(sT), vr(t0)))
    g.e("v_add_u32 %s, %d, %s" % (vr(vXo + 1), NKB * 1024, vr(vXo)))
    g.e("s_lshl_b32 %s, %s, 13" % (sr(sT), sr(sWM)))
    g.e("v_add_u32 %s, %s, %s" % (vr(vXrd), sr(sT), vr(t0)))
    g.e("v_add_u32 %s, %d, %s" % (vr(vXrd + 1), 3 * 16384, vr(vXrd)))
    g.e("v_lshrrev_b32 %s, 3, v0" % vr(t1))
    g.e("v_and_b32 %s, 6, %s" % (vr(t2), vr(t1)))
    g.e("v_and_b32 %s, 7, v0" % vr(t3))
    g.e("v_xor_b32 %s, %s, %s" % (vr(t3), vr(t3), vr(t2)))
    g.e("s_lshl_b32 %s, %s, 4" % (sr(sT), sr(sW)))
    g.e("v_add_u32 %s, %s, %s" % (vr(t1), sr(sT), vr(t1)))
    g.e("v_lshlrev_b32 %s, 11, %s" % (vr(t1), vr(t1)))
    g.e("v_lshl_add_u32 %s, %s, 4, %s" % (vr(t1), vr(t3), vr(t1)))
    g.e("s_lshl_b32 %s, %s, 7" % (sr(sT), sr(sCB)))
    g.e("v_add_u32 %s, %s, %s" % (vr(vWo), sr(sT), vr(t1)))
    g.e("v_add_u32 %s, %d, %s" % (vr(vWo + 1), 8 * 2048, vr(vWo)))
    g.e("v_and_b32 %s, 15, v0" % vr(t0))
    g.e("v_lshrrev_b32 %s, 4, v0" % vr(t1))
    g.e("v_lshrrev_b32 %s, 2, %s" % (vr(t2), vr(t0)))
    g.e("v_lshl_add_u32 %s, %s, 2, %s" % (vr(t2), vr(t1), vr(t2)))
    g.e("v_bfe_u32 %s, %s, 1, 2" % (vr(t3), vr(t2)))
    g.e("v_lshlrev_b32 %s, 7, %s" % (vr(t2), vr(t2)))
    g.e("v_and_b32 %s, 3, %s" % (vr(t4), vr(t0)))
    g.e("v_lshl_add_u32 %s, %s, 3, %s" % (vr(t2), vr(t4), vr(t2)))
    g.e("v_add_u32 %s, %d, %s" % (vr(t2), WLDS, vr(t2)))
    for tl in range(2):
        g.e("s_lshl_b32 %s, %s, 1" % (sr(sT), sr(sWN)))
        g.e("s_add_u32 %s, %s, %d" % (sr(sT), sr(sT), tl))
        g.e("v_xor_b32 %s, %s, %s" % (vr(t4), sr(sT), vr(t3)))
        g.e("v_lshl_add_u32 %s, %s, 5, %s" % (vr(vWrd + tl), vr(t4), vr(t2)))
    g.e("s_lshl_b32 %s, %s, 7" % (sr(sT), sr(sRB)))
    g.e("s_lshl_b32 %s, %s, 6" % (sr(sT + 1), sr(sWM)))
    g.e("s_add_u32 %s, %s, %s" % (sr(sT), sr(sT), sr(sT + 1)))
    g.e("v_add_u32 %s, %s, %s" % (vr(t2), sr(sT), vr(t0)))
    g.e("v_lshlrev_b32 %s, 2, %s" % (vr(t4), vr(t2)))
    g.e("v_lshlrev_b32 %s, 11, %s" % (vr(t2), vr(t2)))
    g.e("v_lshl_add_u32 %s, %s, 3, %s" % (vr(t2), vr(t1), vr(t2)))
    g.e("s_lshl_b32 %s, %s, 7" % (sr(sT), sr(sCB)))
    g.e("s_lshl_b32 %s, %s, 6" % (sr(sT + 1), sr(sWN)))
    g.e("s_add_u32 %s, %s, %s" % (sr(sT), sr(sT), sr(sT + 1)))
    g.e("v_add_u32 %s, %s, %s" % (vr(vOo), sr(sT), vr(t2)))
    g.e("s_lshl_b32 %s, %s, 12" % (sr(sXm0), sr(sW)))
    g.e("s_lshl_b32 %s, %s, 11" % (sr(sWm0), sr(sW)))
    g.e("s_add_u32 %s, %s, %d" % (sr(sWm0), sr(sWm0), WLDS))
    g.e("s_waitcnt lgkmcnt(0)")
    g.e("s_mov_b32 %s, %s" % (sr(SRD), sr(sWS)))
    g.e("s_and_b32 %s, %s, 0xffff" % (sr(SRD + 1), sr(sWS + 1)))
    g.e("s_mov_b32 %s, 0x%x" % (sr(SRD + 2), WS_BYTES))
    g.e("s_mov_b32 %s, 0x00020000" % sr(SRD + 3))
    g.e("s_mov_b32 %s, %s" % (sr(SRDO), sr(sOut)))
    g.e("s_and_b32 %s, %s, 0xffff" % (sr(SRDO + 1), sr(sOut + 1)))
    g.e("s_mov_b32 %s, 0x400000" % sr(SRDO + 2))
    g.e("s_mov_b32 %s, 0x00020000" % sr(SRDO + 3))
    g.e("s_mov_b64 %s, %s" % (sr(sXb, 2), sr(sWS, 2)))
    g.e("s_mov_b64 %s, %s" % (sr(sWb, 2), sr(sWo, 2)))
    g.e("s_mov_b32 %s, 0x%x" % (sr(sT), G_OFF))
    for rg in range(4):
        g.vm("buffer_load_dword %s, %s, %s, %s offen offset:%d" % (vr(vG + rg), vr(t4), sr(SRD, 4), sr(sT), rg * 64), ("g",))

    def dma(st, idx):
        slot = st % RING
        tag = ("dma", st)
        if idx < 4:
            m, kb = idx // 2, idx % 2
            g.e("s_add_u32 m0, %s, %d" % (sr(sXm0), slot * 16384 + m * 2048))
            g.e("s_nop 0")
            g.vm("global_load_lds_dwordx4 %s, %s offset:%d" % (vr(vXo + m), sr(sXb, 2), kb * 1024), tag)
            if idx == 3 and "3samek" not in ABL:
                g.e("s_add_u32 %s, %s, 2048" % (sr(sXb), sr(sXb)))
                g.e("s_addc_u32 %s, %s, 0" % (sr(sXb + 1), sr(sXb + 1)))
        else:
            i = idx - 4
            g.e("s_add_u32 m0, %s, %d" % (sr(sWm0), slot * 8192 + i * 1024))
            g.e("s_nop 0")
            g.vm("global_load_lds_dwordx4 %s, %s" % (vr(vWo + i), sr(sWb, 2)), tag)
            if i == 1 and "3samek" not in ABL:
                if st == 15:
                    g.e("s_mov_b64 %s, %s" % (sr(sWb, 2), sr(sWd, 2)))
                else:
                    g.e("s_add_u32 %s, %s, %d" % (sr(sWb), sr(sWb), 64 * 2048))
                    g.e("s_addc_u32 %s, %s, 0" % (sr(sWb + 1), sr(sWb + 1)))
    def fread_items(n):
        st, kb = divmod(n, 2)
        slot = st % RING
        xb = vXrd + (slot // 3)
        it = []
        for tl in range(2):
            reg = WF + 8 * (n % 3) + 4 * tl
            off = slot * 8192 + kb * 4096
            it.append(lambda reg=reg, off=off, tl=tl: g.lds("ds_read_b64_tr_b16 %s, %s offset:%d" % (vr(reg, 2), vr(vWrd + tl), off), ("f", n)))
            it.append(lambda reg=reg, off=off, tl=tl: g.lds("ds_read_b64_tr_b16 %s, %s offset:%d" % (vr(reg + 2, 2), vr(vWrd + tl), off + 2048), ("f", n)))
        for rg in range(4):
            it.append(lambda rg=rg: g.lds("ds_read_b128 %s, %s offset:%d" % (vr(XF + 16 * (n % 3) + 4 * rg, 4), vr(xb), (slot % 3) * 16384 + (rg * 2 + kb) * 1024), ("f", n)))
        return it
    stamp(g)
    for st in range(RING - 1):
        for idx in range(6):
            dma(st, idx)
    g.need(vtags=[("dma", 0)])
    g.e("s_barrier")
    stamp(g)
    for it in fread_items(0) + fread_items(1):
        it()
    for s in range(NST):
        g.c("---- stage %d" % s)
        if s + 1 < NST:
            g.need(vtags=[("dma", s + 1)])
            if "3nobar" not in ABL:
                g.e("s_barrier")
        for kb in range(2):
            n = 2 * s + kb
            fill = []
            if n + 2 < 2 * NST and "3nolds" not in ABL:
                fill += fread_items(n + 2)
            dm = []
            if s + RING - 1 < NST and "3nodma" not in ABL:
                for idx in range(3 * kb, 3 * kb + 3):
                    dm.append(lambda idx=idx: dma(s + RING - 1, idx))
            order = []
            while fill or dm:
                if dm: order.append(dm.pop(0))
                for _ in range(3):
                    if fill: order.append(fill.pop(0))
            g.need(ltags=[("f", n)])
            AC = ACA if n < 32 else ACB
            first = (n == 0 or n == 32)
            k = 0
            for rg in range(4):
                for tl in range(2):
                    a = AC + (rg * 2 + tl) * 4
                    cin = "0" if first else vr(a, 4)
                    if not ("3nomfma" in ABL and n not in (0, 32)):
                        g.e("v_mfma_f32_16x16x32_bf16 %s, %s, %s, %s" % (vr(a, 4), vr(WF + 8 * (n % 3) + 4 * tl, 4), vr(XF + 16 * (n % 3) + 4 * rg, 4), cin))
                    k += 1
                    left = 8 - k + 1
                    cnt = (len(order) + left - 1) // left
                    for _ in range(cnt):
                        if order: order.pop(0)()
    g.c("---- epilogue")
    stamp(g)
    g.e("s_nop 7")
    for rg in range(4):
        gp, op = TM, TM + 2
        g.e("v_mov_b32 %s, %s" % (vr(gp), vr(vG + rg)))
        g.e("v_mov_b32 %s, %s" % (vr(gp + 1), vr(vG + rg)))
        g.e("v_sub_f32 %s, 1.0, %s" % (vr(op), vr(vG + rg)))
        g.e("v_sub_f32 %s, 1.0, %s" % (vr(op + 1), vr(vG + rg)))
        round_pair(g, op, TM + 4)
        for tl in range(2):
            ob = TM + 8 + 2 * ((rg * 2 + tl) % 4)
            for pr in range(2):
                a = ACA + (rg * 2 + tl) * 4 + 2 * pr
                b = ACB + (rg * 2 + tl) * 4 + 2 * pr
                round_pair(g, a, TM + 5)
                round_pair(g, b, TM + 6)
                g.e("v_pk_mul_f32 %s, %s, %s" % (vr(a, 2), vr(a, 2), vr(gp, 2)))
                g.e("v_pk_mul_f32 %s, %s, %s" % (vr(b, 2), vr(b, 2), vr(op, 2)))
                round_pair(g, a, TM + 5)
                round_pair(g, b, TM + 6)
                g.e("v_pk_add_f32 %s, %s, %s" % (vr(a, 2), vr(a, 2), vr(b, 2)))
                g.e("v_cvt_pk_bf16_f32 %s, %s, %s" % (vr(ob + pr), vr(a), vr(a + 1)))
            g.e("s_mov_b32 %s, %d" % (sr(sT), rg * 16 * 2048))
            g.e("buffer_store_dwordx2 %s, %s, %s, %s offen offset:%d" % (vr(ob, 2), vr(vOo), sr(SRDO, 4), sr(sT), tl * 32))
    stamp_end(g)
    g.label("K3_END")
    g.e("s_endpgm")
    return name


def gen_k23(g):
    name = "k23_kernel"
    if not FUSED:
        kstart(g, name)
    g.lq = []; g.vq = []
    NST = 72
    WR = 8
    PW = WR - 1
    XQ = 10
    XD = XQ - 1
    WLDS = 65536
    NBAR = NST
    sWS, sWo, sWd, sOut, sX, sGW, sDbg = 4, 6, 8, 10, 12, 14, 16
    sW, sT = 18, 19
    SRD, SRDO = 28, 32
    if not FUSED:
        g.e("s_cmp_ge_u32 s2, 256")
        g.e("s_cbranch_scc1 K23_END")
        stamp_begin(g)
    g.e("s_load_dwordx2 %s, s[0:1], 80" % sr(sWS, 2))
    g.e("s_load_dwordx2 %s, s[0:1], 16" % sr(sWo, 2))
    g.e("s_load_dwordx2 %s, s[0:1], 48" % sr(sWd, 2))
    g.e("s_load_dwordx2 %s, s[0:1], 64" % sr(sOut, 2))
    g.e("s_load_dwordx2 %s, s[0:1], 0" % sr(sX, 2))
    g.e("s_load_dwordx2 %s, s[0:1], 56" % sr(sGW, 2))
    g.e("s_load_dwordx2 %s, s[0:1], 72" % sr(sDbg, 2))
    if not FUSED:
        g.e("v_lshrrev_b32 v1, 6, v0")
        g.e("v_and_b32 v0, 63, v0")
        g.e("v_readfirstlane_b32 %s, v1" % sr(sW))
    g.e("s_waitcnt lgkmcnt(0)")
    def k1wait(gg, voff, vtmp, nl, mask_lo):
        lp, ld = gg.newlab("K1W"), gg.newlab("K1D")
        gg.e("s_mov_b32 %s, 0" % sr(sT + 2))
        gg.label(lp)
        gg.e("s_mov_b64 exec, 0x%x" % ((1 << nl) - 1))
        gg.e("global_load_dword %s, %s, %s sc1" % (vr(vtmp), vr(voff), sr(sDbg, 2)))
        gg.e("s_waitcnt vmcnt(0)")
        gg.e("v_or_b32 %s, %s, %s" % (vr(vtmp), vr(vtmp), vr(mask_lo)))
        gg.e("v_cmp_ne_u32 vcc, 0x01010101, %s" % vr(vtmp))
        gg.e("s_mov_b64 exec, -1")
        gg.e("s_cmp_eq_u64 vcc, 0")
        gg.e("s_cbranch_scc1 %s" % ld)
        gg.e("s_add_u32 %s, %s, 1" % (sr(sT + 2), sr(sT + 2)))
        gg.e("s_cmp_ge_u32 %s, 0x40000" % sr(sT + 2))
        gg.e("s_cbranch_scc1 %s" % ld)
        gg.e("s_sleep %s" % os.environ.get("PSL", "16"))
        gg.e("s_branch %s" % lp)
        gg.label(ld)
    g.e("s_mov_b32 %s, %s" % (sr(SRD), sr(sWS)))
    g.e("s_and_b32 %s, %s, 0xffff" % (sr(SRD + 1), sr(sWS + 1)))
    g.e("s_mov_b32 %s, 0x%x" % (sr(SRD + 2), WS_BYTES))
    g.e("s_mov_b32 %s, 0x00020000" % sr(SRD + 3))
    if os.environ.get("CPF"):
        g.e("s_getpc_b64 s[64:65]")
        g.label("K23_PC")
        g.e("s_lshl_b32 s66, %s, 13" % sr(sW))
        g.e("v_lshlrev_b32 v254, 7, v0")
        g.e("v_add_u32 v254, s66, v254")
        g.e("v_min_u32 v254, K23_END - K23_PC, v254")
        g.e("global_load_dword v255, v254, s[64:65]")
        g.e("s_mov_b64 s[64:65], 0")
    g.nst_att = getattr(g, "nst", 1)
    g.e("s_cmp_ge_u32 %s, 4" % sr(sW))
    g.e("s_cbranch_scc1 K23_ATT")
    sRB, sCB = 36, 37
    sXk, sWb = 38, 40
    sWm0 = 42
    sMo = 44
    vL16g, vWo, vWrd, vG, vOo, vPoll, vZ, vRd, vGo = 1, 2, 4, 8, 10, 12, 11, 14, 15
    vWr = 96
    WF, XR, BF, AC = 16, 48, 96, 128
    XS = 12
    XD = 11
    NL = 36
    NLB = 28
    WSL = 4
    WLDS = 98304
    t0, t1, t2, t3, t4 = 48, 49, 50, 51, 52
    sRw = 52
    g.e("s_mov_b32 %s, %s" % (sr(SRDO), sr(sOut)))
    g.e("s_and_b32 %s, %s, 0xffff" % (sr(SRDO + 1), sr(sOut + 1)))
    g.e("s_mov_b32 %s, 0x400000" % sr(SRDO + 2))
    g.e("s_mov_b32 %s, 0x00020000" % sr(SRDO + 3))
    g.e("s_and_b32 %s, s2, 7" % sr(sT))
    g.e("s_lshr_b32 %s, s2, 3" % sr(sT + 1))
    g.e("s_lshr_b32 %s, %s, 1" % (sr(sRB), sr(sT)))
    g.e("s_lshl_b32 %s, %s, 2" % (sr(sRB), sr(sRB)))
    g.e("s_and_b32 %s, %s, 3" % (sr(sT + 2), sr(sT + 1)))
    g.e("s_add_u32 %s, %s, %s" % (sr(sRB), sr(sRB), sr(sT + 2)))
    g.e("s_and_b32 %s, %s, 1" % (sr(sCB), sr(sT)))
    g.e("s_lshl_b32 %s, %s, 3" % (sr(sCB), sr(sCB)))
    g.e("s_lshr_b32 %s, %s, 2" % (sr(sT + 2), sr(sT + 1)))
    g.e("s_add_u32 %s, %s, %s" % (sr(sCB), sr(sCB), sr(sT + 2)))
    g.e("v_lshlrev_b32 %s, 4, v0" % vr(vL16g))
    g.e("s_lshl_b32 %s, %s, 3" % (sr(sT), sr(sRB)))
    g.e("s_lshl_b32 %s, %s, 1" % (sr(sT + 1), sr(sW)))
    for m in range(8):
        g.e("s_add_u32 %s, %s, %d" % (sr(sT + 2), sr(sT + 1), m))
        g.e("s_and_b32 %s, %s, 7" % (sr(sT + 2), sr(sT + 2)))
        g.e("s_add_u32 %s, %s, %s" % (sr(sT + 2), sr(sT + 2), sr(sT)))
        g.e("s_mul_i32 %s, %s, %d" % (sr(sMo + m), sr(sT + 2), NKB * 1024))
    g.e("s_lshl_b32 %s, %s, 10" % (sr(sXk), sr(sW)))
    g.e("s_add_u32 %s, %s, %d" % (sr(sXk), sr(sXk), 32 * 1024))
    g.e("v_lshrrev_b32 %s, 3, v0" % vr(t1))
    g.e("v_and_b32 %s, 6, %s" % (vr(t2), vr(t1)))
    g.e("v_and_b32 %s, 7, v0" % vr(t3))
    g.e("v_xor_b32 %s, %s, %s" % (vr(t3), vr(t3), vr(t2)))
    g.e("s_lshl_b32 %s, %s, 5" % (sr(sT), sr(sW)))
    g.e("v_add_u32 %s, %s, %s" % (vr(t1), sr(sT), vr(t1)))
    g.e("v_lshlrev_b32 %s, 11, %s" % (vr(t1), vr(t1)))
    g.e("v_lshl_add_u32 %s, %s, 4, %s" % (vr(t1), vr(t3), vr(t1)))
    g.e("s_lshl_b32 %s, %s, 7" % (sr(sT), sr(sCB)))
    g.e("v_add_u32 %s, %s, %s" % (vr(vWo), sr(sT), vr(t1)))
    g.e("v_add_u32 %s, %d, %s" % (vr(vWo + 1), 16 * 2048, vr(vWo)))
    g.e("s_lshl_b32 %s, %s, 14" % (sr(sWm0), sr(sW)))
    g.e("s_add_u32 %s, %s, %d" % (sr(sWm0), sr(sWm0), WLDS))
    g.e("v_and_b32 %s, 15, v0" % vr(t0))
    g.e("v_lshrrev_b32 %s, 4, v0" % vr(t1))
    g.e("v_lshrrev_b32 %s, 2, %s" % (vr(t2), vr(t0)))
    g.e("v_lshl_add_u32 %s, %s, 2, %s" % (vr(t2), vr(t1), vr(t2)))
    g.e("v_bfe_u32 %s, %s, 1, 2" % (vr(t3), vr(t2)))
    g.e("v_lshlrev_b32 %s, 7, %s" % (vr(t2), vr(t2)))
    g.e("v_and_b32 %s, 3, %s" % (vr(t4), vr(t0)))
    g.e("v_lshl_add_u32 %s, %s, 3, %s" % (vr(t2), vr(t4), vr(t2)))
    g.e("v_add_u32 %s, %s, %s" % (vr(t2), sr(sWm0), vr(t2)))
    for tl in range(4):
        g.e("v_xor_b32 %s, %d, %s" % (vr(t4), tl, vr(t3)))
        g.e("v_lshl_add_u32 %s, %s, 5, %s" % (vr(vWrd + tl), vr(t4), vr(t2)))
    g.e("s_lshl_b32 %s, %s, 7" % (sr(sT), sr(sRB)))
    g.e("s_lshl_b32 %s, %s, 5" % (sr(sT + 1), sr(sW)))
    g.e("s_add_u32 %s, %s, %s" % (sr(sT), sr(sT), sr(sT + 1)))
    g.e("v_add_u32 %s, %s, %s" % (vr(t2), sr(sT), vr(t0)))
    g.e("v_lshlrev_b32 %s, 2, %s" % (vr(vGo), vr(t2)))
    g.e("v_lshlrev_b32 %s, 11, %s" % (vr(t2), vr(t2)))
    g.e("v_lshl_add_u32 %s, %s, 3, %s" % (vr(t2), vr(t1), vr(t2)))
    g.e("s_lshl_b32 %s, %s, 7" % (sr(sT), sr(sCB)))
    g.e("v_add_u32 %s, %s, %s" % (vr(vOo), sr(sT), vr(t2)))
    g.e("s_lshl_b32 %s, %s, 9" % (sr(sT), sr(sRB)))
    g.e("s_add_u32 %s, %s, 0x%x" % (sr(sT), sr(sT), FLAG_OFF))
    g.e("v_lshlrev_b32 %s, 3, v0" % vr(vZ))
    g.e("v_add_u32 %s, %s, %s" % (vr(vZ), sr(sT), vr(vZ)))
    for j in range(1, 4):
        g.e("s_add_u32 %s, %s, %d" % (sr(sT), sr(sW), j))
        g.e("s_and_b32 %s, %s, 3" % (sr(sT), sr(sT)))
        g.e("s_mul_i32 %s, %s, 3" % (sr(sT), sr(sT)))
        g.e("s_add_u32 %s, %s, %d" % (sr(sT), sr(sT), j - 1))
        g.e("s_lshl_b32 %s, %s, 13" % (sr(sRw + j - 1), sr(sT)))
    g.e("s_mul_i32 %s, %s, %d" % (sr(sT), sr(sW), 3 * 8192))
    g.e("v_add_u32 %s, %s, %s" % (vr(vRd), sr(sT), vr(vL16g)))
    T3 = int(os.environ.get("T3", "0"))
    sTx, sTw, sTwo = 58, 60, 62
    if T3:
        g.e("s_lshr_b32 %s, s2, 3" % sr(sT))
        g.e("s_lshl_b32 %s, %s, 2" % (sr(sT), sr(sT)))
        g.e("s_add_u32 %s, %s, %s" % (sr(sT), sr(sT), sr(sW)))
        g.e("s_and_b32 %s, %s, 12" % (sr(sT + 1), sr(sRB)))
        g.e("s_lshr_b32 %s, %s, 5" % (sr(sT + 2), sr(sT)))
        g.e("s_add_u32 %s, %s, %s" % (sr(sT + 1), sr(sT + 1), sr(sT + 2)))
        g.e("s_lshl_b32 %s, %s, 3" % (sr(sT + 1), sr(sT + 1)))
        g.e("s_lshr_b32 %s, %s, 2" % (sr(sT + 2), sr(sT)))
        g.e("s_and_b32 %s, %s, 7" % (sr(sT + 2), sr(sT + 2)))
        g.e("s_add_u32 %s, %s, %s" % (sr(sT + 1), sr(sT + 1), sr(sT + 2)))
        g.e("s_mul_i32 %s, %s, %d" % (sr(sT + 1), sr(sT + 1), NKB))
        g.e("s_and_b32 %s, %s, 3" % (sr(sT + 2), sr(sT)))
        g.e("s_add_u32 %s, %s, %s" % (sr(sT + 1), sr(sT + 1), sr(sT + 2)))
        g.e("s_add_u32 %s, %s, %d" % (sr(sT + 1), sr(sT + 1), 32 + 4 * T3))
        g.e("s_lshl_b32 %s, %s, 10" % (sr(sT + 1), sr(sT + 1)))
        g.e("s_add_u32 %s, %s, %s" % (sr(sTx), sr(sWS), sr(sT + 1)))
        g.e("s_addc_u32 %s, %s, 0" % (sr(sTx + 1), sr(sWS + 1)))
        g.e("s_and_b32 %s, %s, 8" % (sr(sT + 1), sr(sCB)))
        g.e("s_lshr_b32 %s, %s, 4" % (sr(sT + 2), sr(sT)))
        g.e("s_add_u32 %s, %s, %s" % (sr(sT + 1), sr(sT + 1), sr(sT + 2)))
        g.e("s_lshl_b32 %s, %s, 7" % (sr(sT + 1), sr(sT + 1)))
        g.e("s_and_b32 %s, %s, 15" % (sr(sT + 2), sr(sT)))
        g.e("s_lshl_b32 %s, %s, 14" % (sr(sT + 2), sr(sT + 2)))
        g.e("s_add_u32 %s, %s, %s" % (sr(sTwo), sr(sT + 1), sr(sT + 2)))
        g.e("s_add_u32 %s, %s, %d" % (sr(sT + 1), sr(sTwo), T3 * 128 * 2048))
        g.e("s_add_u32 %s, %s, %s" % (sr(sTw), sr(sWd), sr(sT + 1)))
        g.e("s_addc_u32 %s, %s, 0" % (sr(sTw + 1), sr(sWd + 1)))
    def touch_items(i):
        r = i + T3
        it = []
        if not T3 or r >= NL:
            return it
        if r < NLB:
            for k in range(8):
                it.append(lambda k=k: g.e("s_load_dword s63, %s, %d" % (sr(sTx, 2), 128 * k)))
            def advx():
                g.e("s_add_u32 %s, %s, 4096" % (sr(sTx), sr(sTx)))
                g.e("s_addc_u32 %s, %s, 0" % (sr(sTx + 1), sr(sTx + 1)))
            it.append(advx)
        for k in range(8):
            it.append(lambda k=k: g.e("s_load_dword s63, %s, %d" % (sr(sTw, 2), 2048 * k)))
        def advw():
            if r == NLB - 1:
                g.e("s_add_u32 %s, %s, %s" % (sr(sTw), sr(sWo), sr(sTwo)))
                g.e("s_addc_u32 %s, %s, 0" % (sr(sTw + 1), sr(sWo + 1)))
            else:
                g.e("s_add_u32 %s, %s, %d" % (sr(sTw), sr(sTw), 128 * 2048))
                g.e("s_addc_u32 %s, %s, 0" % (sr(sTw + 1), sr(sTw + 1)))
        it.append(advw)
        return it
    sWb2 = 56
    ROT = int(os.environ.get("ROT", "0"))
    sRx, sRw_, sXk0 = 58, 59, 60
    g.e("s_lshr_b32 %s, s2, 3" % sr(sT))
    g.e("s_mul_i32 %s, %s, %d" % (sr(sT), sr(sT), ROT))
    g.e("s_mul_hi_u32 %s, %s, 153391690" % (sr(sT + 1), sr(sT)))
    g.e("s_mul_i32 %s, %s, 28" % (sr(sT + 1), sr(sT + 1)))
    g.e("s_sub_u32 %s, %s, %s" % (sr(sRx), sr(sT), sr(sT + 1)))
    g.e("s_mov_b32 %s, %s" % (sr(sRw_), sr(sRx)))
    g.e("s_mov_b32 %s, %s" % (sr(sXk0), sr(sXk)))
    def setx():
        g.e("s_lshl_b32 %s, %s, 12" % (sr(sXk), sr(sRx)))
        g.e("s_add_u32 %s, %s, %s" % (sr(sXk), sr(sXk), sr(sXk0)))
    def setw():
        g.e("s_lshl_b32 %s, %s, 18" % (sr(sWb2), sr(sRw_)))
        g.e("s_add_u32 %s, %s, %s" % (sr(sWb), sr(sWd), sr(sWb2)))
        g.e("s_addc_u32 %s, %s, 0" % (sr(sWb + 1), sr(sWd + 1)))
        g.e("s_add_u32 %s, %s, %d" % (sr(sWb2), sr(sWb), 8 * 2048))
        g.e("s_addc_u32 %s, %s, 0" % (sr(sWb2 + 1), sr(sWb + 1)))
    def adv(r):
        g.e("s_add_u32 %s, %s, 1" % (sr(r), sr(r)))
        g.e("s_cmp_eq_u32 %s, 28" % sr(r))
        g.e("s_cselect_b32 %s, 0, %s" % (sr(r), sr(r)))
    setx(); setw()

    def wdma(i, j):
        slot = i % WSL
        g.e("s_add_u32 m0, %s, %d" % (sr(sWm0), slot * 4096 + j * 1024))
        g.e("s_nop 0")
        g.vm("global_load_lds_dwordx4 %s, %s" % (vr(vWo + (j >> 1)), sr(sWb2 if j & 1 else sWb, 2)), ("w", i))
        if j == 3:
            if i == NLB - 1:
                g.e("s_mov_b64 %s, %s" % (sr(sWb, 2), sr(sWo, 2)))
                g.e("s_add_u32 %s, %s, %d" % (sr(sWb2), sr(sWo), 8 * 2048))
                g.e("s_addc_u32 %s, %s, 0" % (sr(sWb2 + 1), sr(sWo + 1)))
            elif i < NLB - 1:
                adv(sRw_); setw()
            else:
                for sb in (sWb, sWb2):
                    g.e("s_add_u32 %s, %s, %d" % (sr(sb), sr(sb), 128 * 2048))
                    g.e("s_addc_u32 %s, %s, 0" % (sr(sb + 1), sr(sb + 1)))
    XEXT = int(os.environ.get("XEXT", "8"))
    xfree = [XR + 4 * k for k in range(XS)] + [BF + 4 * k for k in range(XEXT)]
    xreg = {}
    xnext = [0]
    def xpump(cur):
        out = []
        while xnext[0] < NL * 8:
            f = xnext[0]
            cand = [r for r in xfree if r < BF or f < NLB * 8]
            if not cand:
                break
            if f >= NLB * 8 and not polled[0]:
                if cur + 12 < f:
                    break
                pollcheck(); polled[0] = True
            r = cand[-1] if f < NLB * 8 else cand[0]
            xfree.remove(r)
            xreg[f] = r
            xnext[0] += 1
            xload(f)
    polled = [False]
    def xload(f):
        i, m = divmod(f, 8)
        reg = xreg[f]
        fl = " sc1" if i >= NLB else ""
        tmp = sT + (f % 2)
        g.e("s_add_u32 %s, %s, %s" % (sr(tmp), sr(sXk), sr(sMo + m)))
        g.vm("buffer_load_dwordx4 %s, %s, %s, %s offen%s" % (vr(reg, 4), vr(vL16g), sr(SRD, 4), sr(tmp), fl), ("x", f))
        if m == 7:
            if i == NLB - 1:
                g.e("s_lshl_b32 %s, %s, 10" % (sr(sXk), sr(sW)))
            elif i < NLB - 1:
                adv(sRx); setx()
            else:
                g.e("s_add_u32 %s, %s, 4096" % (sr(sXk), sr(sXk)))
    def wread_items(i):
        off = (i % WSL) * 4096
        it = [lambda: g.need(vtags=[("w", i)])]
        for tl in range(4):
            reg = WF + 16 * (i % 2) + 4 * tl
            it.append(lambda reg=reg, tl=tl: g.lds("ds_read_b64_tr_b16 %s, %s offset:%d" % (vr(reg, 2), vr(vWrd + tl), off), ("f", i)))
            it.append(lambda reg=reg, tl=tl: g.lds("ds_read_b64_tr_b16 %s, %s offset:%d" % (vr(reg + 2, 2), vr(vWrd + tl), off + 2048), ("f", i)))
        return it
    def pollcheck():
        lok, lsl = g.newlab("K23_OK"), g.newlab("K23_SL")
        def chk():
            g.e("v_cmp_ne_u32 vcc, 0, %s" % vr(vPoll))
            g.e("v_cmp_ne_u32 %s, 0, %s" % (sr(sT + 3, 2), vr(vPoll + 1)))
            g.e("s_and_b64 %s, %s, vcc" % (sr(sT + 3, 2), sr(sT + 3, 2)))
            g.e("s_cmp_eq_u64 %s, -1" % sr(sT + 3, 2))
        g.need(vtags=[("poll",)])
        chk()
        g.e("s_cbranch_scc1 %s" % lok)
        g.e("s_mov_b32 %s, 0" % sr(sT + 2))
        g.label(lsl)
        g.e("s_add_u32 %s, %s, 1" % (sr(sT + 2), sr(sT + 2)))
        g.e("s_cmp_ge_u32 %s, 0x40000" % sr(sT + 2))
        g.e("s_cbranch_scc1 %s" % lok)
        g.e("s_sleep 4")
        g.e("global_load_dwordx2 %s, %s, %s sc1" % (vr(vPoll, 2), vr(vZ), sr(sWS, 2)))
        g.e("s_waitcnt vmcnt(0)")
        chk()
        g.e("s_cbranch_scc0 %s" % lsl)
        g.label(lok)
        g.e("s_mov_b32 %s, 0x%x" % (sr(sT + 2), G_OFF))
        for rg in range(2):
            g.vm("buffer_load_dword %s, %s, %s, %s offen offset:%d sc1" % (vr(vG + rg), vr(vGo), sr(SRD, 4), sr(sT + 2), rg * 64), ("g",))
    def acc(m, tl): return AC + (m * 4 + tl) * 4
    def reduce_to(dst, first_bar):
        g.e("s_nop 7")
        if first_bar:
            g.e("s_barrier")
        v = WF + 16 * 0
        for j in range(1, 4):
            g.e("v_add_u32 %s, %s, %s" % (vr(vPoll), sr(sRw + j - 1), vr(vL16g)))
            for r in range(2):
                for tl in range(4):
                    g.lds("ds_write_b128 %s, %s offset:%d" % (vr(vPoll), vr(acc(2 * j + r, tl), 4), r * 4096 + tl * 1024), ("rw",))
        g.e("s_waitcnt lgkmcnt(0)"); g.lq = []
        g.e("s_barrier")
        for j in range(1, 4):
            for r in range(2):
                for tl in range(4):
                    g.lds("ds_read_b128 %s, %s offset:%d" % (vr(acc(2 * j + r, tl), 4), vr(vRd), (j - 1) * 8192 + r * 4096 + tl * 1024), ("rr", j))
        for j in range(1, 4):
            g.need(ltags=[("rr", j)])
            for r in range(2):
                for tl in range(4):
                    for p in range(2):
                        d = dst + (r * 4 + tl) * 4 + 2 * p
                        s0 = acc(r, tl) + 2 * p if j == 1 else d
                        g.e("v_pk_add_f32 %s, %s, %s" % (vr(d, 2), vr(s0, 2), vr(acc(2 * j + r, tl) + 2 * p, 2)))
    stamp(g)
    for i in range(WSL - 1):
        for j in range(4):
            wdma(i, j)
        if i == 0 and not FUSED:
            xpump(0)
    if FUSED:
        lnp = g.newlab("K23_NP")
        g.e("s_cmp_lg_u32 %s, 0" % sr(sW))
        g.e("s_cbranch_scc1 %s" % lnp)
        g.e("s_lshr_b32 %s, %s, 1" % (sr(sT), sr(sRB)))
        g.e("s_lshl_b32 %s, %s, 5" % (sr(sT), sr(sT)))
        g.e("s_lshr_b32 %s, s2, 5" % sr(sT + 1))
        g.e("s_sub_u32 %s, %s, 1" % (sr(sT + 1), sr(sT + 1)))
        g.e("s_max_i32 %s, %s, 0" % (sr(sT + 1), sr(sT + 1)))
        g.e("s_min_i32 %s, %s, 6" % (sr(sT + 1), sr(sT + 1)))
        g.e("s_lshl_b32 %s, %s, 5" % (sr(sT + 1), sr(sT + 1)))
        g.e("s_sub_u32 %s, %s, 32" % (sr(sT + 1), sr(sT + 1)))
        g.e("v_lshlrev_b32 %s, 2, v0" % vr(t0))
        g.e("v_add_u32 %s, %s, %s" % (vr(t3), sr(sT + 1), vr(t0)))
        g.e("v_add_u32 %s, %s, %s" % (vr(t0), sr(sT), vr(t0)))
        g.e("v_cmp_lt_u32 vcc, 7, v0")
        g.e("v_and_b32 %s, 7, v0" % vr(t4))
        g.e("v_mov_b32 %s, 0x01010101" % vr(t2))
        g.e("v_cndmask_b32 %s, %s, %s, vcc" % (vr(t0), vr(t0), vr(t3)))
        g.e("v_mov_b32 %s, 0" % vr(t3))
        g.e("v_cndmask_b32 %s, %s, %s, vcc" % (vr(t2), vr(t3), vr(t2)))
        g.e("v_cmp_eq_u32 vcc, 5, %s" % vr(t4))
        g.e("v_and_b32 %s, 0x0000ffff, %s" % (vr(t1), vr(t2)))
        g.e("s_nop 0")
        g.e("v_cndmask_b32 %s, %s, %s, vcc" % (vr(t2), vr(t2), vr(t1)))
        g.e("v_cmp_lt_u32 vcc, 5, %s" % vr(t4))
        g.e("s_nop 1")
        g.e("v_cndmask_b32 %s, %s, %s, vcc" % (vr(t2), vr(t2), vr(t3)))
        k1wait(g, t0, t1, 24, t2)
        g.label(lnp)
    g.e("s_barrier")
    if FUSED:
        rtmark(g, sWS, 3)
        xpump(0)
    for it in wread_items(0):
        it()
    stamp(g)
    for i in range(NL):
        g.c("---- local kblk %d" % i)
        if i in ((8,) if FUSED else (8, 16, 24)):
            stamp(g)
        if i == NLB - 3:
            g.vm("global_load_dwordx2 %s, %s, %s sc1" % (vr(vPoll, 2), vr(vZ), sr(sWS, 2)), ("poll",))
        if i == NLB:
            stamp(g)
            reduce_to(BF, True)
            stamp(g)
        order = []
        if i + WSL - 1 < NL:
            for j in range(4):
                order.append(lambda i=i, j=j: wdma(i + WSL - 1, j))
        order += touch_items(i)
        late = wread_items(i + 1) if i + 1 < NL else []
        g.need(ltags=[("f", i)])
        first = (i == 0 or i == NLB)
        for m in range(8):
            f = i * 8 + m
            if f > 0:
                xfree.append(xreg[f - 1])
            xpump(f)
            g.need(vtags=[("x", f)])
            if m == 4:
                order = late + order
            for tl in range(4):
                a_ = acc(m, tl)
                cin = "0" if first else vr(a_, 4)
                g.e("v_mfma_f32_16x16x32_bf16 %s, %s, %s, %s" % (vr(a_, 4), vr(WF + 16 * (i % 2) + 4 * tl, 4), vr(xreg[f], 4), cin))
                if order:
                    order.pop(0)()
        while order:
            order.pop(0)()
    g.c("---- epilogue")
    stamp(g)
    AF = XR
    reduce_to(AF, True)
    g.need(vtags=[("g",)])
    TM = WF
    for rg in range(2):
        gp, op = TM, TM + 2
        g.e("v_mov_b32 %s, %s" % (vr(gp), vr(vG + rg)))
        g.e("v_mov_b32 %s, %s" % (vr(gp + 1), vr(vG + rg)))
        g.e("v_sub_f32 %s, 1.0, %s" % (vr(op), vr(vG + rg)))
        g.e("v_sub_f32 %s, 1.0, %s" % (vr(op + 1), vr(vG + rg)))
        round_pair(g, op)
        g.e("s_mov_b32 %s, %d" % (sr(sT + rg), rg * 16 * 2048))
        for tl in range(4):
            ob = TM + 8 + 2 * tl
            for pr in range(2):
                a_ = AF + (rg * 4 + tl) * 4 + 2 * pr
                b_ = BF + (rg * 4 + tl) * 4 + 2 * pr
                round_pair(g, a_)
                round_pair(g, b_)
                g.e("v_pk_mul_f32 %s, %s, %s" % (vr(a_, 2), vr(a_, 2), vr(gp, 2)))
                g.e("v_pk_mul_f32 %s, %s, %s" % (vr(b_, 2), vr(b_, 2), vr(op, 2)))
                round_pair(g, a_)
                round_pair(g, b_)
                g.e("v_pk_add_f32 %s, %s, %s" % (vr(a_, 2), vr(a_, 2), vr(b_, 2)))
                g.e("v_cvt_pk_bf16_f32 %s, %s, %s" % (vr(ob + pr), vr(a_), vr(a_ + 1)))
            g.e("buffer_store_dwordx2 %s, %s, %s, %s offen offset:%d" % (vr(ob, 2), vr(vOo), sr(SRDO, 4), sr(sT + rg), tl * 32))
    stamp_end(g, 2)
    g.e("s_endpgm")

    g.label("K23_ATT")
    a = Gen()
    a.nlab = 1000
    def mul2(d, x, y, ys=False):
        for k in range(2):
            if ys:
                a.e("v_mul_f32 %s, %s, %s" % (vr(d + k), sr(y), vr(x + k)))
            else:
                a.e("v_mul_f32 %s, %s, %s" % (vr(d + k), vr(x + k), vr(y + k)))
    def add2(d, x, y):
        for k in range(2):
            a.e("v_add_f32 %s, %s, %s" % (vr(d + k), vr(x + k), vr(y + k)))
    a.nst = g.nst_att if FUSED and STAMP else 1
    a.kidx = g.kidx
    sHd, sMB, sAW = 36, 37, 38
    sMk = 40
    sNneg = 48
    sC, sL2 = 50, 52
    sM0u = 54
    vL16 = 2
    QF = 4
    vI, vQ4, vNI, vKrd, vVrd, vOne, vCnt = 20, 21, 22, 23, 24, 25, 26
    KF, SA, SB, VF, OA, TM = 28, 60, 128, 196, 228, 244
    a.e("s_setprio %s" % os.environ.get("APRIO", "2"))
    a.e("s_sub_u32 %s, %s, 4" % (sr(sAW), sr(sW)))
    a.e("s_and_b32 %s, s2, 7" % sr(sHd))
    a.e("s_lshr_b32 %s, s2, 3" % sr(sT))
    a.e("s_and_b32 %s, %s, 3" % (sr(sT), sr(sT)))
    a.e("s_lshl_b32 %s, %s, 3" % (sr(sT), sr(sT)))
    a.e("s_add_u32 %s, %s, %s" % (sr(sHd), sr(sHd), sr(sT)))
    a.e("s_lshr_b32 %s, s2, 5" % sr(sMB))
    a.e("s_lshl_b32 %s, %s, 4" % (sr(sMB), sr(sMB)))
    a.e("v_lshlrev_b32 %s, 4, v0" % vr(vL16))
    a.e("s_lshl_b32 %s, %s, 2" % (sr(sT), sr(sAW)))
    a.e("s_add_u32 %s, %s, 65536" % (sr(sT), sr(sT)))
    a.e("v_mov_b32 v27, %s" % sr(sT))
    a.e("v_mov_b32 v3, 0")
    a.e("ds_write_b32 v27, v3")
    if FUSED:
        a.e("s_waitcnt lgkmcnt(0)")
        a.raw(";BAR")
    a.e("s_add_u32 %s, %s, %s" % (sr(sT), sr(sMB), sr(sAW)))
    a.e("s_sub_u32 %s, %s, 16" % (sr(sT), sr(sT)))
    a.e("s_lshl_b32 %s, %s, 17" % (sr(sT + 1), sr(sHd)))
    a.e("s_add_u32 %s, %s, 0x%x" % (sr(sT + 1), sr(sT + 1), QKV_OFF + 32 * 128 * 1024))
    a.e("s_lshl_b32 %s, %s, 10" % (sr(sT + 4), sr(sAW)))
    for i in range(8):
        a.e("s_add_u32 %s, %s, %d" % (sr(sT + 2), sr(sT), 4 * i))
        a.e("s_max_i32 %s, %s, 0" % (sr(sT + 2), sr(sT + 2)))
        a.e("s_lshl_b32 %s, %s, 10" % (sr(sT + 2), sr(sT + 2)))
        a.e("s_add_u32 %s, %s, %s" % (sr(sT + 2), sr(sT + 2), sr(sT + 1)))
        a.e("s_add_u32 %s, %s, 0x%x" % (sr(sT + 3), sr(sT + 2), 32 * 128 * 1024))
        a.e("s_add_u32 m0, %s, %d" % (sr(sT + 4), 4096 * i))
        a.e("s_nop 0")
        a.e("buffer_load_dwordx4 %s, %s, %s offen lds" % (vr(vL16), sr(SRD, 4), sr(sT + 2)))
        a.e("s_add_u32 m0, %s, %d" % (sr(sT + 4), 32768 + 4096 * i))
        a.e("s_nop 0")
        a.e("buffer_load_dwordx4 %s, %s, %s offen lds" % (vr(vL16), sr(SRD, 4), sr(sT + 3)))
    if not FUSED:
        a.e("s_waitcnt lgkmcnt(0)")
        a.raw(";BAR")
    a.e("s_lshl_b32 %s, %s, 1" % (sr(sT), sr(sAW)))
    a.e("s_add_u32 %s, %s, %s" % (sr(sM0u), sr(sMB), sr(sT)))
    a.e("s_lshl_b32 %s, %s, 7" % (sr(sT + 2), sr(sHd)))
    a.e("s_add_u32 %s, %s, %s" % (sr(sT + 2), sr(sT + 2), sr(sM0u)))
    a.e("s_lshl_b32 %s, %s, 10" % (sr(sT + 2), sr(sT + 2)))
    a.e("s_add_u32 %s, %s, 0x%x" % (sr(sT + 2), sr(sT + 2), QKV_OFF))
    a.e("s_add_u32 %s, %s, 8192" % (sr(sT + 3), sr(sT + 2)))
    for it in range(2):
        for grp in range(2):
            a.e("buffer_load_dwordx4 %s, %s, %s, %s offen offset:%d" % (vr(QF + 8 * it + 4 * grp, 4), vr(vL16), sr(SRD, 4), sr(sT + 2 + it), 1024 * grp))
    sRow = 56
    a.e("s_lshl_b32 %s, %s, 4" % (sr(sRow), sr(sMB)))
    a.e("s_lshl_b32 %s, %s, 2" % (sr(sT), sr(sHd)))
    a.e("s_add_u32 %s, %s, %s" % (sr(sRow), sr(sRow), sr(sT)))
    a.e("s_add_u32 %s, %s, %s" % (sr(sRow), sr(sRow), sr(sAW)))
    a.e("v_and_b32 %s, 15, v0" % vr(vI))
    a.e("v_lshrrev_b32 %s, 4, v0" % vr(vQ4))
    a.e("v_lshlrev_b32 v30, 2, %s" % vr(vQ4))
    for r in range(4):
        a.e("v_add_u32 v31, %d, v30" % r)
        a.e("v_cmp_gt_u32 %s, v31, %s" % (sr(sMk + 2 * r, 2), vr(vI)))
    a.e("v_mov_b32 %s, 0xff800000" % vr(vNI))
    a.e("v_mov_b32 %s, 1" % vr(vOne))
    a.e("s_lshl_b32 %s, %s, 11" % (sr(sT), sr(sAW)))
    a.e("v_add_u32 %s, %s, %s" % (vr(vKrd), sr(sT), vr(vL16)))
    a.e("v_and_b32 v31, 3, %s" % vr(vI))
    a.e("v_lshlrev_b32 v31, 4, v31")
    a.e("v_add_u32 v31, v31, v30")
    a.e("v_lshrrev_b32 v32, 2, %s" % vr(vI))
    a.e("v_add_u32 v31, v31, v32")
    a.e("v_lshlrev_b32 v31, 4, v31")
    a.e("s_add_u32 %s, %s, 32768" % (sr(sT), sr(sT)))
    a.e("v_add_u32 %s, %s, v31" % (vr(vVrd), sr(sT)))
    a.e("s_mov_b32 %s, 0x%x" % (sr(sC), f2u(32 ** -0.5)))
    a.e("s_mov_b32 %s, 0x%x" % (sr(sC + 1), f2u(32 ** -0.5)))
    a.e("s_mov_b32 %s, 0x%x" % (sr(sL2), f2u(LOG2E)))
    a.e("s_mov_b32 %s, 0x%x" % (sr(sL2 + 1), f2u(LOG2E)))
    a.e("s_lshl_b32 %s, %s, 2" % (sr(sT), sr(sRow)))
    a.e("s_add_u32 %s, %s, 0x%x" % (sr(sT), sr(sT), FLAG_OFF))
    a.e("v_mov_b32 %s, %s" % (vr(vCnt), sr(sT)))
    a.e("s_waitcnt vmcnt(0)")
    a.e("ds_write_b32 v27, %s" % vr(vOne))
    a.e("v_mov_b32 v27, 65536")
    a.label("K23_KVW")
    a.e("ds_read_b128 v[28:31], v27")
    a.e("s_waitcnt lgkmcnt(0)")
    a.e("v_and_b32 v28, v28, v29")
    a.e("v_and_b32 v30, v30, v31")
    a.e("v_and_b32 v28, v28, v30")
    a.e("s_nop 0")
    a.e("v_readfirstlane_b32 %s, v28" % sr(sT))
    a.e("s_cmp_eq_u32 %s, 1" % sr(sT))
    a.e("s_cbranch_scc0 K23_KVW")
    stamp(a)
    def signal(it):
        a.e("s_waitcnt vmcnt(0)")
        a.e("s_mov_b64 exec, 1")
        a.e("global_store_dword %s, %s, %s offset:%d sc1" % (vr(vCnt), vr(vOne), sr(sWS, 2), 512 * it))
        a.e("s_mov_b64 exec, -1")
    def S(grp, t):
        return SA + 4 * t if grp == 0 else SB + 4 * (t - 1)
    for it in range(2):
        a.lq = []
        stamp(a)
        qf = QF + 8 * it
        lo = 8192 * it
        a.e("s_sub_u32 %s, 16, %s" % (sr(sNneg), sr(sM0u)))
        a.e("s_max_i32 %s, %s, 0" % (sr(sNneg), sr(sNneg)))
        def kread(t):
            a.lds("ds_read_b128 %s, %s offset:%d" % (vr(KF + 4 * (t % 8), 4), vr(vKrd), lo + t * 1024), ("k", t))
        for t in range(6):
            kread(t)
        for t in range(18):
            if t + 6 < 18:
                kread(t + 6)
            a.need(ltags=[("k", t)])
            kreg = KF + 4 * (t % 8)
            if t <= 16:
                a.e("v_mfma_f32_16x16x32_bf16 %s, %s, %s, 0" % (vr(S(0, t), 4), vr(kreg, 4), vr(qf, 4)))
            if t >= 1:
                a.e("v_mfma_f32_16x16x32_bf16 %s, %s, %s, 0" % (vr(S(1, t), 4), vr(kreg, 4), vr(qf + 4, 4)))
        def vread(j, d):
            n = j * 2 + d
            reg = VF + 4 * (n % 8)
            a.lds("ds_read_b64_tr_b16 %s, %s offset:%d" % (vr(reg, 2), vr(vVrd), lo + (2 * j) * 1024 + 8 * d), ("v", n))
            a.lds("ds_read_b64_tr_b16 %s, %s offset:%d" % (vr(reg + 2, 2), vr(vVrd), lo + (2 * j + 1) * 1024 + 8 * d), ("v", n))
        for n in range(6):
            vread(n // 2, n % 2)
        a.e("s_nop 7")
        for (grp, t, gt) in ((0, 0, True), (0, 16, False), (1, 1, True), (1, 17, False)):
            for r in range(4):
                x = S(grp, t) + r
                if gt:
                    a.e("v_cndmask_b32 %s, %s, %s, %s" % (vr(x), vr(vNI), vr(x), sr(sMk + 2 * r, 2)))
                else:
                    a.e("v_cndmask_b32 %s, %s, %s, %s" % (vr(x), vr(x), vr(vNI), sr(sMk + 2 * r, 2)))
        a.raw(";NOBAR")
        lneg = "K23_NEG%d" % it
        for t in range(16):
            a.e("s_cmp_le_u32 %s, %d" % (sr(sNneg), t))
            a.e("s_cbranch_scc1 %s" % lneg)
            for r in range(4):
                a.e("v_mov_b32 %s, %s" % (vr(S(0, t) + r), vr(vNI)))
            if t >= 1:
                for r in range(4):
                    a.e("v_mov_b32 %s, %s" % (vr(S(1, t) + r), vr(vNI)))
        a.label(lneg)
        a.raw(";BAROK")
        stamp(a)
        if it == 1:
            signal(0)
            stamp(a)
        for grp in range(2):
            base = SA if grp == 0 else SB
            m0_, m1_ = TM, TM + 1
            a.e("v_max3_f32 %s, %s, %s, %s" % (vr(m0_), vr(base), vr(base + 1), vr(base + 2)))
            a.e("v_max3_f32 %s, %s, %s, %s" % (vr(m1_), vr(base + 3), vr(base + 4), vr(base + 5)))
            i = 6; tog = 0
            while i + 1 < 68:
                mm = m0_ if tog == 0 else m1_
                a.e("v_max3_f32 %s, %s, %s, %s" % (vr(mm), vr(mm), vr(base + i), vr(base + i + 1)))
                i += 2; tog ^= 1
            a.e("v_max_f32 %s, %s, %s" % (vr(m0_), vr(m0_), vr(m1_)))
            for pl in ("32", "16"):
                a.e("v_mov_b32 %s, %s" % (vr(m1_), vr(m0_)))
                a.e("s_nop 1")
                a.e("v_permlane%s_swap_b32 %s, %s" % (pl, vr(m0_), vr(m1_)))
                a.e("v_max_f32 %s, %s, %s" % (vr(m0_), vr(m0_), vr(m1_)))
            a.e("v_cvt_pk_bf16_f32 %s, 0, %s" % (vr(m0_), vr(m0_)))
            a.e("v_mul_f32 %s, %s, %s" % (vr(m0_), sr(sC), vr(m0_)))
            a.e("v_cvt_pk_bf16_f32 %s, 0, %s" % (vr(m0_), vr(m0_)))
            a.e("v_mul_f32 %s, %s, %s" % (vr(m0_), sr(sL2), vr(m0_)))
            a.e("v_sub_f32 %s, 0, %s" % (vr(m0_), vr(m0_)))
            a.e("v_mov_b32 %s, %s" % (vr(m1_), vr(m0_)))
            sm = TM + 4
            for p in range(34):
                x = base + 2 * p
                round_pair(a, x)
                mul2(x, x, sC, True)
                round_pair(a, x)
                a.e("v_fma_f32 %s, %s, %s, %s" % (vr(x), vr(x), sr(sL2), vr(m0_)))
                a.e("v_fma_f32 %s, %s, %s, %s" % (vr(x + 1), vr(x + 1), sr(sL2), vr(m0_)))
                a.e("v_exp_f32 %s, %s" % (vr(x), vr(x)))
                a.e("v_exp_f32 %s, %s" % (vr(x + 1), vr(x + 1)))
                if p >= 1:
                    pa = base + 2 * (p - 1)
                    ss = sm + 2 * ((p - 1) % 2)
                    if p - 1 < 2:
                        a.e("v_mov_b32 %s, %s" % (vr(ss), vr(pa)))
                        a.e("v_mov_b32 %s, %s" % (vr(ss + 1), vr(pa + 1)))
                    else:
                        add2(ss, ss, pa)
            a.e("s_nop 0")
            pa = base + 2 * 33
            add2(sm + 2, sm + 2, pa)
            add2(sm, sm, sm + 2)
            a.e("v_add_f32 %s, %s, %s" % (vr(sm), vr(sm), vr(sm + 1)))
            for pl in ("32", "16"):
                a.e("v_mov_b32 %s, %s" % (vr(sm + 1), vr(sm)))
                a.e("s_nop 1")
                a.e("v_permlane%s_swap_b32 %s, %s" % (pl, vr(sm), vr(sm + 1)))
                a.e("v_add_f32 %s, %s, %s" % (vr(sm), vr(sm), vr(sm + 1)))
            a.e("v_rcp_f32 %s, %s" % (vr(sm), vr(sm)))
            a.e("s_nop 0")
            a.e("v_mov_b32 %s, %s" % (vr(sm + 1), vr(sm)))
            for ti in (range(17) if grp == 0 else range(16, -1, -1)):
                x = base + 4 * ti
                mul2(x, x, sm)
                mul2(x + 2, x + 2, sm)
                t = ti if grp == 0 else ti + 1
                j, h = t // 2, t % 2
                dst = base + 8 * j + 2 * h
                a.e("v_cvt_pk_bf16_f32 %s, %s, %s" % (vr(TM + 8), vr(x), vr(x + 1)))
                a.e("v_cvt_pk_bf16_f32 %s, %s, %s" % (vr(dst + 1), vr(x + 2), vr(x + 3)))
                a.e("v_mov_b32 %s, %s" % (vr(dst), vr(TM + 8)))
            if grp == 0:
                a.e("v_mov_b32 %s, 0" % vr(SA + 66))
                a.e("v_mov_b32 %s, 0" % vr(SA + 67))
        a.e("v_mov_b32 %s, 0" % vr(SB))
        a.e("v_mov_b32 %s, 0" % vr(SB + 1))
        stamp(a)
        a.e("s_nop 1")
        for n in range(18):
            j, d = n // 2, n % 2
            if n + 6 < 18:
                vread((n + 6) // 2, (n + 6) % 2)
            a.need(ltags=[("v", n)])
            vreg = VF + 4 * (n % 8)
            for grp in range(2):
                o = OA + 8 * grp + 4 * d
                pf = (SA if grp == 0 else SB) + 8 * j
                cin = "0" if j == 0 else vr(o, 4)
                a.e("v_mfma_f32_16x16x32_bf16 %s, %s, %s, %s" % (vr(o, 4), vr(vreg, 4), vr(pf, 4), cin))
        a.e("s_mul_i32 %s, %s, %d" % (sr(sT), sr(sM0u), NKB))
        a.e("s_add_u32 %s, %s, %s" % (sr(sT), sr(sT), sr(sHd)))
        a.e("s_lshl_b32 %s, %s, 10" % (sr(sT), sr(sT)))
        a.e("s_add_u32 %s, %s, %d" % (sr(sT + 1), sr(sT), NKB * 1024))
        a.e("s_nop 7")
        for grp in range(2):
            o = OA + 8 * grp
            for k in range(4):
                a.e("v_cvt_pk_bf16_f32 %s, %s, %s" % (vr(TM + 4 * grp + k), vr(o + 2 * k), vr(o + 2 * k + 1)))
            a.e("buffer_store_dwordx4 %s, %s, %s, %s offen sc1" % (vr(TM + 4 * grp, 4), vr(vL16), sr(SRD, 4), sr(sT + grp)))
        a.e("s_add_u32 %s, %s, 8" % (sr(sM0u), sr(sM0u)))
    stamp(a)
    signal(1)
    if STAMP:
        a.raw(";NOBAR")
        stamp_end(a, 2, 1)
        a.raw(";BAROK")
    PACE = int(os.environ.get("PACE", "64"))
    out = []; nb = 0; cnt = 0; pace = False; ok = True
    for l in a.lines:
        if l == ";BAR":
            out.append("    s_barrier"); nb += 1; cnt = 0; continue
        if l == ";PACE": pace = True; cnt = 0; continue
        if l == ";NOBAR": ok = False; continue
        if l == ";BAROK": ok = True; continue
        out.append(l)
        if pace and not l.endswith(":"):
            cnt += 1
            if ok and cnt >= PACE:
                out.append("    s_barrier"); nb += 1; cnt = 0
    sys.stderr.write("attention barriers used %d of %d\n" % (nb, NBAR))
    assert nb == 1
    g.lines += out
    g.label("K23_END")
    g.e("s_endpgm")
    return name

def main():
    hdr = []
    ref = open("cdna_kernels/%s.s.ref" % NAME).read().splitlines()
    for l in ref:
        if l.startswith(";") and "@launch" not in l:
            hdr.append(l)
        elif not l.startswith(";"):
            break
    if FUSED:
        hdr.append("; @launch kernel=%s_kernel grid=(256,1,1) block=(512,1,1) lds=163840" % NAME)
    else:
        hdr.append("; @launch kernel=k1_gemm1_kernel grid=(256,1,1) block=(512,1,1) lds=147456")
        hdr.append("; @launch kernel=k23_kernel grid=(256,1,1) block=(512,1,1) lds=163840")
    g = Gen()
    g.raw('.amdgcn_target "amdgcn-amd-amdhsa--gfx950"')
    g.raw(".text")
    k1 = gen_k1(g)
    k23 = gen_k23(g)
    out = "\n".join(hdr) + "\n" + "\n".join(g.lines) + "\n"
    sg = lambda n: 102 if STAMP else n
    out += kd(k1, 256, sg(80), 256)
    if not FUSED:
        out += kd(k23, 256, sg(72), 256)
    path = sys.argv[1] if len(sys.argv) > 1 else "cdna_kernels/%s.s" % NAME
    open(path, "w").write(out)

if __name__ == "__main__":
    main()
```

```python
import sys, struct

NAME = "gated_mix__sliding_block__geglu_ffn__prompt"

A2_OFF = 0
NKB = 144
QKV_OFF = 0x1400000
G_OFF = 0x2400000
FLAG_OFF = 0x2404000
WS_BYTES = 0x10000000

def f2u(x):
    return struct.unpack("<I", struct.pack("<f", x))[0]

class Gen:
    def __init__(self):
        self.lines = []
        self.lq = []
        self.vq = []
        self.nlab = 0
    def e(self, s):
        self.lines.append("    " + s)
    def c(self, s):
        self.lines.append("    ; " + s)
    def label(self, s):
        self.lines.append(s + ":")
    def newlab(self, p="L"):
        self.nlab += 1
        return "%s_%d" % (p, self.nlab)
    def raw(self, s):
        self.lines.append(s)
    def lds(self, s, tag):
        self.e(s); self.lq.append(tag)
    def vm(self, s, tag):
        self.e(s); self.vq.append(tag)
    def _need(self, q, tags):
        last = -1
        for i, t in enumerate(q):
            if t in tags:
                last = i
        if last < 0:
            return None
        return len(q) - 1 - last, last
    def need(self, ltags=(), vtags=()):
        w = []
        r = self._need(self.lq, set(ltags))
        if r is not None:
            n, last = r
            if n > 15:
                n = 15
                last = len(self.lq) - 1 - 15
            self.lq = self.lq[last + 1:]
            w.append("lgkmcnt(%d)" % n)
        r = self._need(self.vq, set(vtags))
        if r is not None:
            n, last = r
            if n > 63:
                n = 63
                last = len(self.vq) - 1 - 63
            self.vq = self.vq[last + 1:]
            w.insert(0, "vmcnt(%d)" % n)
        if w:
            self.e("s_waitcnt " + " ".join(w))
    def waitall(self):
        self.e("s_waitcnt vmcnt(0) lgkmcnt(0)")
        self.lq = []; self.vq = []

def vr(a, n=1):
    return "v%d" % a if n == 1 else "v[%d:%d]" % (a, a + n - 1)
def sr(a, n=1):
    return "s%d" % a if n == 1 else "s[%d:%d]" % (a, a + n - 1)

def kd(name, vgpr, sgpr, accum):
    return """.section .rodata,"a"
.p2align 6
.amdhsa_kernel %s
  .amdhsa_next_free_vgpr %d
  .amdhsa_next_free_sgpr %d
  .amdhsa_accum_offset %d
  .amdhsa_group_segment_fixed_size 0
  .amdhsa_kernarg_size 88
  .amdhsa_user_sgpr_count 2
  .amdhsa_user_sgpr_kernarg_segment_ptr 1
  .amdhsa_system_sgpr_workgroup_id_x 1
.end_amdhsa_kernel
.text
""" % (name, vgpr, sgpr, accum)

import os
STAMP = bool(os.environ.get("STAMP"))
ABL = os.environ.get("ABL", "").split(",")
FUSED = os.environ.get("FUSED", "0") == "1"
STF = os.environ.get("STF", "sc1" if FUSED else "")
def stamp_begin(g):
    if not STAMP: return
    g.nst = 1
    g.e("s_memtime s[74:75]")
    g.e("s_memrealtime s[98:99]")
def stamp(g, force=False):
    if not STAMP: return
    if g.nst >= 10 and not force: return
    g.e("s_memtime s[%d:%d]" % (74 + 2 * g.nst, 75 + 2 * g.nst))
    g.nst += 1
def stamp_end(g, tmpv=0, slot=0):
    if not STAMP: return
    lab = g.newlab("STP")
    tmpv = 32
    stamp(g, True)
    g.e("s_waitcnt vmcnt(0) lgkmcnt(0)")
    stamp(g, True)
    g.e("s_memrealtime s[100:101]")
    g.e("s_load_dwordx2 s[72:73], s[0:1], 80")
    g.e("s_waitcnt lgkmcnt(0)")
    g.e("s_mov_b64 exec, 1")
    g.e("v_mov_b32 v60, s98")
    g.e("v_mov_b32 v61, s100")
    g.e("s_lshl_b32 s3, s2, 3")
    g.e("s_add_u32 s3, s3, 0x%x" % (0x2410000 + 0x1000 * g.kidx + 0x800 * slot))
    g.e("v_mov_b32 v62, s3")
    g.e("global_store_dwordx2 v62, v[60:61], s[72:73]")
    g.e("s_cmp_lg_u32 s2, %s" % os.environ.get("STWG", "0"))
    g.e("s_cbranch_scc1 %s" % lab)
    g.e("s_mov_b64 exec, 1")
    g.e("s_sub_u32 s100, s100, s98")
    g.e("v_mov_b32 %s, s100" % vr(tmpv))
    for i in range(1, g.nst):
        g.e("s_sub_u32 s100, s%d, s74" % (74 + 2 * i))
        g.e("v_mov_b32 %s, s100" % vr(tmpv + i))
    g.e("s_load_dwordx2 s[100:101], s[0:1], 72")
    g.e("v_mov_b32 %s, %d" % (vr(tmpv + 15), 256 + 64 * slot))
    g.e("s_waitcnt lgkmcnt(0)")
    for i in range(g.nst):
        g.e("global_store_dword %s, %s, s[100:101] offset:%d" % (vr(tmpv + 15), vr(tmpv + i), 4 * i))
    g.label(lab)

def rtmark(g, sws, idx):
    if not STAMP: return
    g.e("s_memrealtime s[100:101]")
    g.e("s_waitcnt lgkmcnt(0)")
    g.e("s_mov_b64 exec, 1")
    g.e("v_mov_b32 v60, s100")
    g.e("s_lshl_b32 s3, s2, 3")
    g.e("s_add_u32 s3, s3, 0x%x" % (0x2410000 + 0x1000 * idx))
    g.e("v_mov_b32 v62, s3")
    g.e("global_store_dword v62, v60, %s" % sr(sws, 2))
    g.e("s_mov_b64 exec, -1")

def kstart(g, name):
    g.kidx = getattr(g, "kidx", -1) + 1
    g.raw(".globl %s" % name)
    g.raw(".p2align 8")
    g.raw(".type %s,@function" % name)
    g.label(name)

LOG2E = 1.4426950408889634
GK1 = -2.0 * LOG2E * 0.7978845608028654
GK2 = GK1 * 0.044715

def round_pair(g, a, tmp=None):
    g.e("v_cvt_pk_bf16_f32 %s, 0, %s" % (vr(a), vr(a)))
    g.e("v_cvt_pk_bf16_f32 %s, 0, %s" % (vr(a + 1), vr(a + 1)))

def gen_k1(g):
    name = NAME + "_kernel" if FUSED else "k1_gemm1_kernel"
    kstart(g, name)
    NST = 32
    D = int(os.environ.get("KD", "4"))
    DG = int(os.environ.get("DG", "0"))
    XG = int(os.environ.get("XG", "2"))
    BMID = int(os.environ.get("BMID", "1"))
    WSL = 8
    XBASE = 81920
    vXo = 2
    vWp = 4
    vWs = 10
    vXrd = 13
    vWrd = 14
    vL16 = 24
    XF = 32
    WF = 64
    ACC = 96
    def acc(t, rg): return ACC + (t * 4 + rg) * 4
    sX, sQ, sG, sU, sWS = 4, 6, 8, 10, 12
    sRB, sCB, sW, sWM, sWN = 14, 15, 16, 17, 18
    sXm0, sWm0, sWm0h = 19, 20, 21
    sN1, sColF, sColQA, sColQB = 22, 23, 24, 25
    sT = 26
    SRD = 40
    g.e("s_cmp_ge_u32 s2, %d" % (0 if "k1empty" in ABL else 256))
    g.e("s_cbranch_scc1 %s" % ("K23_END" if FUSED else "K1_END"))
    stamp_begin(g)
    g.e("s_load_dwordx2 %s, s[0:1], 0" % sr(sX, 2))
    g.e("s_load_dwordx2 %s, s[0:1], 8" % sr(sQ, 2))
    g.e("s_load_dwordx4 %s, s[0:1], 32" % sr(sG, 4))
    g.e("s_load_dwordx2 %s, s[0:1], 80" % sr(sWS, 2))
    g.e("s_load_dwordx2 s[56:57], s[0:1], 16")
    g.e("s_load_dwordx2 s[58:59], s[0:1], 48")
    g.e("s_load_dwordx2 s[54:55], s[0:1], 56")
    g.e("s_and_b32 %s, s2, 7" % sr(sT))
    g.e("s_lshr_b32 %s, s2, 3" % sr(sT + 1))
    if os.environ.get("CBMAP", "0") == "1":
        g.e("s_and_b32 %s, %s, 3" % (sr(sT + 2), sr(sT + 1)))
        g.e("s_mul_i32 %s, %s, 3" % (sr(sCB), sr(sT)))
        g.e("s_add_u32 %s, %s, %s" % (sr(sCB), sr(sCB), sr(sT + 2)))
        g.e("s_add_u32 %s, %s, 24" % (sr(sT + 3), sr(sT)))
        g.e("s_cmp_eq_u32 %s, 3" % sr(sT + 2))
        g.e("s_cselect_b32 %s, %s, %s" % (sr(sCB), sr(sT + 3), sr(sCB)))
    else:
        g.e("s_and_b32 %s, s2, 31" % sr(sCB))
    g.e("s_lshr_b32 %s, %s, 2" % (sr(sRB), sr(sT + 1)))
    g.e("v_lshrrev_b32 v1, 6, v0")
    g.e("v_and_b32 v0, 63, v0")
    g.e("v_readfirstlane_b32 %s, v1" % sr(sW))
    g.e("s_and_b32 %s, %s, 3" % (sr(sWM), sr(sW)))
    g.e("s_lshr_b32 %s, %s, 2" % (sr(sWN), sr(sW)))
    g.e("v_lshlrev_b32 %s, 4, v0" % vr(vL16))
    if os.environ.get("CPF"):
        g.e("s_getpc_b64 s[26:27]")
        g.label("K1_PC")
        g.e("s_lshl_b32 s28, %s, 12" % sr(sW))
        g.e("v_lshlrev_b32 v30, 6, v0")
        g.e("v_add_u32 v30, s28, v30")
        g.e("v_min_u32 v30, K1_END - K1_PC, v30")
        g.e("global_load_dword v31, v30, s[26:27]")
    g.e("s_lshl_b32 %s, %s, 11" % (sr(sXm0), sr(sW)))
    g.e("s_add_u32 %s, %s, %d" % (sr(sXm0), sr(sXm0), XBASE))
    g.e("s_lshl_b32 %s, %s, 10" % (sr(sWm0), sr(sW)))
    g.e("s_lshl_b32 %s, %s, 9" % (sr(sWm0h), sr(sW)))
    g.e("s_mul_i32 %s, %s, 160" % (sr(sColF), sr(sCB)))
    g.e("s_mul_i32 %s, %s, 320" % (sr(sColQA), sr(sCB)))
    g.e("s_sub_u32 %s, %s, %d" % (sr(sColQA), sr(sColQA), 320 * 23 - 192))
    g.e("s_add_u32 %s, %s, 160" % (sr(sColQB), sr(sColQA)))
    g.e("s_mov_b32 %s, 0" % sr(sN1))
    g.e("s_cmp_eq_u32 %s, 22" % sr(sCB))
    g.e("s_cselect_b32 %s, -64, %s" % (sr(sColQA), sr(sColQA)))
    g.e("s_cselect_b32 %s, 32, %s" % (sr(sColQB), sr(sColQB)))
    g.e("s_cselect_b32 %s, 8, %s" % (sr(sN1), sr(sN1)))
    g.e("s_cmp_lt_u32 %s, 22" % sr(sCB))
    g.e("s_cselect_b32 %s, 20, %s" % (sr(sN1), sr(sN1)))
    t0, t1, t2, t3, t4, t5, t6, t7, t8, t9 = range(XF, XF + 10)
    g.e("v_lshrrev_b32 %s, 2, v0" % vr(t0))
    g.e("v_lshrrev_b32 %s, 4, v0" % vr(t1))
    g.e("v_and_b32 %s, 2, %s" % (vr(t1), vr(t1)))
    g.e("v_and_b32 %s, 3, v0" % vr(t2))
    g.e("v_xor_b32 %s, %s, %s" % (vr(t2), vr(t2), vr(t1)))
    g.e("s_lshl_b32 %s, %s, 8" % (sr(sT), sr(sRB)))
    g.e("s_lshl_b32 %s, %s, 5" % (sr(sT + 1), sr(sW)))
    g.e("s_add_u32 %s, %s, %s" % (sr(sT), sr(sT), sr(sT + 1)))
    g.e("v_add_u32 %s, %s, %s" % (vr(t0), sr(sT), vr(t0)))
    g.e("v_lshlrev_b32 %s, 11, %s" % (vr(t0), vr(t0)))
    g.e("v_lshl_add_u32 %s, %s, 4, %s" % (vr(vXo), vr(t2), vr(t0)))
    g.e("v_add_u32 %s, 0x8000, %s" % (vr(vXo + 1), vr(vXo)))
    g.e("s_lshl_b32 s53, s2, 3")
    g.e("s_add_u32 s53, s53, %s" % sr(sW))
    g.e("s_lshl_b32 %s, s53, 11" % sr(sT))
    g.e("v_lshlrev_b32 v96, 5, v0")
    g.e("v_add_u32 v97, %s, v96" % sr(sT))
    g.e("s_waitcnt lgkmcnt(0)")
    def xdma0(st):
        for idx in range(2):
            g.e("s_add_u32 m0, %s, %d" % (sr(sXm0), (st % 4) * 16384 + idx * 1024 - st * 64))
            g.e("s_nop 0")
            g.vm("global_load_lds_dwordx4 %s, %s offset:%d" % (vr(vXo + idx), sr(sX, 2), st * 64), ("dma", st))
    xdma0(0)
    g.e("s_waitcnt lgkmcnt(0)")
    for n in range(3):
        if n < 2:
            g.e("s_lshl_b32 %s, %s, 6" % (sr(sT), sr(sW)))
            g.e("s_add_u32 %s, %s, %d" % (sr(sT), sr(sT), 512 * n))
            g.e("v_add_u32 %s, %s, v0" % (vr(t0), sr(sT)))
        else:
            g.e("s_lshl_b32 %s, %s, 5" % (sr(sT), sr(sW)))
            g.e("s_add_u32 %s, %s, 1024" % (sr(sT), sr(sT)))
            g.e("v_and_b32 %s, 31, v0" % vr(t0))
            g.e("v_add_u32 %s, %s, %s" % (vr(t0), sr(sT), vr(t0)))
        g.e("v_mul_u32_u24 %s, 52429, %s" % (vr(t1), vr(t0)))
        g.e("v_lshrrev_b32 %s, 21, %s" % (vr(t1), vr(t1)))
        g.e("v_mul_u32_u24 %s, 40, %s" % (vr(t2), vr(t1)))
        g.e("v_sub_u32 %s, %s, %s" % (vr(t2), vr(t0), vr(t2)))
        g.e("v_bfe_u32 %s, %s, 1, 1" % (vr(t3), vr(t1)))
        g.e("v_lshrrev_b32 %s, 2, %s" % (vr(t4), vr(t1)))
        g.e("v_and_b32 %s, 2, %s" % (vr(t4), vr(t4)))
        g.e("v_or_b32 %s, %s, %s" % (vr(t3), vr(t3), vr(t4)))
        g.e("v_lshlrev_b32 %s, 1, %s" % (vr(t3), vr(t3)))
        g.e("v_xor_b32 %s, %s, %s" % (vr(t2), vr(t2), vr(t3)))
        g.e("v_cmp_le_u32 vcc, 20, %s" % vr(t2))
        g.e("v_subrev_u32 %s, 20, %s" % (vr(t3), vr(t2)))
        g.e("s_nop 1")
        g.e("v_cndmask_b32 %s, %s, %s, vcc" % (vr(t2), vr(t2), vr(t3)))
        g.e("v_mov_b32 %s, %s" % (vr(t3), sr(sG)))
        g.e("v_mov_b32 %s, %s" % (vr(t4), sr(sU)))
        g.e("v_cndmask_b32 %s, %s, %s, vcc" % (vr(t3), vr(t3), vr(t4)))
        g.e("v_mov_b32 %s, %s" % (vr(t4), sr(sG + 1)))
        g.e("v_mov_b32 %s, %s" % (vr(t5), sr(sU + 1)))
        g.e("v_cndmask_b32 %s, %s, %s, vcc" % (vr(t4), vr(t4), vr(t5)))
        g.e("v_mov_b32 %s, %s" % (vr(t5), sr(sColQA)))
        g.e("v_mov_b32 %s, %s" % (vr(t6), sr(sColQB)))
        g.e("v_cndmask_b32 %s, %s, %s, vcc" % (vr(t5), vr(t5), vr(t6)))
        g.e("v_cmp_gt_u32 vcc, %s, %s" % (sr(sN1), vr(t2)))
        g.e("v_mov_b32 %s, %s" % (vr(t6), sr(sQ)))
        g.e("v_mov_b32 %s, %s" % (vr(t7), sr(sQ + 1)))
        g.e("v_cndmask_b32 %s, %s, %s, vcc" % (vr(t3), vr(t6), vr(t3)))
        g.e("v_cndmask_b32 %s, %s, %s, vcc" % (vr(t4), vr(t7), vr(t4)))
        g.e("v_mov_b32 %s, %s" % (vr(t6), sr(sColF)))
        g.e("v_cndmask_b32 %s, %s, %s, vcc" % (vr(t5), vr(t5), vr(t6)))
        g.e("v_mov_b32 %s, 6144" % vr(t6))
        g.e("v_mov_b32 %s, 7168" % vr(t7))
        g.e("v_cndmask_b32 %s, %s, %s, vcc" % (vr(t6), vr(t6), vr(t7)))
        g.e("v_lshl_add_u32 %s, %s, 3, %s" % (vr(t5), vr(t2), vr(t5)))
        g.e("v_mul_u32_u24 %s, %s, %s" % (vr(t7), vr(t1), vr(t6)))
        g.e("v_lshl_add_u32 %s, %s, 1, %s" % (vr(t7), vr(t5), vr(t7)))
        g.e("v_add_co_u32 %s, vcc, %s, %s" % (vr(vWp + 2 * n), vr(t3), vr(t7)))
        g.e("v_addc_co_u32 %s, vcc, 0, %s, vcc" % (vr(vWp + 2 * n + 1), vr(t4)))
        g.e("v_lshlrev_b32 %s, 5, %s" % (vr(vWs + n), vr(t6)))
        if n < 2:
            g.e("s_add_u32 m0, %s, %d" % (sr(sWm0), n * 8192))
            g.e("s_nop 0")
            g.vm("global_load_lds_dwordx4 %s, off" % vr(vWp + 2 * n, 2), ("dma", 0))
        else:
            g.e("s_add_u32 m0, %s, %d" % (sr(sWm0h), 16384))
            g.e("s_mov_b32 exec_hi, 0")
            g.vm("global_load_lds_dwordx4 %s, off" % vr(vWp + 2 * n, 2), ("dma", 0))
            g.e("s_mov_b32 exec_hi, -1")
        g.e("v_add_co_u32 %s, vcc, %s, %s" % (vr(vWp + 2 * n), vr(vWp + 2 * n), vr(vWs + n)))
        g.e("v_addc_co_u32 %s, vcc, 0, %s, vcc" % (vr(vWp + 2 * n + 1), vr(vWp + 2 * n + 1)))
    g.e("v_and_b32 %s, 15, v0" % vr(t0))
    g.e("v_lshrrev_b32 %s, 4, v0" % vr(t1))
    g.e("v_lshrrev_b32 %s, 2, %s" % (vr(t2), vr(t0)))
    g.e("v_and_b32 %s, 2, %s" % (vr(t2), vr(t2)))
    g.e("v_xor_b32 %s, %s, %s" % (vr(t2), vr(t2), vr(t1)))
    g.e("v_lshlrev_b32 %s, 6, %s" % (vr(t3), vr(t0)))
    g.e("v_lshl_add_u32 %s, %s, 4, %s" % (vr(t3), vr(t2), vr(t3)))
    g.e("s_lshl_b32 %s, %s, 12" % (sr(sT), sr(sWM)))
    g.e("s_add_u32 %s, %s, %d" % (sr(sT), sr(sT), XBASE))
    g.e("v_add_u32 %s, %s, %s" % (vr(vXrd), sr(sT), vr(t3)))
    g.e("v_lshrrev_b32 %s, 2, %s" % (vr(t2), vr(t0)))
    g.e("v_lshl_add_u32 %s, %s, 3, %s" % (vr(t2), vr(t1), vr(t2)))
    g.e("v_mul_u32_u24 %s, 640, %s" % (vr(t2), vr(t2)))
    g.e("v_and_b32 %s, 3, %s" % (vr(t3), vr(t0)))
    g.e("v_lshl_add_u32 %s, %s, 3, %s" % (vr(t2), vr(t3), vr(t2)))
    g.e("v_bfe_u32 %s, %s, 3, 1" % (vr(t3), vr(t0)))
    g.e("v_and_b32 %s, 1, %s" % (vr(t4), vr(t1)))
    g.e("v_lshl_or_b32 %s, %s, 1, %s" % (vr(t3), vr(t4), vr(t3)))
    g.e("s_mul_i32 %s, %s, 6" % (sr(sT), sr(sWN)))
    g.e("s_add_u32 %s, %s, 4" % (sr(sT + 1), sr(sWN)))
    for j in range(5):
        for hf in range(2):
            if j < 4:
                g.e("s_add_u32 %s, %s, %d" % (sr(sT + 2), sr(sT), j + 10 * hf))
            else:
                g.e("s_add_u32 %s, %s, %d" % (sr(sT + 2), sr(sT + 1), 10 * hf))
            g.e("v_xor_b32 %s, %s, %s" % (vr(t4), sr(sT + 2), vr(t3)))
            g.e("v_lshl_add_u32 %s, %s, 5, %s" % (vr(vWrd + j + 5 * hf), vr(t4), vr(t2)))
    g.e("s_mov_b32 %s, %s" % (sr(SRD), sr(sWS)))
    g.e("s_and_b32 %s, %s, 0xffff" % (sr(SRD + 1), sr(sWS + 1)))
    g.e("s_mov_b32 %s, 0x%x" % (sr(SRD + 2), WS_BYTES))
    g.e("s_mov_b32 %s, 0x00020000" % sr(SRD + 3))

    TP = int(os.environ.get("TP", "0"))
    sTp, sTi = 60, 66
    if TP:
        g.e("s_lshl_b32 %s, s2, 3" % sr(sT))
        g.e("s_add_u32 %s, %s, %s" % (sr(sT), sr(sT), sr(sW)))
        g.e("s_mul_i32 %s, %s, 3" % (sr(sT), sr(sT)))
        for j in range(3):
            p, ie, io = sTp + 2 * j, sTi + 2 * j, sTi + 2 * j + 1
            l1, l2, l3, le = g.newlab("K1_T"), g.newlab("K1_T"), g.newlab("K1_T"), g.newlab("K1_T")
            g.e("s_add_u32 %s, %s, %d" % (sr(sT + 1), sr(sT), j))
            g.e("s_cmp_ge_u32 %s, 1536" % sr(sT + 1))
            g.e("s_cbranch_scc1 %s" % l1)
            g.e("s_lshl_b32 %s, %s, 7" % (sr(sT + 2), sr(sT + 1)))
            g.e("s_add_u32 %s, %s, %d" % (sr(sT + 2), sr(sT + 2), TP * 32 * 6144))
            g.e("s_add_u32 %s, %s, %s" % (sr(p), sr(sQ), sr(sT + 2)))
            g.e("s_addc_u32 %s, %s, 0" % (sr(p + 1), sr(sQ + 1)))
            g.e("s_mov_b32 %s, %d" % (sr(ie), 32 * 6144))
            g.e("s_mov_b32 %s, %d" % (sr(io), 32 * 6144))
            g.e("s_branch %s" % le)
            g.label(l1)
            g.e("s_cmp_ge_u32 %s, 3328" % sr(sT + 1))
            g.e("s_cbranch_scc1 %s" % l2)
            g.e("s_sub_u32 %s, %s, 1536" % (sr(sT + 2), sr(sT + 1)))
            g.e("s_lshl_b32 %s, %s, 7" % (sr(sT + 2), sr(sT + 2)))
            g.e("s_add_u32 %s, %s, %d" % (sr(sT + 2), sr(sT + 2), TP * 32 * 7168))
            g.e("s_add_u32 %s, %s, %s" % (sr(p), sr(sG), sr(sT + 2)))
            g.e("s_addc_u32 %s, %s, 0" % (sr(p + 1), sr(sG + 1)))
            g.e("s_mov_b32 %s, %d" % (sr(ie), 32 * 7168))
            g.e("s_mov_b32 %s, %d" % (sr(io), 32 * 7168))
            g.e("s_branch %s" % le)
            g.label(l2)
            g.e("s_cmp_ge_u32 %s, 5120" % sr(sT + 1))
            g.e("s_cbranch_scc1 %s" % l3)
            g.e("s_sub_u32 %s, %s, 3328" % (sr(sT + 2), sr(sT + 1)))
            g.e("s_lshl_b32 %s, %s, 7" % (sr(sT + 2), sr(sT + 2)))
            g.e("s_add_u32 %s, %s, %d" % (sr(sT + 2), sr(sT + 2), TP * 32 * 7168))
            g.e("s_add_u32 %s, %s, %s" % (sr(p), sr(sU), sr(sT + 2)))
            g.e("s_addc_u32 %s, %s, 0" % (sr(p + 1), sr(sU + 1)))
            g.e("s_mov_b32 %s, %d" % (sr(ie), 32 * 7168))
            g.e("s_mov_b32 %s, %d" % (sr(io), 32 * 7168))
            g.e("s_branch %s" % le)
            g.label(l3)
            g.e("s_sub_u32 %s, %s, 5120" % (sr(sT + 2), sr(sT + 1)))
            g.e("s_lshl_b32 %s, %s, 12" % (sr(sT + 2), sr(sT + 2)))
            g.e("s_add_u32 %s, %s, %d" % (sr(sT + 2), sr(sT + 2), (TP // 2) * 128))
            g.e("s_add_u32 %s, %s, %s" % (sr(p), sr(sX), sr(sT + 2)))
            g.e("s_addc_u32 %s, %s, 0" % (sr(p + 1), sr(sX + 1)))
            g.e("s_mov_b32 %s, 2048" % sr(ie))
            g.e("s_mov_b32 %s, %d" % (sr(io), -2048 + 128))
            g.label(le)
    def touch(s, j):
        p = sTp + 2 * j
        inc = sTi + 2 * j + ((s + TP) & 1)
        g.e("s_load_dword s72, %s, 0" % sr(p, 2))
        g.e("s_ashr_i32 s73, %s, 31" % sr(inc))
        g.e("s_add_u32 %s, %s, %s" % (sr(p), sr(p), sr(inc)))
        g.e("s_addc_u32 %s, %s, s73" % (sr(p + 1), sr(p + 1)))
    lz = g.newlab("K1_Z")
    g.e("s_cmp_lg_u32 %s, 0" % sr(sW))
    g.e("s_cbranch_scc1 %s" % lz)
    if FUSED:
        g.e("s_lshr_b32 %s, s2, 5" % sr(sT))
        g.e("s_lshl_b32 %s, %s, 10" % (sr(sT), sr(sT)))
        g.e("s_and_b32 %s, s2, 31" % sr(sT + 1))
        g.e("s_lshl_b32 %s, %s, 4" % (sr(sT + 1), sr(sT + 1)))
        g.e("s_add_u32 %s, %s, %s" % (sr(sT), sr(sT), sr(sT + 1)))
        g.e("s_add_u32 %s, %s, 0x%x" % (sr(sT), sr(sT), FLAG_OFF))
        g.e("v_lshrrev_b32 %s, 2, v0" % vr(t0))
        g.e("v_lshlrev_b32 %s, 9, %s" % (vr(t0), vr(t0)))
        g.e("v_and_b32 %s, 3, v0" % vr(t1))
        g.e("v_lshl_add_u32 %s, %s, 2, %s" % (vr(t0), vr(t1), vr(t0)))
    else:
        g.e("s_lshl_b32 %s, s2, 5" % sr(sT))
        g.e("s_add_u32 %s, %s, 0x%x" % (sr(sT), sr(sT), FLAG_OFF))
        g.e("v_lshlrev_b32 %s, 2, v0" % vr(t0))
    g.e("v_mov_b32 %s, 0" % vr(t1))
    g.e("s_mov_b64 exec, 0xff")
    g.e("buffer_store_dword %s, %s, %s, %s offen %s" % (vr(t1), vr(t0), sr(SRD, 4), sr(sT), STF))
    g.e("s_mov_b64 exec, -1")
    g.label(lz)

    def dma(st, idx):
        slot = st % 4
        tag = ("dma", st)
        if "samek" in ABL:
            if idx < 2:
                g.e("s_add_u32 m0, %s, %d" % (sr(sXm0), slot * 16384 + idx * 1024))
                g.e("s_nop 0")
                g.vm("global_load_lds_dwordx4 %s, %s" % (vr(vXo + idx), sr(sX, 2)), tag)
            elif idx < 4:
                n = idx - 2
                g.e("s_add_u32 m0, %s, %d" % (sr(sWm0), slot * 20480 + n * 8192))
                g.e("s_nop 0")
                g.vm("global_load_lds_dwordx4 %s, off" % vr(vWp + 2 * n, 2), tag)
            else:
                g.e("s_add_u32 m0, %s, %d" % (sr(sWm0h), slot * 20480 + 16384))
                g.e("s_mov_b32 exec_hi, 0")
                g.vm("global_load_lds_dwordx4 %s, off" % vr(vWp + 4, 2), tag)
                g.e("s_mov_b32 exec_hi, -1")
            return
        if idx < 2:
            g.e("s_add_u32 m0, %s, %d" % (sr(sXm0), slot * 16384 + idx * 1024 - st * 64))
            g.e("s_nop 0")
            g.vm("global_load_lds_dwordx4 %s, %s offset:%d" % (vr(vXo + idx), sr(sX, 2), st * 64), tag)
        elif idx < 4:
            n = idx - 2
            g.e("s_add_u32 m0, %s, %d" % (sr(sWm0), slot * 20480 + n * 8192))
            g.e("s_nop 0")
            g.vm("global_load_lds_dwordx4 %s, off" % vr(vWp + 2 * n, 2), tag)
            g.e("v_add_co_u32 %s, vcc, %s, %s" % (vr(vWp + 2 * n), vr(vWp + 2 * n), vr(vWs + n)))
            g.e("v_addc_co_u32 %s, vcc, 0, %s, vcc" % (vr(vWp + 2 * n + 1), vr(vWp + 2 * n + 1)))
        else:
            n = 2
            g.e("s_add_u32 m0, %s, %d" % (sr(sWm0h), slot * 20480 + 16384))
            g.e("s_mov_b32 exec_hi, 0")
            g.vm("global_load_lds_dwordx4 %s, off" % vr(vWp + 2 * n, 2), tag)
            g.e("s_mov_b32 exec_hi, -1")
            g.e("v_add_co_u32 %s, vcc, %s, %s" % (vr(vWp + 2 * n), vr(vWp + 2 * n), vr(vWs + n)))
            g.e("v_addc_co_u32 %s, vcc, 0, %s, vcc" % (vr(vWp + 2 * n + 1), vr(vWp + 2 * n + 1)))
    def wread(f):
        s, t = divmod(f, 10)
        reg = WF + 4 * (f % WSL)
        off = (s % 4) * 20480
        g.lds("ds_read_b64_tr_b16 %s, %s offset:%d" % (vr(reg, 2), vr(vWrd + t), off), ("w", f))
        g.lds("ds_read_b64_tr_b16 %s, %s offset:%d" % (vr(reg + 2, 2), vr(vWrd + t), off + 2560), ("w", f))
    def xread(s, rg):
        reg = XF + 16 * (s % 2) + 4 * rg
        g.lds("ds_read_b128 %s, %s offset:%d" % (vr(reg, 4), vr(vXrd), (s % 4) * 16384 + rg * 1024), ("x", s))

    stamp(g)
    g.vm("global_load_dwordx4 v[100:103], v96, s[54:55]", ("gate",))
    g.vm("global_load_dwordx4 v[104:107], v96, s[54:55] offset:16", ("gate",))
    g.vm("global_load_dwordx4 v[108:111], v97, %s" % sr(sX, 2), ("gate",))
    g.vm("global_load_dwordx4 v[112:115], v97, %s offset:16" % sr(sX, 2), ("gate",))
    for idx in range(5):
        dma(1, idx)
    if not BMID:
        for idx in range(5):
            dma(2, idx)
    g.need(vtags=[("gate",)])
    for k in range(8):
        r = 116 + 4 * (k % 2)
        g.e("v_lshlrev_b32 %s, 16, %s" % (vr(r), vr(100 + k)))
        g.e("v_and_b32 %s, 0xffff0000, %s" % (vr(r + 1), vr(100 + k)))
        g.e("v_lshlrev_b32 %s, 16, %s" % (vr(r + 2), vr(108 + k)))
        g.e("v_and_b32 %s, 0xffff0000, %s" % (vr(r + 3), vr(108 + k)))
        g.e("v_pk_mul_f32 %s, %s, %s" % (vr(r, 2), vr(r, 2), vr(r + 2, 2)))
        round_pair(g, r)
        if k == 0:
            g.e("v_mov_b32 v124, %s" % vr(r))
            g.e("v_mov_b32 v125, %s" % vr(r + 1))
        else:
            g.e("v_pk_add_f32 v[124:125], v[124:125], %s" % vr(r, 2))
    g.e("v_add_f32 v124, v124, v125")
    for dp in ("quad_perm:[1,0,3,2]", "quad_perm:[2,3,0,1]", "row_half_mirror", "row_mirror"):
        g.e("s_nop 1")
        g.e("v_add_f32_dpp v124, v124, v124 %s row_mask:0xf bank_mask:0xf" % dp)
    for pl in ("32", "16"):
        g.e("v_mov_b32 v125, v124")
        g.e("s_nop 1")
        g.e("v_permlane%s_swap_b32 v124, v125" % pl)
        g.e("v_add_f32 v124, v124, v125")
    g.e("v_cvt_pk_bf16_f32 v124, 0, v124")
    g.e("v_mul_f32 v124, 0x%x, v124" % f2u(-LOG2E))
    g.e("v_exp_f32 v124, v124")
    g.e("s_nop 0")
    g.e("v_add_f32 v124, 1.0, v124")
    g.e("v_rcp_f32 v124, v124")
    g.e("s_lshl_b32 %s, s53, 2" % sr(sT))
    g.e("v_cvt_pk_bf16_f32 v28, 0, v124")
    g.e("v_mov_b32 v29, 0")
    g.e("s_add_u32 %s, %s, 0x%x" % (sr(sT), sr(sT), G_OFF))
    g.e("s_mov_b64 exec, 1")
    g.vm("buffer_store_dword v28, v29, %s, %s offen %s" % (sr(SRD, 4), sr(sT), STF), ("gst",))
    g.e("s_mov_b64 exec, -1")
    g.need(vtags=[("dma", 0)])
    g.e("s_barrier")
    stamp(g)
    if os.environ.get("K1PRIO", "lo") != "none":
        lp = g.newlab("K1_P")
        g.e("s_cmp_%s_u32 %s, 4" % ("lt" if os.environ.get("K1PRIO", "lo") == "hi" else "ge", sr(sW)))
        g.e("s_cbranch_scc1 %s" % lp)
        g.e("s_setprio 1")
        g.label(lp)
    for rg in range(4):
        xread(0, rg)
    for f in range(D):
        wread(f)
    for s in range(NST):
        g.c("---- stage %d" % s)
        if s + 1 < NST and not BMID:
            g.need(vtags=[("dma", s + 1)])
            g.e("s_barrier")
        if s == NST - 1 and "nopf" not in ABL:
            g.e("s_lshl_b32 %s, s2, 3" % sr(sT))
            g.e("s_add_u32 %s, %s, %s" % (sr(sT), sr(sT), sr(sW)))
            g.e("s_lshl_b32 %s, %s, 10" % (sr(sT + 1), sr(sT)))
            g.e("v_lshlrev_b32 v28, 7, v0")
            g.e("v_add_u32 v29, %s, v28" % sr(sT + 1))
            g.e("s_mul_i32 %s, %s, %d" % (sr(sT + 1), sr(sT), 28 * 128))
            g.e("v_add_u32 v28, %s, v28" % sr(sT + 1))
            g.e("s_mov_b64 exec, 0xff")
            g.e("global_load_dword v30, v29, s[56:57]")
            g.e("s_mov_b64 exec, 0xfffffff")
            g.e("global_load_dword v31, v28, s[58:59]")
            g.e("s_mov_b64 exec, -1")
        for gi in range(10):
            BM = 10 - D
            if BMID and s == 0 and gi < 5:
                dma(2, gi); dma(3, gi) if False else None
            if BMID and s == 0 and gi == 5:
                for idx in range(5):
                    dma(3, idx)
            if BMID:
                if gi == BM and s + 1 < NST:
                    g.need(ltags=[("w", s * 10 + 9)], vtags=[("dma", s + 1)])
                    g.e("s_barrier")
                if gi >= BM and s + 4 < NST:
                    k = gi - BM
                    if k == 0:
                        dma(s + 4, 0); dma(s + 4, 1)
                    elif k < 4:
                        dma(s + 4, k + 1)
                if TP and gi in (1, 2, 3) and s + TP < NST:
                    touch(s, gi - 1)
            else:
                if DG <= gi < DG + 5 and s + 3 < NST:
                    dma(s + 3, gi - DG)
                if TP and gi in (6, 7, 8) and s + TP < NST:
                    touch(s, gi - 6)
            if BMID and os.environ.get("EARLY", "1") == "1":
                sched = {0: (4, 5), 1: (6, 7), 2: (8, 9), 6: (10,), 7: (11,), 8: (12,), 9: (13,)}
                for t in sched.get(gi, ()):
                    if s * 10 + t < NST * 10:
                        wread(s * 10 + t)
            else:
                f = s * 10 + gi + D
                if f < NST * 10 and "nolds" not in ABL:
                    wread(f)
            if BMID:
                if gi in (BM, BM + 1) and s + 1 < NST:
                    xread(s + 1, 2 * (gi - BM)); xread(s + 1, 2 * (gi - BM) + 1)
            elif XG <= gi < XG + 4 and s + 1 < NST:
                xread(s + 1, gi - XG)
            g.need(ltags=[("w", s * 10 + gi), ("x", s)])
            if "nomfma" in ABL and s > 0:
                continue
            wreg = WF + 4 * ((s * 10 + gi) % WSL)
            for rg in range(4):
                xreg = XF + 16 * (s % 2) + 4 * rg
                a = acc(gi, rg)
                cin = "0" if s == 0 else vr(a, 4)
                g.e("v_mfma_f32_16x16x32_bf16 %s, %s, %s, %s" % (vr(a, 4), vr(wreg, 4), vr(xreg, 4), cin))
    g.c("---- epilogue")
    stamp(g)
    if "k1noepi" in ABL:
        g.e("s_branch K1_END")
    sK1, sK2, sOne = 44, 46, 48
    vK1 = 26
    g.e("s_mov_b32 %s, 0x%x" % (sr(sK2), f2u(GK2)))
    g.e("s_mov_b32 %s, 0x%x" % (sr(sK2 + 1), f2u(GK2)))
    g.e("s_mov_b32 %s, 1.0" % sr(sOne))
    g.e("s_mov_b32 %s, 1.0" % sr(sOne + 1))
    g.e("v_mov_b32 %s, 0x%x" % (vr(vK1), f2u(GK1)))
    g.e("v_mov_b32 %s, 0x%x" % (vr(vK1 + 1), f2u(GK1)))
    sM0, sB, sDA, sDB, sJA = 50, 51, 52, 53, 54
    g.e("s_lshl_b32 %s, %s, 4" % (sr(sM0), sr(sRB)))
    g.e("s_lshl_b32 %s, %s, 2" % (sr(sT), sr(sWM)))
    g.e("s_add_u32 %s, %s, %s" % (sr(sM0), sr(sM0), sr(sT)))
    vL16s = 25
    g.e("s_lshl_b32 %s, %s, 3" % (sr(sT), sr(sWN)))
    g.e("v_add_u32 %s, %s, %s" % (vr(vL16s), sr(sT), vr(vL16)))
    g.e("s_nop 7")
    TMP = 32
    for u in range(3):
        lq, ldone = g.newlab("K1_Q"), g.newlab("K1_D")
        if u < 2:
            g.e("s_mul_i32 %s, %s, 3" % (sr(sB), sr(sWN)))
            g.e("s_add_u32 %s, %s, %d" % (sr(sB), sr(sB), u))
        else:
            g.e("s_mov_b32 %s, 2" % sr(sB))
        g.e("s_lshl_b32 %s, %s, 2" % (sr(sT), sr(sB)))
        g.e("s_cmp_lt_u32 %s, %s" % (sr(sT), sr(sN1)))
        g.e("s_cbranch_scc0 %s" % lq)
        g.e("s_mul_i32 %s, %s, 5" % (sr(sT), sr(sCB)))
        g.e("s_add_u32 %s, %s, %s" % (sr(sT), sr(sT), sr(sB)))
        g.e("s_add_u32 %s, %s, 32" % (sr(sT), sr(sT)))
        g.e("s_mul_i32 %s, %s, %d" % (sr(sDA), sr(sM0), NKB))
        g.e("s_add_u32 %s, %s, %s" % (sr(sDA), sr(sDA), sr(sT)))
        g.e("s_lshl_b32 %s, %s, 10" % (sr(sDA), sr(sDA)))
        tiles = [2 * u, 2 * u + 1] if u < 2 else [4]
        for rg in range(4):
            outb = TMP + 8 * (rg % 2)
            k = 0
            for t in tiles:
                for pr in range(2):
                    ga = acc(t, rg) + 2 * pr
                    ua = acc(t + 5, rg) + 2 * pr
                    tm = TMP + 16 + 8 * (k % 2)
                    round_pair(g, ga, tm)
                    round_pair(g, ua, tm + 1)
                    g.e("v_pk_mul_f32 %s, %s, %s" % (vr(tm + 2, 2), vr(ga, 2), vr(ga, 2)))
                    g.e("v_pk_fma_f32 %s, %s, %s, %s" % (vr(tm + 2, 2), vr(tm + 2, 2), sr(sK2, 2), vr(vK1, 2)))
                    g.e("v_pk_mul_f32 %s, %s, %s" % (vr(tm + 2, 2), vr(tm + 2, 2), vr(ga, 2)))
                    g.e("v_exp_f32 %s, %s" % (vr(tm + 2), vr(tm + 2)))
                    g.e("v_exp_f32 %s, %s" % (vr(tm + 3), vr(tm + 3)))
                    g.e("s_nop 0")
                    g.e("v_pk_add_f32 %s, %s, %s" % (vr(tm + 2, 2), vr(tm + 2, 2), sr(sOne, 2)))
                    g.e("v_rcp_f32 %s, %s" % (vr(tm + 2), vr(tm + 2)))
                    g.e("v_rcp_f32 %s, %s" % (vr(tm + 3), vr(tm + 3)))
                    g.e("s_nop 0")
                    g.e("v_pk_mul_f32 %s, %s, %s" % (vr(ga, 2), vr(tm + 2, 2), vr(ga, 2)))
                    round_pair(g, ga, tm)
                    g.e("v_pk_mul_f32 %s, %s, %s" % (vr(ga, 2), vr(ga, 2), vr(ua, 2)))
                    g.e("v_cvt_pk_bf16_f32 %s, %s, %s" % (vr(outb + k), vr(ga), vr(ga + 1)))
                    k += 1
            if u < 2:
                g.e("buffer_store_dwordx4 %s, %s, %s, %s offen %s" % (vr(outb, 4), vr(vL16), sr(SRD, 4), sr(sDA), STF))
            else:
                g.e("buffer_store_dwordx2 %s, %s, %s, %s offen %s" % (vr(outb, 2), vr(vL16s), sr(SRD, 4), sr(sDA), STF))
            if rg < 3:
                g.e("s_add_u32 %s, %s, %d" % (sr(sDA), sr(sDA), NKB * 1024))
        g.e("s_branch %s" % ldone)
        g.label(lq)
        for (sc, sd) in ((sColQA, sDA), (sColQB, sDB)):
            g.e("s_ashr_i32 %s, %s, 5" % (sr(sT), sr(sc)))
            g.e("s_add_u32 %s, %s, %s" % (sr(sT), sr(sT), sr(sB)))
            g.e("s_lshl_b32 %s, %s, 7" % (sr(sT), sr(sT)))
            g.e("s_add_u32 %s, %s, %s" % (sr(sT), sr(sT), sr(sM0)))
            g.e("s_lshl_b32 %s, %s, 10" % (sr(sT), sr(sT)))
            g.e("s_add_u32 %s, %s, 0x%x" % (sr(sd), sr(sT), QKV_OFF))
        n = 0
        for rg in range(4):
            for hf, sd in ((0, sDA), (1, sDB)):
                outb = TMP + 4 * (n % 8)
                n += 1
                k = 0
                for t in tiles:
                    for pr in range(2):
                        a = acc(t + 5 * hf, rg) + 2 * pr
                        g.e("v_cvt_pk_bf16_f32 %s, %s, %s" % (vr(outb + k), vr(a), vr(a + 1)))
                        k += 1
                if u < 2:
                    g.e("buffer_store_dwordx4 %s, %s, %s, %s offen offset:%d %s" % (vr(outb, 4), vr(vL16), sr(SRD, 4), sr(sd), rg * 1024, STF))
                else:
                    g.e("buffer_store_dwordx2 %s, %s, %s, %s offen offset:%d %s" % (vr(outb, 2), vr(vL16s), sr(SRD, 4), sr(sd), rg * 1024, STF))
        g.label(ldone)
        if u < 2:
            g.e("s_nop 1")
    if FUSED:
        lf = g.newlab("K1_F")
        g.e("s_load_dwordx2 s[44:45], s[0:1], 72")
        g.e("s_waitcnt vmcnt(0) lgkmcnt(0)")
        g.e("s_barrier")
        g.e("s_cmp_lg_u32 %s, 0" % sr(sW))
        g.e("s_cbranch_scc1 %s" % lf)
        g.e("v_mov_b32 v2, s2")
        g.e("v_mov_b32 v3, 1")
        g.e("s_mov_b64 exec, 1")
        g.e("global_store_byte v2, v3, s[44:45] sc1")
        g.e("s_mov_b64 exec, -1")
        g.label(lf)
        rtmark(g, sWS, 2)
        stamp(g)
        g.e("s_mov_b32 s18, %s" % sr(sW))
        return name
    stamp_end(g)
    g.label("K1_END")
    g.e("s_endpgm")
    return name

def gen_k2(g):
    name = "k2_attn_kernel"
    kstart(g, name)
    g.lq = []; g.vq = []
    sWS, sX, sGW = 4, 6, 8
    sHd, sQB, sW, sT = 10, 11, 12, 13
    SRD = 20
    sMk = 24
    sNneg = 32
    sC, sL2 = 34, 36
    g.e("s_cmp_ge_u32 s2, 512")
    g.e("s_cbranch_scc1 K2_END")
    stamp_begin(g)
    g.e("s_load_dwordx2 %s, s[0:1], 80" % sr(sWS, 2))
    g.e("s_load_dwordx2 %s, s[0:1], 0" % sr(sX, 2))
    g.e("s_load_dwordx2 %s, s[0:1], 56" % sr(sGW, 2))
    g.e("s_load_dwordx2 s[40:41], s[0:1], 16")
    g.e("s_load_dwordx2 s[42:43], s[0:1], 48")
    g.e("v_lshrrev_b32 v1, 6, v0")
    g.e("v_and_b32 v0, 63, v0")
    g.e("v_readfirstlane_b32 %s, v1" % sr(sW))
    vL16 = 2
    g.e("v_lshlrev_b32 %s, 4, v0" % vr(vL16))
    g.e("s_waitcnt lgkmcnt(0)")
    g.e("s_mov_b32 %s, %s" % (sr(SRD), sr(sWS)))
    g.e("s_and_b32 %s, %s, 0xffff" % (sr(SRD + 1), sr(sWS + 1)))
    g.e("s_mov_b32 %s, 0x%x" % (sr(SRD + 2), WS_BYTES))
    g.e("s_mov_b32 %s, 0x00020000" % sr(SRD + 3))
    sRow = 38
    g.e("s_lshl_b32 %s, s2, 2" % sr(sRow))
    g.e("s_add_u32 %s, %s, %s" % (sr(sRow), sr(sRow), sr(sW)))
    g.e("s_lshl_b32 %s, %s, 11" % (sr(sT), sr(sRow)))
    g.e("v_lshlrev_b32 v3, 5, v0")
    g.e("v_add_u32 v20, %s, v3" % sr(sT))
    g.e("global_load_dwordx4 v[60:63], v3, %s" % sr(sGW, 2))
    g.e("global_load_dwordx4 v[64:67], v3, %s offset:16" % sr(sGW, 2))
    g.e("global_load_dwordx4 v[68:71], v20, %s" % sr(sX, 2))
    g.e("global_load_dwordx4 v[72:75], v20, %s offset:16" % sr(sX, 2))
    g.e("s_and_b32 %s, s2, 31" % sr(sHd))
    g.e("s_lshr_b32 %s, s2, 5" % sr(sQB))
    g.e("s_lshl_b32 %s, %s, 3" % (sr(sT), sr(sQB)))
    g.e("s_add_u32 %s, %s, %s" % (sr(sT), sr(sT), sr(sW)))
    g.e("s_sub_u32 %s, %s, 16" % (sr(sT), sr(sT)))
    g.e("s_lshl_b32 %s, %s, 17" % (sr(sT + 1), sr(sHd)))
    g.e("s_add_u32 %s, %s, 0x%x" % (sr(sT + 1), sr(sT + 1), QKV_OFF + 32 * 128 * 1024))
    g.e("s_lshl_b32 %s, %s, 10" % (sr(sT + 4), sr(sW)))
    for i in range(6):
        g.e("s_add_u32 %s, %s, %d" % (sr(sT + 2), sr(sT), 4 * i))
        g.e("s_max_i32 %s, %s, 0" % (sr(sT + 2), sr(sT + 2)))
        g.e("s_lshl_b32 %s, %s, 10" % (sr(sT + 2), sr(sT + 2)))
        g.e("s_add_u32 %s, %s, %s" % (sr(sT + 2), sr(sT + 2), sr(sT + 1)))
        g.e("s_add_u32 %s, %s, 0x%x" % (sr(sT + 3), sr(sT + 2), 32 * 128 * 1024))
        g.e("s_add_u32 m0, %s, %d" % (sr(sT + 4), 4096 * i))
        g.e("s_nop 0")
        g.e("buffer_load_dwordx4 %s, %s, %s offen lds" % (vr(vL16), sr(SRD, 4), sr(sT + 2)))
        g.e("s_add_u32 m0, %s, %d" % (sr(sT + 4), 24576 + 4096 * i))
        g.e("s_nop 0")
        g.e("buffer_load_dwordx4 %s, %s, %s offen lds" % (vr(vL16), sr(SRD, 4), sr(sT + 3)))
    QF = 4
    g.e("s_lshl_b32 %s, %s, 3" % (sr(sT), sr(sQB)))
    g.e("s_lshl_b32 %s, %s, 1" % (sr(sT + 2), sr(sW)))
    g.e("s_add_u32 %s, %s, %s" % (sr(sT + 5), sr(sT), sr(sT + 2)))
    g.e("s_lshl_b32 %s, %s, 7" % (sr(sT + 2), sr(sHd)))
    g.e("s_add_u32 %s, %s, %s" % (sr(sT + 2), sr(sT + 2), sr(sT + 5)))
    g.e("s_lshl_b32 %s, %s, 10" % (sr(sT + 2), sr(sT + 2)))
    g.e("s_add_u32 %s, %s, 0x%x" % (sr(sT + 2), sr(sT + 2), QKV_OFF))
    g.e("buffer_load_dwordx4 %s, %s, %s, %s offen" % (vr(QF, 4), vr(vL16), sr(SRD, 4), sr(sT + 2)))
    g.e("buffer_load_dwordx4 %s, %s, %s, %s offen offset:1024" % (vr(QF + 4, 4), vr(vL16), sr(SRD, 4), sr(sT + 2)))
    g.e("s_sub_u32 %s, 16, %s" % (sr(sNneg), sr(sT + 5)))
    g.e("s_max_i32 %s, %s, 0" % (sr(sNneg), sr(sNneg)))
    vI, vQ4, vNI, vKrd, vVrd = 12, 13, 14, 15, 16
    g.e("v_and_b32 %s, 15, v0" % vr(vI))
    g.e("v_lshrrev_b32 %s, 4, v0" % vr(vQ4))
    g.e("v_lshlrev_b32 %s, 2, %s" % (vr(17), vr(vQ4)))
    for r in range(4):
        g.e("v_add_u32 %s, %d, %s" % (vr(18), r, vr(17)))
        g.e("v_cmp_gt_u32 %s, %s, %s" % (sr(sMk + 2 * r, 2), vr(18), vr(vI)))
    g.e("v_mov_b32 %s, 0xff800000" % vr(vNI))
    g.e("s_lshl_b32 %s, %s, 11" % (sr(sT), sr(sW)))
    g.e("v_add_u32 %s, %s, %s" % (vr(vKrd), sr(sT), vr(vL16)))
    g.e("v_and_b32 %s, 3, %s" % (vr(18), vr(vI)))
    g.e("v_lshlrev_b32 %s, 4, %s" % (vr(18), vr(18)))
    g.e("v_add_u32 %s, %s, %s" % (vr(18), vr(18), vr(17)))
    g.e("v_lshrrev_b32 %s, 2, %s" % (vr(19), vr(vI)))
    g.e("v_add_u32 %s, %s, %s" % (vr(18), vr(18), vr(19)))
    g.e("v_lshlrev_b32 %s, 4, %s" % (vr(18), vr(18)))
    g.e("s_add_u32 %s, %s, 24576" % (sr(sT), sr(sT)))
    g.e("v_add_u32 %s, %s, %s" % (vr(vVrd), sr(sT), vr(18)))
    g.e("s_mov_b32 %s, 0x%x" % (sr(sC), f2u(32 ** -0.5)))
    g.e("s_mov_b32 %s, 0x%x" % (sr(sC + 1), f2u(32 ** -0.5)))
    g.e("s_mov_b32 %s, 0x%x" % (sr(sL2), f2u(LOG2E)))
    g.e("s_mov_b32 %s, 0x%x" % (sr(sL2 + 1), f2u(LOG2E)))
    g.e("s_waitcnt vmcnt(0)")
    g.e("s_barrier")
    if "nopf" not in ABL:
        g.e("s_lshl_b32 %s, %s, 10" % (sr(sT), sr(sRow)))
        g.e("v_lshlrev_b32 v100, 7, v0")
        g.e("v_add_u32 v101, %s, v100" % sr(sT))
        g.e("s_mul_i32 %s, %s, %d" % (sr(sT), sr(sRow), 28 * 128))
        g.e("v_add_u32 v102, %s, v100" % sr(sT))
        g.e("s_mov_b64 exec, 0xff")
        g.e("global_load_dword v254, v101, s[40:41]")
        g.e("s_mov_b64 exec, 0xfffffff")
        g.e("global_load_dword v255, v102, s[42:43]")
        g.e("s_mov_b64 exec, -1")
    KF = 20
    SA = 52
    SB = 120
    VF = 188
    OA = 220
    TM = 236
    def S(grp, t):
        return SA + 4 * t if grp == 0 else SB + 4 * (t - 1)
    def kread(t):
        g.lds("ds_read_b128 %s, %s offset:%d" % (vr(KF + 4 * (t % 8), 4), vr(vKrd), t * 1024), ("k", t))
    for t in range(6):
        kread(t)
    for k in range(8):
        a = 76 + 4 * (k % 2)
        g.e("v_lshlrev_b32 %s, 16, %s" % (vr(a), vr(60 + k)))
        g.e("v_and_b32 %s, 0xffff0000, %s" % (vr(a + 1), vr(60 + k)))
        g.e("v_lshlrev_b32 %s, 16, %s" % (vr(a + 2), vr(68 + k)))
        g.e("v_and_b32 %s, 0xffff0000, %s" % (vr(a + 3), vr(68 + k)))
        g.e("v_pk_mul_f32 %s, %s, %s" % (vr(a, 2), vr(a, 2), vr(a + 2, 2)))
        round_pair(g, a)
        if k == 0:
            g.e("v_mov_b32 v84, %s" % vr(a))
            g.e("v_mov_b32 v85, %s" % vr(a + 1))
        else:
            g.e("v_pk_add_f32 v[84:85], v[84:85], %s" % vr(a, 2))
    g.e("v_add_f32 v84, v84, v85")
    g.e("s_nop 1")
    g.e("v_add_f32_dpp v84, v84, v84 quad_perm:[1,0,3,2] row_mask:0xf bank_mask:0xf")
    g.e("s_nop 1")
    g.e("v_add_f32_dpp v84, v84, v84 quad_perm:[2,3,0,1] row_mask:0xf bank_mask:0xf")
    g.e("s_nop 1")
    g.e("v_add_f32_dpp v84, v84, v84 row_half_mirror row_mask:0xf bank_mask:0xf")
    g.e("s_nop 1")
    g.e("v_add_f32_dpp v84, v84, v84 row_mirror row_mask:0xf bank_mask:0xf")
    g.e("v_mov_b32 v85, v84")
    g.e("s_nop 1")
    g.e("v_permlane32_swap_b32 v84, v85")
    g.e("v_add_f32 v84, v84, v85")
    g.e("v_mov_b32 v85, v84")
    g.e("s_nop 1")
    g.e("v_permlane16_swap_b32 v84, v85")
    g.e("v_add_f32 v84, v84, v85")
    g.e("v_cvt_pk_bf16_f32 v84, 0, v84")
    g.e("v_mul_f32 v84, 0x%x, v84" % f2u(-LOG2E))
    g.e("v_exp_f32 v84, v84")
    g.e("s_nop 0")
    g.e("v_add_f32 v84, 1.0, v84")
    g.e("v_rcp_f32 v84, v84")
    g.e("s_lshl_b32 %s, %s, 2" % (sr(sT), sr(sRow)))
    g.e("v_cvt_pk_bf16_f32 v84, 0, v84")
    g.e("v_mov_b32 v85, 0")
    g.e("s_add_u32 %s, %s, 0x%x" % (sr(sT), sr(sT), G_OFF))
    g.e("s_mov_b64 exec, 1")
    g.e("buffer_store_dword v84, v85, %s, %s offen" % (sr(SRD, 4), sr(sT)))
    g.e("s_mov_b64 exec, -1")
    for t in range(18):
        if t + 6 < 18:
            kread(t + 6)
        g.need(ltags=[("k", t)])
        kreg = KF + 4 * (t % 8)
        if t <= 16:
            g.e("v_mfma_f32_16x16x32_bf16 %s, %s, %s, 0" % (vr(S(0, t), 4), vr(kreg, 4), vr(QF, 4)))
        if t >= 1:
            g.e("v_mfma_f32_16x16x32_bf16 %s, %s, %s, 0" % (vr(S(1, t), 4), vr(kreg, 4), vr(QF + 4, 4)))
    def vread(j, d):
        n = j * 2 + d
        reg = VF + 4 * (n % 8)
        g.lds("ds_read_b64_tr_b16 %s, %s offset:%d" % (vr(reg, 2), vr(vVrd), (2 * j) * 1024 + 8 * d), ("v", n))
        g.lds("ds_read_b64_tr_b16 %s, %s offset:%d" % (vr(reg + 2, 2), vr(vVrd), (2 * j + 1) * 1024 + 8 * d), ("v", n))
    for n in range(6):
        vread(n // 2, n % 2)
    g.e("s_nop 7")
    for (grp, t, gt) in ((0, 0, True), (0, 16, False), (1, 1, True), (1, 17, False)):
        for r in range(4):
            a = S(grp, t) + r
            if gt:
                g.e("v_cndmask_b32 %s, %s, %s, %s" % (vr(a), vr(vNI), vr(a), sr(sMk + 2 * r, 2)))
            else:
                g.e("v_cndmask_b32 %s, %s, %s, %s" % (vr(a), vr(a), vr(vNI), sr(sMk + 2 * r, 2)))
    for t in range(16):
        g.e("s_cmp_le_u32 %s, %d" % (sr(sNneg), t))
        g.e("s_cbranch_scc1 K2_NEGDONE")
        for r in range(4):
            g.e("v_mov_b32 %s, %s" % (vr(S(0, t) + r), vr(vNI)))
        if t >= 1:
            for r in range(4):
                g.e("v_mov_b32 %s, %s" % (vr(S(1, t) + r), vr(vNI)))
    g.label("K2_NEGDONE")
    for grp in range(2):
        base = SA if grp == 0 else SB
        m0_, m1_ = TM, TM + 1
        g.e("v_max3_f32 %s, %s, %s, %s" % (vr(m0_), vr(base), vr(base + 1), vr(base + 2)))
        g.e("v_max3_f32 %s, %s, %s, %s" % (vr(m1_), vr(base + 3), vr(base + 4), vr(base + 5)))
        i = 6
        tog = 0
        while i + 1 < 68:
            mm = m0_ if tog == 0 else m1_
            g.e("v_max3_f32 %s, %s, %s, %s" % (vr(mm), vr(mm), vr(base + i), vr(base + i + 1)))
            i += 2; tog ^= 1
        g.e("v_max_f32 %s, %s, %s" % (vr(m0_), vr(m0_), vr(m1_)))
        g.e("v_mov_b32 %s, %s" % (vr(m1_), vr(m0_)))
        g.e("s_nop 1")
        g.e("v_permlane32_swap_b32 %s, %s" % (vr(m0_), vr(m1_)))
        g.e("v_max_f32 %s, %s, %s" % (vr(m0_), vr(m0_), vr(m1_)))
        g.e("v_mov_b32 %s, %s" % (vr(m1_), vr(m0_)))
        g.e("s_nop 1")
        g.e("v_permlane16_swap_b32 %s, %s" % (vr(m0_), vr(m1_)))
        g.e("v_max_f32 %s, %s, %s" % (vr(m0_), vr(m0_), vr(m1_)))
        g.e("v_mov_b32 %s, %s" % (vr(m1_), vr(m0_)))
        round_pair(g, m0_, TM + 2)
        g.e("v_pk_mul_f32 %s, %s, %s" % (vr(m0_, 2), vr(m0_, 2), sr(sC, 2)))
        round_pair(g, m0_, TM + 2)
        g.e("v_pk_mul_f32 %s, %s, %s" % (vr(m0_, 2), vr(m0_, 2), sr(sL2, 2)))
        g.e("v_sub_f32 %s, 0, %s" % (vr(m0_), vr(m0_)))
        g.e("v_sub_f32 %s, 0, %s" % (vr(m1_), vr(m1_)))
        sm = TM + 4
        for p in range(34):
            a = base + 2 * p
            tm = TM + 8 + (p % 4)
            round_pair(g, a, tm)
            g.e("v_pk_mul_f32 %s, %s, %s" % (vr(a, 2), vr(a, 2), sr(sC, 2)))
            round_pair(g, a, tm)
            g.e("v_pk_fma_f32 %s, %s, %s, %s" % (vr(a, 2), vr(a, 2), sr(sL2, 2), vr(m0_, 2)))
            g.e("v_exp_f32 %s, %s" % (vr(a), vr(a)))
            g.e("v_exp_f32 %s, %s" % (vr(a + 1), vr(a + 1)))
            if p >= 1:
                pa = base + 2 * (p - 1)
                ss = sm + 2 * ((p - 1) % 2)
                if p - 1 < 2:
                    g.e("v_mov_b32 %s, %s" % (vr(ss), vr(pa)))
                    g.e("v_mov_b32 %s, %s" % (vr(ss + 1), vr(pa + 1)))
                else:
                    g.e("v_pk_add_f32 %s, %s, %s" % (vr(ss, 2), vr(ss, 2), vr(pa, 2)))
        g.e("s_nop 0")
        pa = base + 2 * 33
        g.e("v_pk_add_f32 %s, %s, %s" % (vr(sm + 2, 2), vr(sm + 2, 2), vr(pa, 2)))
        g.e("v_pk_add_f32 %s, %s, %s" % (vr(sm, 2), vr(sm, 2), vr(sm + 2, 2)))
        g.e("v_add_f32 %s, %s, %s" % (vr(sm), vr(sm), vr(sm + 1)))
        g.e("v_mov_b32 %s, %s" % (vr(sm + 1), vr(sm)))
        g.e("s_nop 1")
        g.e("v_permlane32_swap_b32 %s, %s" % (vr(sm), vr(sm + 1)))
        g.e("v_add_f32 %s, %s, %s" % (vr(sm), vr(sm), vr(sm + 1)))
        g.e("v_mov_b32 %s, %s" % (vr(sm + 1), vr(sm)))
        g.e("s_nop 1")
        g.e("v_permlane16_swap_b32 %s, %s" % (vr(sm), vr(sm + 1)))
        g.e("v_add_f32 %s, %s, %s" % (vr(sm), vr(sm), vr(sm + 1)))
        g.e("v_rcp_f32 %s, %s" % (vr(sm), vr(sm)))
        g.e("s_nop 0")
        g.e("v_mov_b32 %s, %s" % (vr(sm + 1), vr(sm)))
        for p in range(34):
            a = base + 2 * p
            g.e("v_pk_mul_f32 %s, %s, %s" % (vr(a, 2), vr(a, 2), vr(sm, 2)))
        for ti in range(17):
            a = base + 4 * ti
            g.e("v_cvt_pk_bf16_f32 %s, %s, %s" % (vr(a), vr(a), vr(a + 1)))
            g.e("v_cvt_pk_bf16_f32 %s, %s, %s" % (vr(a + 1), vr(a + 2), vr(a + 3)))
    for j in range(9):
        a = SA + 8 * j
        if j < 8:
            g.e("v_mov_b32 %s, %s" % (vr(a + 2), vr(a + 4)))
            g.e("v_mov_b32 %s, %s" % (vr(a + 3), vr(a + 5)))
        else:
            g.e("v_mov_b32 %s, 0" % vr(a + 2))
            g.e("v_mov_b32 %s, 0" % vr(a + 3))
    for j in range(9):
        a = SB + 8 * j
        g.e("v_mov_b32 %s, %s" % (vr(a + 2), vr(a)))
        g.e("v_mov_b32 %s, %s" % (vr(a + 3), vr(a + 1)))
        if j > 0:
            g.e("v_mov_b32 %s, %s" % (vr(a), vr(a - 4)))
            g.e("v_mov_b32 %s, %s" % (vr(a + 1), vr(a - 3)))
        else:
            g.e("v_mov_b32 %s, 0" % vr(a))
            g.e("v_mov_b32 %s, 0" % vr(a + 1))
    g.e("s_nop 1")
    for n in range(18):
        j, d = n // 2, n % 2
        if n + 6 < 18:
            vread((n + 6) // 2, (n + 6) % 2)
        g.need(ltags=[("v", n)])
        vreg = VF + 4 * (n % 8)
        for grp in range(2):
            o = OA + 8 * grp + 4 * d
            pf = (SA if grp == 0 else SB) + 8 * j
            cin = "0" if j == 0 else vr(o, 4)
            g.e("v_mfma_f32_16x16x32_bf16 %s, %s, %s, %s" % (vr(o, 4), vr(vreg, 4), vr(pf, 4), cin))
    g.e("s_mul_i32 %s, %s, %d" % (sr(sT), sr(sT + 5), NKB))
    g.e("s_add_u32 %s, %s, %s" % (sr(sT), sr(sT), sr(sHd)))
    g.e("s_lshl_b32 %s, %s, 10" % (sr(sT), sr(sT)))
    g.e("s_add_u32 %s, %s, %d" % (sr(sT + 1), sr(sT), NKB * 1024))
    g.e("s_nop 7")
    for grp in range(2):
        o = OA + 8 * grp
        for k in range(4):
            g.e("v_cvt_pk_bf16_f32 %s, %s, %s" % (vr(TM + 4 * grp + k), vr(o + 2 * k), vr(o + 2 * k + 1)))
        g.e("buffer_store_dwordx4 %s, %s, %s, %s offen" % (vr(TM + 4 * grp, 4), vr(vL16), sr(SRD, 4), sr(sT + grp)))
    stamp_end(g)
    g.e("s_endpgm")
    g.label("K2_END")
    g.e("s_endpgm")
    return name

def gen_k3(g):
    name = "k3_gemm2_kernel"
    kstart(g, name)
    g.lq = []; g.vq = []
    NST = 72
    RING = int(os.environ.get("RING", "6"))
    WLDS = 98304
    sWS, sWo, sWd, sOut = 4, 6, 8, 10
    sRB, sCB, sW, sWM, sWN, sT = 12, 13, 14, 15, 16, 17
    sXb, sWb = 24, 26
    sXm0, sWm0 = 28, 29
    SRDO = 32
    SRD = 36
    g.e("s_cmp_ge_u32 s2, 256")
    g.e("s_cbranch_scc1 K3_END")
    stamp_begin(g)
    g.e("s_load_dwordx2 %s, s[0:1], 80" % sr(sWS, 2))
    g.e("s_load_dwordx2 %s, s[0:1], 16" % sr(sWo, 2))
    g.e("s_load_dwordx2 %s, s[0:1], 48" % sr(sWd, 2))
    g.e("s_load_dwordx2 %s, s[0:1], 64" % sr(sOut, 2))
    g.e("s_and_b32 %s, s2, 7" % sr(sT))
    g.e("s_lshr_b32 %s, s2, 3" % sr(sT + 1))
    g.e("s_lshr_b32 %s, %s, 1" % (sr(sRB), sr(sT)))
    g.e("s_lshl_b32 %s, %s, 2" % (sr(sRB), sr(sRB)))
    g.e("s_and_b32 %s, %s, 3" % (sr(sT + 2), sr(sT + 1)))
    g.e("s_add_u32 %s, %s, %s" % (sr(sRB), sr(sRB), sr(sT + 2)))
    g.e("s_and_b32 %s, %s, 1" % (sr(sCB), sr(sT)))
    g.e("s_lshl_b32 %s, %s, 3" % (sr(sCB), sr(sCB)))
    g.e("s_lshr_b32 %s, %s, 2" % (sr(sT + 2), sr(sT + 1)))
    g.e("s_add_u32 %s, %s, %s" % (sr(sCB), sr(sCB), sr(sT + 2)))
    g.e("v_lshrrev_b32 v1, 6, v0")
    g.e("v_and_b32 v0, 63, v0")
    g.e("v_readfirstlane_b32 %s, v1" % sr(sW))
    g.e("s_and_b32 %s, %s, 1" % (sr(sWM), sr(sW)))
    g.e("s_lshr_b32 %s, %s, 1" % (sr(sWN), sr(sW)))
    vXo = 2
    vWo = 4
    vXrd = 6
    vWrd = 8
    vG = 10
    vOo = 14
    t0, t1, t2, t3, t4 = 16, 17, 18, 19, 20
    XF = 24
    WF = 72
    ACA = 96
    ACB = 128
    TM = 24
    g.e("s_lshl_b32 %s, %s, 3" % (sr(sT), sr(sRB)))
    g.e("s_lshl_b32 %s, %s, 1" % (sr(sT + 1), sr(sW)))
    g.e("s_add_u32 %s, %s, %s" % (sr(sT), sr(sT), sr(sT + 1)))
    g.e("s_mul_i32 %s, %s, %d" % (sr(sT), sr(sT), NKB * 1024))
    g.e("v_lshlrev_b32 %s, 4, v0" % vr(t0))
    g.e("v_add_u32 %s, %s, %s" % (vr(vXo), sr(sT), vr(t0)))
    g.e("v_add_u32 %s, %d, %s" % (vr(vXo + 1), NKB * 1024, vr(vXo)))
    g.e("s_lshl_b32 %s, %s, 13" % (sr(sT), sr(sWM)))
    g.e("v_add_u32 %s, %s, %s" % (vr(vXrd), sr(sT), vr(t0)))
    g.e("v_add_u32 %s, %d, %s" % (vr(vXrd + 1), 3 * 16384, vr(vXrd)))
    g.e("v_lshrrev_b32 %s, 3, v0" % vr(t1))
    g.e("v_and_b32 %s, 6, %s" % (vr(t2), vr(t1)))
    g.e("v_and_b32 %s, 7, v0" % vr(t3))
    g.e("v_xor_b32 %s, %s, %s" % (vr(t3), vr(t3), vr(t2)))
    g.e("s_lshl_b32 %s, %s, 4" % (sr(sT), sr(sW)))
    g.e("v_add_u32 %s, %s, %s" % (vr(t1), sr(sT), vr(t1)))
    g.e("v_lshlrev_b32 %s, 11, %s" % (vr(t1), vr(t1)))
    g.e("v_lshl_add_u32 %s, %s, 4, %s" % (vr(t1), vr(t3), vr(t1)))
    g.e("s_lshl_b32 %s, %s, 7" % (sr(sT), sr(sCB)))
    g.e("v_add_u32 %s, %s, %s" % (vr(vWo), sr(sT), vr(t1)))
    g.e("v_add_u32 %s, %d, %s" % (vr(vWo + 1), 8 * 2048, vr(vWo)))
    g.e("v_and_b32 %s, 15, v0" % vr(t0))
    g.e("v_lshrrev_b32 %s, 4, v0" % vr(t1))
    g.e("v_lshrrev_b32 %s, 2, %s" % (vr(t2), vr(t0)))
    g.e("v_lshl_add_u32 %s, %s, 2, %s" % (vr(t2), vr(t1), vr(t2)))
    g.e("v_bfe_u32 %s, %s, 1, 2" % (vr(t3), vr(t2)))
    g.e("v_lshlrev_b32 %s, 7, %s" % (vr(t2), vr(t2)))
    g.e("v_and_b32 %s, 3, %s" % (vr(t4), vr(t0)))
    g.e("v_lshl_add_u32 %s, %s, 3, %s" % (vr(t2), vr(t4), vr(t2)))
    g.e("v_add_u32 %s, %d, %s" % (vr(t2), WLDS, vr(t2)))
    for tl in range(2):
        g.e("s_lshl_b32 %s, %s, 1" % (sr(sT), sr(sWN)))
        g.e("s_add_u32 %s, %s, %d" % (sr(sT), sr(sT), tl))
        g.e("v_xor_b32 %s, %s, %s" % (vr(t4), sr(sT), vr(t3)))
        g.e("v_lshl_add_u32 %s, %s, 5, %s" % (vr(vWrd + tl), vr(t4), vr(t2)))
    g.e("s_lshl_b32 %s, %s, 7" % (sr(sT), sr(sRB)))
    g.e("s_lshl_b32 %s, %s, 6" % (sr(sT + 1), sr(sWM)))
    g.e("s_add_u32 %s, %s, %s" % (sr(sT), sr(sT), sr(sT + 1)))
    g.e("v_add_u32 %s, %s, %s" % (vr(t2), sr(sT), vr(t0)))
    g.e("v_lshlrev_b32 %s, 2, %s" % (vr(t4), vr(t2)))
    g.e("v_lshlrev_b32 %s, 11, %s" % (vr(t2), vr(t2)))
    g.e("v_lshl_add_u32 %s, %s, 3, %s" % (vr(t2), vr(t1), vr(t2)))
    g.e("s_lshl_b32 %s, %s, 7" % (sr(sT), sr(sCB)))
    g.e("s_lshl_b32 %s, %s, 6" % (sr(sT + 1), sr(sWN)))
    g.e("s_add_u32 %s, %s, %s" % (sr(sT), sr(sT), sr(sT + 1)))
    g.e("v_add_u32 %s, %s, %s" % (vr(vOo), sr(sT), vr(t2)))
    g.e("s_lshl_b32 %s, %s, 12" % (sr(sXm0), sr(sW)))
    g.e("s_lshl_b32 %s, %s, 11" % (sr(sWm0), sr(sW)))
    g.e("s_add_u32 %s, %s, %d" % (sr(sWm0), sr(sWm0), WLDS))
    g.e("s_waitcnt lgkmcnt(0)")
    g.e("s_mov_b32 %s, %s" % (sr(SRD), sr(sWS)))
    g.e("s_and_b32 %s, %s, 0xffff" % (sr(SRD + 1), sr(sWS + 1)))
    g.e("s_mov_b32 %s, 0x%x" % (sr(SRD + 2), WS_BYTES))
    g.e("s_mov_b32 %s, 0x00020000" % sr(SRD + 3))
    g.e("s_mov_b32 %s, %s" % (sr(SRDO), sr(sOut)))
    g.e("s_and_b32 %s, %s, 0xffff" % (sr(SRDO + 1), sr(sOut + 1)))
    g.e("s_mov_b32 %s, 0x400000" % sr(SRDO + 2))
    g.e("s_mov_b32 %s, 0x00020000" % sr(SRDO + 3))
    g.e("s_mov_b64 %s, %s" % (sr(sXb, 2), sr(sWS, 2)))
    g.e("s_mov_b64 %s, %s" % (sr(sWb, 2), sr(sWo, 2)))
    g.e("s_mov_b32 %s, 0x%x" % (sr(sT), G_OFF))
    for rg in range(4):
        g.vm("buffer_load_dword %s, %s, %s, %s offen offset:%d" % (vr(vG + rg), vr(t4), sr(SRD, 4), sr(sT), rg * 64), ("g",))

    def dma(st, idx):
        slot = st % RING
        tag = ("dma", st)
        if idx < 4:
            m, kb = idx // 2, idx % 2
            g.e("s_add_u32 m0, %s, %d" % (sr(sXm0), slot * 16384 + m * 2048))
            g.e("s_nop 0")
            g.vm("global_load_lds_dwordx4 %s, %s offset:%d" % (vr(vXo + m), sr(sXb, 2), kb * 1024), tag)
            if idx == 3 and "3samek" not in ABL:
                g.e("s_add_u32 %s, %s, 2048" % (sr(sXb), sr(sXb)))
                g.e("s_addc_u32 %s, %s, 0" % (sr(sXb + 1), sr(sXb + 1)))
        else:
            i = idx - 4
            g.e("s_add_u32 m0, %s, %d" % (sr(sWm0), slot * 8192 + i * 1024))
            g.e("s_nop 0")
            g.vm("global_load_lds_dwordx4 %s, %s" % (vr(vWo + i), sr(sWb, 2)), tag)
            if i == 1 and "3samek" not in ABL:
                if st == 15:
                    g.e("s_mov_b64 %s, %s" % (sr(sWb, 2), sr(sWd, 2)))
                else:
                    g.e("s_add_u32 %s, %s, %d" % (sr(sWb), sr(sWb), 64 * 2048))
                    g.e("s_addc_u32 %s, %s, 0" % (sr(sWb + 1), sr(sWb + 1)))
    def fread_items(n):
        st, kb = divmod(n, 2)
        slot = st % RING
        xb = vXrd + (slot // 3)
        it = []
        for tl in range(2):
            reg = WF + 8 * (n % 3) + 4 * tl
            off = slot * 8192 + kb * 4096
            it.append(lambda reg=reg, off=off, tl=tl: g.lds("ds_read_b64_tr_b16 %s, %s offset:%d" % (vr(reg, 2), vr(vWrd + tl), off), ("f", n)))
            it.append(lambda reg=reg, off=off, tl=tl: g.lds("ds_read_b64_tr_b16 %s, %s offset:%d" % (vr(reg + 2, 2), vr(vWrd + tl), off + 2048), ("f", n)))
        for rg in range(4):
            it.append(lambda rg=rg: g.lds("ds_read_b128 %s, %s offset:%d" % (vr(XF + 16 * (n % 3) + 4 * rg, 4), vr(xb), (slot % 3) * 16384 + (rg * 2 + kb) * 1024), ("f", n)))
        return it
    stamp(g)
    for st in range(RING - 1):
        for idx in range(6):
            dma(st, idx)
    g.need(vtags=[("dma", 0)])
    g.e("s_barrier")
    stamp(g)
    for it in fread_items(0) + fread_items(1):
        it()
    for s in range(NST):
        g.c("---- stage %d" % s)
        if s + 1 < NST:
            g.need(vtags=[("dma", s + 1)])
            if "3nobar" not in ABL:
                g.e("s_barrier")
        for kb in range(2):
            n = 2 * s + kb
            fill = []
            if n + 2 < 2 * NST and "3nolds" not in ABL:
                fill += fread_items(n + 2)
            dm = []
            if s + RING - 1 < NST and "3nodma" not in ABL:
                for idx in range(3 * kb, 3 * kb + 3):
                    dm.append(lambda idx=idx: dma(s + RING - 1, idx))
            order = []
            while fill or dm:
                if dm: order.append(dm.pop(0))
                for _ in range(3):
                    if fill: order.append(fill.pop(0))
            g.need(ltags=[("f", n)])
            AC = ACA if n < 32 else ACB
            first = (n == 0 or n == 32)
            k = 0
            for rg in range(4):
                for tl in range(2):
                    a = AC + (rg * 2 + tl) * 4
                    cin = "0" if first else vr(a, 4)
                    if not ("3nomfma" in ABL and n not in (0, 32)):
                        g.e("v_mfma_f32_16x16x32_bf16 %s, %s, %s, %s" % (vr(a, 4), vr(WF + 8 * (n % 3) + 4 * tl, 4), vr(XF + 16 * (n % 3) + 4 * rg, 4), cin))
                    k += 1
                    left = 8 - k + 1
                    cnt = (len(order) + left - 1) // left
                    for _ in range(cnt):
                        if order: order.pop(0)()
    g.c("---- epilogue")
    stamp(g)
    g.e("s_nop 7")
    for rg in range(4):
        gp, op = TM, TM + 2
        g.e("v_mov_b32 %s, %s" % (vr(gp), vr(vG + rg)))
        g.e("v_mov_b32 %s, %s" % (vr(gp + 1), vr(vG + rg)))
        g.e("v_sub_f32 %s, 1.0, %s" % (vr(op), vr(vG + rg)))
        g.e("v_sub_f32 %s, 1.0, %s" % (vr(op + 1), vr(vG + rg)))
        round_pair(g, op, TM + 4)
        for tl in range(2):
            ob = TM + 8 + 2 * ((rg * 2 + tl) % 4)
            for pr in range(2):
                a = ACA + (rg * 2 + tl) * 4 + 2 * pr
                b = ACB + (rg * 2 + tl) * 4 + 2 * pr
                round_pair(g, a, TM + 5)
                round_pair(g, b, TM + 6)
                g.e("v_pk_mul_f32 %s, %s, %s" % (vr(a, 2), vr(a, 2), vr(gp, 2)))
                g.e("v_pk_mul_f32 %s, %s, %s" % (vr(b, 2), vr(b, 2), vr(op, 2)))
                round_pair(g, a, TM + 5)
                round_pair(g, b, TM + 6)
                g.e("v_pk_add_f32 %s, %s, %s" % (vr(a, 2), vr(a, 2), vr(b, 2)))
                g.e("v_cvt_pk_bf16_f32 %s, %s, %s" % (vr(ob + pr), vr(a), vr(a + 1)))
            g.e("s_mov_b32 %s, %d" % (sr(sT), rg * 16 * 2048))
            g.e("buffer_store_dwordx2 %s, %s, %s, %s offen offset:%d" % (vr(ob, 2), vr(vOo), sr(SRDO, 4), sr(sT), tl * 32))
    stamp_end(g)
    g.label("K3_END")
    g.e("s_endpgm")
    return name


def gen_k23(g):
    name = "k23_kernel"
    if not FUSED:
        kstart(g, name)
    g.lq = []; g.vq = []
    NST = 72
    WR = 8
    PW = WR - 1
    XQ = 10
    XD = XQ - 1
    WLDS = 65536
    NBAR = NST
    sWS, sWo, sWd, sOut, sX, sGW, sDbg = 4, 6, 8, 10, 12, 14, 16
    sW, sT = 18, 19
    SRD, SRDO = 28, 32
    if not FUSED:
        g.e("s_cmp_ge_u32 s2, 256")
        g.e("s_cbranch_scc1 K23_END")
        stamp_begin(g)
    g.e("s_load_dwordx2 %s, s[0:1], 80" % sr(sWS, 2))
    g.e("s_load_dwordx2 %s, s[0:1], 16" % sr(sWo, 2))
    g.e("s_load_dwordx2 %s, s[0:1], 48" % sr(sWd, 2))
    g.e("s_load_dwordx2 %s, s[0:1], 64" % sr(sOut, 2))
    g.e("s_load_dwordx2 %s, s[0:1], 0" % sr(sX, 2))
    g.e("s_load_dwordx2 %s, s[0:1], 56" % sr(sGW, 2))
    g.e("s_load_dwordx2 %s, s[0:1], 72" % sr(sDbg, 2))
    if not FUSED:
        g.e("v_lshrrev_b32 v1, 6, v0")
        g.e("v_and_b32 v0, 63, v0")
        g.e("v_readfirstlane_b32 %s, v1" % sr(sW))
    g.e("s_waitcnt lgkmcnt(0)")
    def k1wait(gg, voff, vtmp, nl, mask_lo):
        lp, ld = gg.newlab("K1W"), gg.newlab("K1D")
        gg.e("s_mov_b32 %s, 0" % sr(sT + 2))
        gg.label(lp)
        gg.e("s_mov_b64 exec, 0x%x" % ((1 << nl) - 1))
        gg.e("global_load_dword %s, %s, %s sc1" % (vr(vtmp), vr(voff), sr(sDbg, 2)))
        gg.e("s_waitcnt vmcnt(0)")
        gg.e("v_or_b32 %s, %s, %s" % (vr(vtmp), vr(vtmp), vr(mask_lo)))
        gg.e("v_cmp_ne_u32 vcc, 0x01010101, %s" % vr(vtmp))
        gg.e("s_mov_b64 exec, -1")
        gg.e("s_cmp_eq_u64 vcc, 0")
        gg.e("s_cbranch_scc1 %s" % ld)
        gg.e("s_add_u32 %s, %s, 1" % (sr(sT + 2), sr(sT + 2)))
        gg.e("s_cmp_ge_u32 %s, 0x40000" % sr(sT + 2))
        gg.e("s_cbranch_scc1 %s" % ld)
        gg.e("s_sleep %s" % os.environ.get("PSL", "16"))
        gg.e("s_branch %s" % lp)
        gg.label(ld)
    g.e("s_mov_b32 %s, %s" % (sr(SRD), sr(sWS)))
    g.e("s_and_b32 %s, %s, 0xffff" % (sr(SRD + 1), sr(sWS + 1)))
    g.e("s_mov_b32 %s, 0x%x" % (sr(SRD + 2), WS_BYTES))
    g.e("s_mov_b32 %s, 0x00020000" % sr(SRD + 3))
    if os.environ.get("CPF"):
        g.e("s_getpc_b64 s[64:65]")
        g.label("K23_PC")
        g.e("s_lshl_b32 s66, %s, 13" % sr(sW))
        g.e("v_lshlrev_b32 v254, 7, v0")
        g.e("v_add_u32 v254, s66, v254")
        g.e("v_min_u32 v254, K23_END - K23_PC, v254")
        g.e("global_load_dword v255, v254, s[64:65]")
        g.e("s_mov_b64 s[64:65], 0")
    g.nst_att = getattr(g, "nst", 1)
    g.e("s_cmp_ge_u32 %s, 4" % sr(sW))
    g.e("s_cbranch_scc1 K23_ATT")
    sRB, sCB = 36, 37
    sXk, sWb = 38, 40
    sWm0 = 42
    sMo = 44
    vL16g, vWo, vWrd, vG, vOo, vPoll, vZ, vRd, vGo = 1, 2, 4, 8, 10, 12, 11, 14, 15
    vWr = 96
    WF, XR, BF, AC = 16, 48, 96, 128
    XS = 12
    XD = 11
    NL = 36
    NLB = 28
    WSL = 4
    WLDS = 98304
    t0, t1, t2, t3, t4 = 48, 49, 50, 51, 52
    sRw = 52
    g.e("s_mov_b32 %s, %s" % (sr(SRDO), sr(sOut)))
    g.e("s_and_b32 %s, %s, 0xffff" % (sr(SRDO + 1), sr(sOut + 1)))
    g.e("s_mov_b32 %s, 0x400000" % sr(SRDO + 2))
    g.e("s_mov_b32 %s, 0x00020000" % sr(SRDO + 3))
    g.e("s_and_b32 %s, s2, 7" % sr(sT))
    g.e("s_lshr_b32 %s, s2, 3" % sr(sT + 1))
    g.e("s_lshr_b32 %s, %s, 1" % (sr(sRB), sr(sT)))
    g.e("s_lshl_b32 %s, %s, 2" % (sr(sRB), sr(sRB)))
    g.e("s_and_b32 %s, %s, 3" % (sr(sT + 2), sr(sT + 1)))
    g.e("s_add_u32 %s, %s, %s" % (sr(sRB), sr(sRB), sr(sT + 2)))
    g.e("s_and_b32 %s, %s, 1" % (sr(sCB), sr(sT)))
    g.e("s_lshl_b32 %s, %s, 3" % (sr(sCB), sr(sCB)))
    g.e("s_lshr_b32 %s, %s, 2" % (sr(sT + 2), sr(sT + 1)))
    g.e("s_add_u32 %s, %s, %s" % (sr(sCB), sr(sCB), sr(sT + 2)))
    g.e("v_lshlrev_b32 %s, 4, v0" % vr(vL16g))
    g.e("s_lshl_b32 %s, %s, 3" % (sr(sT), sr(sRB)))
    g.e("s_lshl_b32 %s, %s, 1" % (sr(sT + 1), sr(sW)))
    for m in range(8):
        g.e("s_add_u32 %s, %s, %d" % (sr(sT + 2), sr(sT + 1), m))
        g.e("s_and_b32 %s, %s, 7" % (sr(sT + 2), sr(sT + 2)))
        g.e("s_add_u32 %s, %s, %s" % (sr(sT + 2), sr(sT + 2), sr(sT)))
        g.e("s_mul_i32 %s, %s, %d" % (sr(sMo + m), sr(sT + 2), NKB * 1024))
    g.e("s_lshl_b32 %s, %s, 10" % (sr(sXk), sr(sW)))
    g.e("s_add_u32 %s, %s, %d" % (sr(sXk), sr(sXk), 32 * 1024))
    g.e("v_lshrrev_b32 %s, 3, v0" % vr(t1))
    g.e("v_and_b32 %s, 6, %s" % (vr(t2), vr(t1)))
    g.e("v_and_b32 %s, 7, v0" % vr(t3))
    g.e("v_xor_b32 %s, %s, %s" % (vr(t3), vr(t3), vr(t2)))
    g.e("s_lshl_b32 %s, %s, 5" % (sr(sT), sr(sW)))
    g.e("v_add_u32 %s, %s, %s" % (vr(t1), sr(sT), vr(t1)))
    g.e("v_lshlrev_b32 %s, 11, %s" % (vr(t1), vr(t1)))
    g.e("v_lshl_add_u32 %s, %s, 4, %s" % (vr(t1), vr(t3), vr(t1)))
    g.e("s_lshl_b32 %s, %s, 7" % (sr(sT), sr(sCB)))
    g.e("v_add_u32 %s, %s, %s" % (vr(vWo), sr(sT), vr(t1)))
    g.e("v_add_u32 %s, %d, %s" % (vr(vWo + 1), 16 * 2048, vr(vWo)))
    g.e("s_lshl_b32 %s, %s, 14" % (sr(sWm0), sr(sW)))
    g.e("s_add_u32 %s, %s, %d" % (sr(sWm0), sr(sWm0), WLDS))
    g.e("v_and_b32 %s, 15, v0" % vr(t0))
    g.e("v_lshrrev_b32 %s, 4, v0" % vr(t1))
    g.e("v_lshrrev_b32 %s, 2, %s" % (vr(t2), vr(t0)))
    g.e("v_lshl_add_u32 %s, %s, 2, %s" % (vr(t2), vr(t1), vr(t2)))
    g.e("v_bfe_u32 %s, %s, 1, 2" % (vr(t3), vr(t2)))
    g.e("v_lshlrev_b32 %s, 7, %s" % (vr(t2), vr(t2)))
    g.e("v_and_b32 %s, 3, %s" % (vr(t4), vr(t0)))
    g.e("v_lshl_add_u32 %s, %s, 3, %s" % (vr(t2), vr(t4), vr(t2)))
    g.e("v_add_u32 %s, %s, %s" % (vr(t2), sr(sWm0), vr(t2)))
    for tl in range(4):
        g.e("v_xor_b32 %s, %d, %s" % (vr(t4), tl, vr(t3)))
        g.e("v_lshl_add_u32 %s, %s, 5, %s" % (vr(vWrd + tl), vr(t4), vr(t2)))
    g.e("s_lshl_b32 %s, %s, 7" % (sr(sT), sr(sRB)))
    g.e("s_lshl_b32 %s, %s, 5" % (sr(sT + 1), sr(sW)))
    g.e("s_add_u32 %s, %s, %s" % (sr(sT), sr(sT), sr(sT + 1)))
    g.e("v_add_u32 %s, %s, %s" % (vr(t2), sr(sT), vr(t0)))
    g.e("v_lshlrev_b32 %s, 2, %s" % (vr(vGo), vr(t2)))
    g.e("v_lshlrev_b32 %s, 11, %s" % (vr(t2), vr(t2)))
    g.e("v_lshl_add_u32 %s, %s, 3, %s" % (vr(t2), vr(t1), vr(t2)))
    g.e("s_lshl_b32 %s, %s, 7" % (sr(sT), sr(sCB)))
    g.e("v_add_u32 %s, %s, %s" % (vr(vOo), sr(sT), vr(t2)))
    g.e("s_lshl_b32 %s, %s, 9" % (sr(sT), sr(sRB)))
    g.e("s_add_u32 %s, %s, 0x%x" % (sr(sT), sr(sT), FLAG_OFF))
    g.e("v_lshlrev_b32 %s, 3, v0" % vr(vZ))
    g.e("v_add_u32 %s, %s, %s" % (vr(vZ), sr(sT), vr(vZ)))
    for j in range(1, 4):
        g.e("s_add_u32 %s, %s, %d" % (sr(sT), sr(sW), j))
        g.e("s_and_b32 %s, %s, 3" % (sr(sT), sr(sT)))
        g.e("s_mul_i32 %s, %s, 3" % (sr(sT), sr(sT)))
        g.e("s_add_u32 %s, %s, %d" % (sr(sT), sr(sT), j - 1))
        g.e("s_lshl_b32 %s, %s, 13" % (sr(sRw + j - 1), sr(sT)))
    g.e("s_mul_i32 %s, %s, %d" % (sr(sT), sr(sW), 3 * 8192))
    g.e("v_add_u32 %s, %s, %s" % (vr(vRd), sr(sT), vr(vL16g)))
    T3 = int(os.environ.get("T3", "0"))
    sTx, sTw, sTwo = 58, 60, 62
    if T3:
        g.e("s_lshr_b32 %s, s2, 3" % sr(sT))
        g.e("s_lshl_b32 %s, %s, 2" % (sr(sT), sr(sT)))
        g.e("s_add_u32 %s, %s, %s" % (sr(sT), sr(sT), sr(sW)))
        g.e("s_and_b32 %s, %s, 12" % (sr(sT + 1), sr(sRB)))
        g.e("s_lshr_b32 %s, %s, 5" % (sr(sT + 2), sr(sT)))
        g.e("s_add_u32 %s, %s, %s" % (sr(sT + 1), sr(sT + 1), sr(sT + 2)))
        g.e("s_lshl_b32 %s, %s, 3" % (sr(sT + 1), sr(sT + 1)))
        g.e("s_lshr_b32 %s, %s, 2" % (sr(sT + 2), sr(sT)))
        g.e("s_and_b32 %s, %s, 7" % (sr(sT + 2), sr(sT + 2)))
        g.e("s_add_u32 %s, %s, %s" % (sr(sT + 1), sr(sT + 1), sr(sT + 2)))
        g.e("s_mul_i32 %s, %s, %d" % (sr(sT + 1), sr(sT + 1), NKB))
        g.e("s_and_b32 %s, %s, 3" % (sr(sT + 2), sr(sT)))
        g.e("s_add_u32 %s, %s, %s" % (sr(sT + 1), sr(sT + 1), sr(sT + 2)))
        g.e("s_add_u32 %s, %s, %d" % (sr(sT + 1), sr(sT + 1), 32 + 4 * T3))
        g.e("s_lshl_b32 %s, %s, 10" % (sr(sT + 1), sr(sT + 1)))
        g.e("s_add_u32 %s, %s, %s" % (sr(sTx), sr(sWS), sr(sT + 1)))
        g.e("s_addc_u32 %s, %s, 0" % (sr(sTx + 1), sr(sWS + 1)))
        g.e("s_and_b32 %s, %s, 8" % (sr(sT + 1), sr(sCB)))
        g.e("s_lshr_b32 %s, %s, 4" % (sr(sT + 2), sr(sT)))
        g.e("s_add_u32 %s, %s, %s" % (sr(sT + 1), sr(sT + 1), sr(sT + 2)))
        g.e("s_lshl_b32 %s, %s, 7" % (sr(sT + 1), sr(sT + 1)))
        g.e("s_and_b32 %s, %s, 15" % (sr(sT + 2), sr(sT)))
        g.e("s_lshl_b32 %s, %s, 14" % (sr(sT + 2), sr(sT + 2)))
        g.e("s_add_u32 %s, %s, %s" % (sr(sTwo), sr(sT + 1), sr(sT + 2)))
        g.e("s_add_u32 %s, %s, %d" % (sr(sT + 1), sr(sTwo), T3 * 128 * 2048))
        g.e("s_add_u32 %s, %s, %s" % (sr(sTw), sr(sWd), sr(sT + 1)))
        g.e("s_addc_u32 %s, %s, 0" % (sr(sTw + 1), sr(sWd + 1)))
    def touch_items(i):
        r = i + T3
        it = []
        if not T3 or r >= NL:
            return it
        if r < NLB:
            for k in range(8):
                it.append(lambda k=k: g.e("s_load_dword s63, %s, %d" % (sr(sTx, 2), 128 * k)))
            def advx():
                g.e("s_add_u32 %s, %s, 4096" % (sr(sTx), sr(sTx)))
                g.e("s_addc_u32 %s, %s, 0" % (sr(sTx + 1), sr(sTx + 1)))
            it.append(advx)
        for k in range(8):
            it.append(lambda k=k: g.e("s_load_dword s63, %s, %d" % (sr(sTw, 2), 2048 * k)))
        def advw():
            if r == NLB - 1:
                g.e("s_add_u32 %s, %s, %s" % (sr(sTw), sr(sWo), sr(sTwo)))
                g.e("s_addc_u32 %s, %s, 0" % (sr(sTw + 1), sr(sWo + 1)))
            else:
                g.e("s_add_u32 %s, %s, %d" % (sr(sTw), sr(sTw), 128 * 2048))
                g.e("s_addc_u32 %s, %s, 0" % (sr(sTw + 1), sr(sTw + 1)))
        it.append(advw)
        return it
    sWb2 = 56
    ROT = int(os.environ.get("ROT", "0"))
    sRx, sRw_, sXk0 = 58, 59, 60
    g.e("s_lshr_b32 %s, s2, 3" % sr(sT))
    g.e("s_mul_i32 %s, %s, %d" % (sr(sT), sr(sT), ROT))
    g.e("s_mul_hi_u32 %s, %s, 153391690" % (sr(sT + 1), sr(sT)))
    g.e("s_mul_i32 %s, %s, 28" % (sr(sT + 1), sr(sT + 1)))
    g.e("s_sub_u32 %s, %s, %s" % (sr(sRx), sr(sT), sr(sT + 1)))
    g.e("s_mov_b32 %s, %s" % (sr(sRw_), sr(sRx)))
    g.e("s_mov_b32 %s, %s" % (sr(sXk0), sr(sXk)))
    def setx():
        g.e("s_lshl_b32 %s, %s, 12" % (sr(sXk), sr(sRx)))
        g.e("s_add_u32 %s, %s, %s" % (sr(sXk), sr(sXk), sr(sXk0)))
    def setw():
        g.e("s_lshl_b32 %s, %s, 18" % (sr(sWb2), sr(sRw_)))
        g.e("s_add_u32 %s, %s, %s" % (sr(sWb), sr(sWd), sr(sWb2)))
        g.e("s_addc_u32 %s, %s, 0" % (sr(sWb + 1), sr(sWd + 1)))
        g.e("s_add_u32 %s, %s, %d" % (sr(sWb2), sr(sWb), 8 * 2048))
        g.e("s_addc_u32 %s, %s, 0" % (sr(sWb2 + 1), sr(sWb + 1)))
    def adv(r):
        g.e("s_add_u32 %s, %s, 1" % (sr(r), sr(r)))
        g.e("s_cmp_eq_u32 %s, 28" % sr(r))
        g.e("s_cselect_b32 %s, 0, %s" % (sr(r), sr(r)))
    setx(); setw()

    def wdma(i, j):
        slot = i % WSL
        g.e("s_add_u32 m0, %s, %d" % (sr(sWm0), slot * 4096 + j * 1024))
        g.e("s_nop 0")
        g.vm("global_load_lds_dwordx4 %s, %s" % (vr(vWo + (j >> 1)), sr(sWb2 if j & 1 else sWb, 2)), ("w", i))
        if j == 3:
            if i == NLB - 1:
                g.e("s_mov_b64 %s, %s" % (sr(sWb, 2), sr(sWo, 2)))
                g.e("s_add_u32 %s, %s, %d" % (sr(sWb2), sr(sWo), 8 * 2048))
                g.e("s_addc_u32 %s, %s, 0" % (sr(sWb2 + 1), sr(sWo + 1)))
            elif i < NLB - 1:
                adv(sRw_); setw()
            else:
                for sb in (sWb, sWb2):
                    g.e("s_add_u32 %s, %s, %d" % (sr(sb), sr(sb), 128 * 2048))
                    g.e("s_addc_u32 %s, %s, 0" % (sr(sb + 1), sr(sb + 1)))
    XEXT = int(os.environ.get("XEXT", "8"))
    xfree = [XR + 4 * k for k in range(XS)] + [BF + 4 * k for k in range(XEXT)]
    xreg = {}
    xnext = [0]
    def xpump(cur):
        out = []
        while xnext[0] < NL * 8:
            f = xnext[0]
            cand = [r for r in xfree if r < BF or f < NLB * 8]
            if not cand:
                break
            if f >= NLB * 8 and not polled[0]:
                if cur + 12 < f:
                    break
                pollcheck(); polled[0] = True
            r = cand[-1] if f < NLB * 8 else cand[0]
            xfree.remove(r)
            xreg[f] = r
            xnext[0] += 1
            xload(f)
    polled = [False]
    def xload(f):
        i, m = divmod(f, 8)
        reg = xreg[f]
        fl = " sc1" if i >= NLB else ""
        tmp = sT + (f % 2)
        g.e("s_add_u32 %s, %s, %s" % (sr(tmp), sr(sXk), sr(sMo + m)))
        g.vm("buffer_load_dwordx4 %s, %s, %s, %s offen%s" % (vr(reg, 4), vr(vL16g), sr(SRD, 4), sr(tmp), fl), ("x", f))
        if m == 7:
            if i == NLB - 1:
                g.e("s_lshl_b32 %s, %s, 10" % (sr(sXk), sr(sW)))
            elif i < NLB - 1:
                adv(sRx); setx()
            else:
                g.e("s_add_u32 %s, %s, 4096" % (sr(sXk), sr(sXk)))
    def wread_items(i):
        off = (i % WSL) * 4096
        it = [lambda: g.need(vtags=[("w", i)])]
        for tl in range(4):
            reg = WF + 16 * (i % 2) + 4 * tl
            it.append(lambda reg=reg, tl=tl: g.lds("ds_read_b64_tr_b16 %s, %s offset:%d" % (vr(reg, 2), vr(vWrd + tl), off), ("f", i)))
            it.append(lambda reg=reg, tl=tl: g.lds("ds_read_b64_tr_b16 %s, %s offset:%d" % (vr(reg + 2, 2), vr(vWrd + tl), off + 2048), ("f", i)))
        return it
    def pollcheck():
        lok, lsl = g.newlab("K23_OK"), g.newlab("K23_SL")
        def chk():
            g.e("v_cmp_ne_u32 vcc, 0, %s" % vr(vPoll))
            g.e("v_cmp_ne_u32 %s, 0, %s" % (sr(sT + 3, 2), vr(vPoll + 1)))
            g.e("s_and_b64 %s, %s, vcc" % (sr(sT + 3, 2), sr(sT + 3, 2)))
            g.e("s_cmp_eq_u64 %s, -1" % sr(sT + 3, 2))
        g.need(vtags=[("poll",)])
        chk()
        g.e("s_cbranch_scc1 %s" % lok)
        g.e("s_mov_b32 %s, 0" % sr(sT + 2))
        g.label(lsl)
        g.e("s_add_u32 %s, %s, 1" % (sr(sT + 2), sr(sT + 2)))
        g.e("s_cmp_ge_u32 %s, 0x40000" % sr(sT + 2))
        g.e("s_cbranch_scc1 %s" % lok)
        g.e("s_sleep 4")
        g.e("global_load_dwordx2 %s, %s, %s sc1" % (vr(vPoll, 2), vr(vZ), sr(sWS, 2)))
        g.e("s_waitcnt vmcnt(0)")
        chk()
        g.e("s_cbranch_scc0 %s" % lsl)
        g.label(lok)
        g.e("s_mov_b32 %s, 0x%x" % (sr(sT + 2), G_OFF))
        for rg in range(2):
            g.vm("buffer_load_dword %s, %s, %s, %s offen offset:%d sc1" % (vr(vG + rg), vr(vGo), sr(SRD, 4), sr(sT + 2), rg * 64), ("g",))
    def acc(m, tl): return AC + (m * 4 + tl) * 4
    def reduce_to(dst, first_bar):
        g.e("s_nop 7")
        if first_bar:
            g.e("s_barrier")
        v = WF + 16 * 0
        for j in range(1, 4):
            g.e("v_add_u32 %s, %s, %s" % (vr(vPoll), sr(sRw + j - 1), vr(vL16g)))
            for r in range(2):
                for tl in range(4):
                    g.lds("ds_write_b128 %s, %s offset:%d" % (vr(vPoll), vr(acc(2 * j + r, tl), 4), r * 4096 + tl * 1024), ("rw",))
        g.e("s_waitcnt lgkmcnt(0)"); g.lq = []
        g.e("s_barrier")
        for j in range(1, 4):
            for r in range(2):
                for tl in range(4):
                    g.lds("ds_read_b128 %s, %s offset:%d" % (vr(acc(2 * j + r, tl), 4), vr(vRd), (j - 1) * 8192 + r * 4096 + tl * 1024), ("rr", j))
        for j in range(1, 4):
            g.need(ltags=[("rr", j)])
            for r in range(2):
                for tl in range(4):
                    for p in range(2):
                        d = dst + (r * 4 + tl) * 4 + 2 * p
                        s0 = acc(r, tl) + 2 * p if j == 1 else d
                        g.e("v_pk_add_f32 %s, %s, %s" % (vr(d, 2), vr(s0, 2), vr(acc(2 * j + r, tl) + 2 * p, 2)))
    stamp(g)
    for i in range(WSL - 1):
        for j in range(4):
            wdma(i, j)
        if i == 0 and not FUSED:
            xpump(0)
    if FUSED:
        lnp = g.newlab("K23_NP")
        g.e("s_cmp_lg_u32 %s, 0" % sr(sW))
        g.e("s_cbranch_scc1 %s" % lnp)
        g.e("s_lshr_b32 %s, %s, 1" % (sr(sT), sr(sRB)))
        g.e("s_lshl_b32 %s, %s, 5" % (sr(sT), sr(sT)))
        g.e("s_lshr_b32 %s, s2, 5" % sr(sT + 1))
        g.e("s_sub_u32 %s, %s, 1" % (sr(sT + 1), sr(sT + 1)))
        g.e("s_max_i32 %s, %s, 0" % (sr(sT + 1), sr(sT + 1)))
        g.e("s_min_i32 %s, %s, 6" % (sr(sT + 1), sr(sT + 1)))
        g.e("s_lshl_b32 %s, %s, 5" % (sr(sT + 1), sr(sT + 1)))
        g.e("s_sub_u32 %s, %s, 32" % (sr(sT + 1), sr(sT + 1)))
        g.e("v_lshlrev_b32 %s, 2, v0" % vr(t0))
        g.e("v_add_u32 %s, %s, %s" % (vr(t3), sr(sT + 1), vr(t0)))
        g.e("v_add_u32 %s, %s, %s" % (vr(t0), sr(sT), vr(t0)))
        g.e("v_cmp_lt_u32 vcc, 7, v0")
        g.e("v_and_b32 %s, 7, v0" % vr(t4))
        g.e("v_mov_b32 %s, 0x01010101" % vr(t2))
        g.e("v_cndmask_b32 %s, %s, %s, vcc" % (vr(t0), vr(t0), vr(t3)))
        g.e("v_mov_b32 %s, 0" % vr(t3))
        g.e("v_cndmask_b32 %s, %s, %s, vcc" % (vr(t2), vr(t3), vr(t2)))
        g.e("v_cmp_eq_u32 vcc, 5, %s" % vr(t4))
        g.e("v_and_b32 %s, 0x0000ffff, %s" % (vr(t1), vr(t2)))
        g.e("s_nop 0")
        g.e("v_cndmask_b32 %s, %s, %s, vcc" % (vr(t2), vr(t2), vr(t1)))
        g.e("v_cmp_lt_u32 vcc, 5, %s" % vr(t4))
        g.e("s_nop 1")
        g.e("v_cndmask_b32 %s, %s, %s, vcc" % (vr(t2), vr(t2), vr(t3)))
        k1wait(g, t0, t1, 24, t2)
        g.label(lnp)
    g.e("s_barrier")
    if FUSED:
        rtmark(g, sWS, 3)
        xpump(0)
    for it in wread_items(0):
        it()
    stamp(g)
    for i in range(NL):
        g.c("---- local kblk %d" % i)
        if i in ((8,) if FUSED else (8, 16, 24)):
            stamp(g)
        if i == NLB - 3:
            g.vm("global_load_dwordx2 %s, %s, %s sc1" % (vr(vPoll, 2), vr(vZ), sr(sWS, 2)), ("poll",))
        if i == NLB:
            stamp(g)
            reduce_to(BF, True)
            stamp(g)
        order = []
        if i + WSL - 1 < NL:
            for j in range(4):
                order.append(lambda i=i, j=j: wdma(i + WSL - 1, j))
        order += touch_items(i)
        late = wread_items(i + 1) if i + 1 < NL else []
        g.need(ltags=[("f", i)])
        first = (i == 0 or i == NLB)
        for m in range(8):
            f = i * 8 + m
            if f > 0:
                xfree.append(xreg[f - 1])
            xpump(f)
            g.need(vtags=[("x", f)])
            if m == 4:
                order = late + order
            for tl in range(4):
                a_ = acc(m, tl)
                cin = "0" if first else vr(a_, 4)
                g.e("v_mfma_f32_16x16x32_bf16 %s, %s, %s, %s" % (vr(a_, 4), vr(WF + 16 * (i % 2) + 4 * tl, 4), vr(xreg[f], 4), cin))
                if order:
                    order.pop(0)()
        while order:
            order.pop(0)()
    g.c("---- epilogue")
    stamp(g)
    AF = XR
    reduce_to(AF, True)
    g.need(vtags=[("g",)])
    TM = WF
    for rg in range(2):
        gp, op = TM, TM + 2
        g.e("v_mov_b32 %s, %s" % (vr(gp), vr(vG + rg)))
        g.e("v_mov_b32 %s, %s" % (vr(gp + 1), vr(vG + rg)))
        g.e("v_sub_f32 %s, 1.0, %s" % (vr(op), vr(vG + rg)))
        g.e("v_sub_f32 %s, 1.0, %s" % (vr(op + 1), vr(vG + rg)))
        round_pair(g, op)
        g.e("s_mov_b32 %s, %d" % (sr(sT + rg), rg * 16 * 2048))
        for tl in range(4):
            ob = TM + 8 + 2 * tl
            for pr in range(2):
                a_ = AF + (rg * 4 + tl) * 4 + 2 * pr
                b_ = BF + (rg * 4 + tl) * 4 + 2 * pr
                round_pair(g, a_)
                round_pair(g, b_)
                g.e("v_pk_mul_f32 %s, %s, %s" % (vr(a_, 2), vr(a_, 2), vr(gp, 2)))
                g.e("v_pk_mul_f32 %s, %s, %s" % (vr(b_, 2), vr(b_, 2), vr(op, 2)))
                round_pair(g, a_)
                round_pair(g, b_)
                g.e("v_pk_add_f32 %s, %s, %s" % (vr(a_, 2), vr(a_, 2), vr(b_, 2)))
                g.e("v_cvt_pk_bf16_f32 %s, %s, %s" % (vr(ob + pr), vr(a_), vr(a_ + 1)))
            g.e("buffer_store_dwordx2 %s, %s, %s, %s offen offset:%d" % (vr(ob, 2), vr(vOo), sr(SRDO, 4), sr(sT + rg), tl * 32))
    stamp_end(g, 2)
    g.e("s_endpgm")

    g.label("K23_ATT")
    a = Gen()
    a.nlab = 1000
    def mul2(d, x, y, ys=False):
        for k in range(2):
            if ys:
                a.e("v_mul_f32 %s, %s, %s" % (vr(d + k), sr(y), vr(x + k)))
            else:
                a.e("v_mul_f32 %s, %s, %s" % (vr(d + k), vr(x + k), vr(y + k)))
    def add2(d, x, y):
        for k in range(2):
            a.e("v_add_f32 %s, %s, %s" % (vr(d + k), vr(x + k), vr(y + k)))
    a.nst = g.nst_att if FUSED and STAMP else 1
    a.kidx = g.kidx
    sHd, sMB, sAW = 36, 37, 38
    sMk = 40
    sNneg = 48
    sC, sL2 = 50, 52
    sM0u = 54
    vL16 = 2
    QF = 4
    vI, vQ4, vNI, vKrd, vVrd, vOne, vCnt = 20, 21, 22, 23, 24, 25, 26
    KF, SA, SB, VF, OA, TM = 28, 60, 128, 196, 228, 244
    a.e("s_setprio %s" % os.environ.get("APRIO", "2"))
    a.e("s_sub_u32 %s, %s, 4" % (sr(sAW), sr(sW)))
    a.e("s_and_b32 %s, s2, 7" % sr(sHd))
    a.e("s_lshr_b32 %s, s2, 3" % sr(sT))
    a.e("s_and_b32 %s, %s, 3" % (sr(sT), sr(sT)))
    a.e("s_lshl_b32 %s, %s, 3" % (sr(sT), sr(sT)))
    a.e("s_add_u32 %s, %s, %s" % (sr(sHd), sr(sHd), sr(sT)))
    a.e("s_lshr_b32 %s, s2, 5" % sr(sMB))
    a.e("s_lshl_b32 %s, %s, 4" % (sr(sMB), sr(sMB)))
    a.e("v_lshlrev_b32 %s, 4, v0" % vr(vL16))
    a.e("s_lshl_b32 %s, %s, 2" % (sr(sT), sr(sAW)))
    a.e("s_add_u32 %s, %s, 65536" % (sr(sT), sr(sT)))
    a.e("v_mov_b32 v27, %s" % sr(sT))
    a.e("v_mov_b32 v3, 0")
    a.e("ds_write_b32 v27, v3")
    if FUSED:
        a.e("s_waitcnt lgkmcnt(0)")
        a.raw(";BAR")
    a.e("s_add_u32 %s, %s, %s" % (sr(sT), sr(sMB), sr(sAW)))
    a.e("s_sub_u32 %s, %s, 16" % (sr(sT), sr(sT)))
    a.e("s_lshl_b32 %s, %s, 17" % (sr(sT + 1), sr(sHd)))
    a.e("s_add_u32 %s, %s, 0x%x" % (sr(sT + 1), sr(sT + 1), QKV_OFF + 32 * 128 * 1024))
    a.e("s_lshl_b32 %s, %s, 10" % (sr(sT + 4), sr(sAW)))
    for i in range(8):
        a.e("s_add_u32 %s, %s, %d" % (sr(sT + 2), sr(sT), 4 * i))
        a.e("s_max_i32 %s, %s, 0" % (sr(sT + 2), sr(sT + 2)))
        a.e("s_lshl_b32 %s, %s, 10" % (sr(sT + 2), sr(sT + 2)))
        a.e("s_add_u32 %s, %s, %s" % (sr(sT + 2), sr(sT + 2), sr(sT + 1)))
        a.e("s_add_u32 %s, %s, 0x%x" % (sr(sT + 3), sr(sT + 2), 32 * 128 * 1024))
        a.e("s_add_u32 m0, %s, %d" % (sr(sT + 4), 4096 * i))
        a.e("s_nop 0")
        a.e("buffer_load_dwordx4 %s, %s, %s offen lds" % (vr(vL16), sr(SRD, 4), sr(sT + 2)))
        a.e("s_add_u32 m0, %s, %d" % (sr(sT + 4), 32768 + 4096 * i))
        a.e("s_nop 0")
        a.e("buffer_load_dwordx4 %s, %s, %s offen lds" % (vr(vL16), sr(SRD, 4), sr(sT + 3)))
    if not FUSED:
        a.e("s_waitcnt lgkmcnt(0)")
        a.raw(";BAR")
    a.e("s_lshl_b32 %s, %s, 1" % (sr(sT), sr(sAW)))
    a.e("s_add_u32 %s, %s, %s" % (sr(sM0u), sr(sMB), sr(sT)))
    a.e("s_lshl_b32 %s, %s, 7" % (sr(sT + 2), sr(sHd)))
    a.e("s_add_u32 %s, %s, %s" % (sr(sT + 2), sr(sT + 2), sr(sM0u)))
    a.e("s_lshl_b32 %s, %s, 10" % (sr(sT + 2), sr(sT + 2)))
    a.e("s_add_u32 %s, %s, 0x%x" % (sr(sT + 2), sr(sT + 2), QKV_OFF))
    a.e("s_add_u32 %s, %s, 8192" % (sr(sT + 3), sr(sT + 2)))
    for it in range(2):
        for grp in range(2):
            a.e("buffer_load_dwordx4 %s, %s, %s, %s offen offset:%d" % (vr(QF + 8 * it + 4 * grp, 4), vr(vL16), sr(SRD, 4), sr(sT + 2 + it), 1024 * grp))
    sRow = 56
    a.e("s_lshl_b32 %s, %s, 4" % (sr(sRow), sr(sMB)))
    a.e("s_lshl_b32 %s, %s, 2" % (sr(sT), sr(sHd)))
    a.e("s_add_u32 %s, %s, %s" % (sr(sRow), sr(sRow), sr(sT)))
    a.e("s_add_u32 %s, %s, %s" % (sr(sRow), sr(sRow), sr(sAW)))
    VT = int(os.environ.get("VT", "0"))
    VTN = int(os.environ.get("VTN", "11"))
    vTa, vTs = 254, 253
    if VT:
        a.e("s_lshr_b32 %s, s2, 3" % sr(sT))
        a.e("s_and_b32 %s, s2, 6" % sr(sT + 1))
        a.e("s_lshl_b32 %s, %s, 1" % (sr(sT + 1), sr(sT + 1)))
        a.e("s_lshr_b32 %s, %s, 3" % (sr(sT + 2), sr(sT)))
        a.e("s_add_u32 %s, %s, %s" % (sr(sT + 1), sr(sT + 1), sr(sT + 2)))
        a.e("s_lshl_b32 %s, %s, 3" % (sr(sT + 1), sr(sT + 1)))
        a.e("s_and_b32 %s, %s, 7" % (sr(sT + 2), sr(sT)))
        a.e("s_add_u32 %s, %s, %s" % (sr(sT + 1), sr(sT + 1), sr(sT + 2)))
        a.e("s_mul_i32 %s, %s, %d" % (sr(sT + 1), sr(sT + 1), NKB))
        a.e("s_lshl_b32 %s, %s, 2" % (sr(sT + 2), sr(sAW)))
        a.e("s_add_u32 %s, %s, %s" % (sr(sT + 1), sr(sT + 1), sr(sT + 2)))
        a.e("s_add_u32 %s, %s, %d" % (sr(sT + 1), sr(sT + 1), 32 + 4 * VT))
        a.e("s_lshl_b32 %s, %s, 10" % (sr(sT + 1), sr(sT + 1)))
        a.e("v_lshlrev_b32 v30, 7, v0")
        a.e("v_add_u32 v30, %s, v30" % sr(sT + 1))
        a.e("s_and_b32 %s, s2, 1" % sr(sT + 1))
        a.e("s_lshl_b32 %s, %s, 3" % (sr(sT + 1), sr(sT + 1)))
        a.e("s_lshr_b32 %s, %s, 2" % (sr(sT + 2), sr(sT)))
        a.e("s_add_u32 %s, %s, %s" % (sr(sT + 1), sr(sT + 1), sr(sT + 2)))
        a.e("s_lshl_b32 %s, %s, 7" % (sr(sT + 1), sr(sT + 1)))
        a.e("s_and_b32 %s, %s, 3" % (sr(sT + 2), sr(sT)))
        a.e("s_lshl_b32 %s, %s, 5" % (sr(sT + 2), sr(sT + 2)))
        a.e("s_add_u32 %s, %s, %s" % (sr(sT + 3), sr(sAW), str(VT)))
        a.e("s_lshl_b32 %s, %s, 7" % (sr(sT + 3), sr(sT + 3)))
        a.e("s_add_u32 %s, %s, %s" % (sr(sT + 2), sr(sT + 2), sr(sT + 3)))
        a.e("s_lshl_b32 %s, %s, 11" % (sr(sT + 2), sr(sT + 2)))
        a.e("s_add_u32 %s, %s, %s" % (sr(sT + 1), sr(sT + 1), sr(sT + 2)))
        a.e("v_and_b32 v31, 31, v0")
        a.e("v_lshlrev_b32 v31, 11, v31")
        a.e("v_add_u32 v31, %s, v31" % sr(sT + 1))
        a.e("v_cmp_lt_u32 vcc, 31, v0")
        a.e("v_mov_b32 v32, %s" % sr(sWS))
        a.e("v_mov_b32 v33, %s" % sr(sWd))
        a.e("v_cndmask_b32 v30, v30, v31, vcc")
        a.e("v_cndmask_b32 v32, v32, v33, vcc")
        a.e("v_mov_b32 v31, %s" % sr(sWS + 1))
        a.e("v_mov_b32 v33, %s" % sr(sWd + 1))
        a.e("v_cndmask_b32 v31, v31, v33, vcc")
        a.e("v_mov_b32 v33, %d" % (4 * 4096))
        a.e("v_mov_b32 v34, %d" % (4 * 128 * 2048))
        a.e("v_cndmask_b32 %s, v33, v34, vcc" % vr(vTs))
        a.e("v_add_co_u32 %s, vcc, v32, v30" % vr(vTa))
        a.e("v_addc_co_u32 %s, vcc, 0, v31, vcc" % vr(vTa + 1))
    vtc = [0]
    def vtouch():
        if not VT or VT + 3 + 4 * vtc[0] >= 28:
            return
        vtc[0] += 1
        a.e("global_load_dword v3, %s, off" % vr(vTa, 2))
        a.e("v_add_co_u32 %s, vcc, %s, %s" % (vr(vTa), vr(vTa), vr(vTs)))
        a.e("v_addc_co_u32 %s, vcc, 0, %s, vcc" % (vr(vTa + 1), vr(vTa + 1)))
    a.e("v_and_b32 %s, 15, v0" % vr(vI))
    a.e("v_lshrrev_b32 %s, 4, v0" % vr(vQ4))
    a.e("v_lshlrev_b32 v30, 2, %s" % vr(vQ4))
    for r in range(4):
        a.e("v_add_u32 v31, %d, v30" % r)
        a.e("v_cmp_gt_u32 %s, v31, %s" % (sr(sMk + 2 * r, 2), vr(vI)))
    a.e("v_mov_b32 %s, 0xff800000" % vr(vNI))
    a.e("v_mov_b32 %s, 1" % vr(vOne))
    a.e("s_lshl_b32 %s, %s, 11" % (sr(sT), sr(sAW)))
    a.e("v_add_u32 %s, %s, %s" % (vr(vKrd), sr(sT), vr(vL16)))
    a.e("v_and_b32 v31, 3, %s" % vr(vI))
    a.e("v_lshlrev_b32 v31, 4, v31")
    a.e("v_add_u32 v31, v31, v30")
    a.e("v_lshrrev_b32 v32, 2, %s" % vr(vI))
    a.e("v_add_u32 v31, v31, v32")
    a.e("v_lshlrev_b32 v31, 4, v31")
    a.e("s_add_u32 %s, %s, 32768" % (sr(sT), sr(sT)))
    a.e("v_add_u32 %s, %s, v31" % (vr(vVrd), sr(sT)))
    a.e("s_mov_b32 %s, 0x%x" % (sr(sC), f2u(32 ** -0.5)))
    a.e("s_mov_b32 %s, 0x%x" % (sr(sC + 1), f2u(32 ** -0.5)))
    a.e("s_mov_b32 %s, 0x%x" % (sr(sL2), f2u(LOG2E)))
    a.e("s_mov_b32 %s, 0x%x" % (sr(sL2 + 1), f2u(LOG2E)))
    a.e("s_lshl_b32 %s, %s, 2" % (sr(sT), sr(sRow)))
    a.e("s_add_u32 %s, %s, 0x%x" % (sr(sT), sr(sT), FLAG_OFF))
    a.e("v_mov_b32 %s, %s" % (vr(vCnt), sr(sT)))
    a.e("s_waitcnt vmcnt(0)")
    a.e("ds_write_b32 v27, %s" % vr(vOne))
    a.e("v_mov_b32 v27, 65536")
    a.label("K23_KVW")
    a.e("ds_read_b128 v[28:31], v27")
    a.e("s_waitcnt lgkmcnt(0)")
    a.e("v_and_b32 v28, v28, v29")
    a.e("v_and_b32 v30, v30, v31")
    a.e("v_and_b32 v28, v28, v30")
    a.e("s_nop 0")
    a.e("v_readfirstlane_b32 %s, v28" % sr(sT))
    a.e("s_cmp_eq_u32 %s, 1" % sr(sT))
    a.e("s_cbranch_scc0 K23_KVW")
    stamp(a)
    def signal(it):
        a.e("s_waitcnt vmcnt(0)")
        a.e("s_mov_b64 exec, 1")
        a.e("global_store_dword %s, %s, %s offset:%d sc1" % (vr(vCnt), vr(vOne), sr(sWS, 2), 512 * it))
        a.e("s_mov_b64 exec, -1")
    def S(grp, t):
        return SA + 4 * t if grp == 0 else SB + 4 * (t - 1)
    for it in range(2):
        a.lq = []
        stamp(a)
        qf = QF + 8 * it
        lo = 8192 * it
        a.e("s_sub_u32 %s, 16, %s" % (sr(sNneg), sr(sM0u)))
        a.e("s_max_i32 %s, %s, 0" % (sr(sNneg), sr(sNneg)))
        def kread(t):
            a.lds("ds_read_b128 %s, %s offset:%d" % (vr(KF + 4 * (t % 8), 4), vr(vKrd), lo + t * 1024), ("k", t))
        for t in range(6):
            kread(t)
        for t in range(18):
            if t + 6 < 18:
                kread(t + 6)
            a.need(ltags=[("k", t)])
            kreg = KF + 4 * (t % 8)
            if t <= 16:
                a.e("v_mfma_f32_16x16x32_bf16 %s, %s, %s, 0" % (vr(S(0, t), 4), vr(kreg, 4), vr(qf, 4)))
            if t >= 1:
                a.e("v_mfma_f32_16x16x32_bf16 %s, %s, %s, 0" % (vr(S(1, t), 4), vr(kreg, 4), vr(qf + 4, 4)))
        def vread(j, d):
            n = j * 2 + d
            reg = VF + 4 * (n % 8)
            a.lds("ds_read_b64_tr_b16 %s, %s offset:%d" % (vr(reg, 2), vr(vVrd), lo + (2 * j) * 1024 + 8 * d), ("v", n))
            a.lds("ds_read_b64_tr_b16 %s, %s offset:%d" % (vr(reg + 2, 2), vr(vVrd), lo + (2 * j + 1) * 1024 + 8 * d), ("v", n))
        for n in range(6):
            vread(n // 2, n % 2)
        a.e("s_nop 7")
        for (grp, t, gt) in ((0, 0, True), (0, 16, False), (1, 1, True), (1, 17, False)):
            for r in range(4):
                x = S(grp, t) + r
                if gt:
                    a.e("v_cndmask_b32 %s, %s, %s, %s" % (vr(x), vr(vNI), vr(x), sr(sMk + 2 * r, 2)))
                else:
                    a.e("v_cndmask_b32 %s, %s, %s, %s" % (vr(x), vr(x), vr(vNI), sr(sMk + 2 * r, 2)))
        a.raw(";NOBAR")
        lneg = "K23_NEG%d" % it
        for t in range(16):
            a.e("s_cmp_le_u32 %s, %d" % (sr(sNneg), t))
            a.e("s_cbranch_scc1 %s" % lneg)
            for r in range(4):
                a.e("v_mov_b32 %s, %s" % (vr(S(0, t) + r), vr(vNI)))
            if t >= 1:
                for r in range(4):
                    a.e("v_mov_b32 %s, %s" % (vr(S(1, t) + r), vr(vNI)))
        a.label(lneg)
        a.raw(";BAROK")
        stamp(a)
        if it == 1:
            signal(0)
            stamp(a)
        for grp in range(2):
            base = SA if grp == 0 else SB
            m0_, m1_ = TM, TM + 1
            a.e("v_max3_f32 %s, %s, %s, %s" % (vr(m0_), vr(base), vr(base + 1), vr(base + 2)))
            a.e("v_max3_f32 %s, %s, %s, %s" % (vr(m1_), vr(base + 3), vr(base + 4), vr(base + 5)))
            i = 6; tog = 0
            while i + 1 < 68:
                mm = m0_ if tog == 0 else m1_
                a.e("v_max3_f32 %s, %s, %s, %s" % (vr(mm), vr(mm), vr(base + i), vr(base + i + 1)))
                i += 2; tog ^= 1
            a.e("v_max_f32 %s, %s, %s" % (vr(m0_), vr(m0_), vr(m1_)))
            for pl in ("32", "16"):
                a.e("v_mov_b32 %s, %s" % (vr(m1_), vr(m0_)))
                a.e("s_nop 1")
                a.e("v_permlane%s_swap_b32 %s, %s" % (pl, vr(m0_), vr(m1_)))
                a.e("v_max_f32 %s, %s, %s" % (vr(m0_), vr(m0_), vr(m1_)))
            a.e("v_cvt_pk_bf16_f32 %s, 0, %s" % (vr(m0_), vr(m0_)))
            a.e("v_mul_f32 %s, %s, %s" % (vr(m0_), sr(sC), vr(m0_)))
            a.e("v_cvt_pk_bf16_f32 %s, 0, %s" % (vr(m0_), vr(m0_)))
            a.e("v_mul_f32 %s, %s, %s" % (vr(m0_), sr(sL2), vr(m0_)))
            a.e("v_sub_f32 %s, 0, %s" % (vr(m0_), vr(m0_)))
            a.e("v_mov_b32 %s, %s" % (vr(m1_), vr(m0_)))
            sm = TM + 4
            for p in range(34):
                x = base + 2 * p
                if (grp * 34 + p) % VTN == 0:
                    vtouch()
                round_pair(a, x)
                mul2(x, x, sC, True)
                round_pair(a, x)
                a.e("v_fma_f32 %s, %s, %s, %s" % (vr(x), vr(x), sr(sL2), vr(m0_)))
                a.e("v_fma_f32 %s, %s, %s, %s" % (vr(x + 1), vr(x + 1), sr(sL2), vr(m0_)))
                a.e("v_exp_f32 %s, %s" % (vr(x), vr(x)))
                a.e("v_exp_f32 %s, %s" % (vr(x + 1), vr(x + 1)))
                if p >= 1:
                    pa = base + 2 * (p - 1)
                    ss = sm + 2 * ((p - 1) % 2)
                    if p - 1 < 2:
                        a.e("v_mov_b32 %s, %s" % (vr(ss), vr(pa)))
                        a.e("v_mov_b32 %s, %s" % (vr(ss + 1), vr(pa + 1)))
                    else:
                        add2(ss, ss, pa)
            a.e("s_nop 0")
            pa = base + 2 * 33
            add2(sm + 2, sm + 2, pa)
            add2(sm, sm, sm + 2)
            a.e("v_add_f32 %s, %s, %s" % (vr(sm), vr(sm), vr(sm + 1)))
            for pl in ("32", "16"):
                a.e("v_mov_b32 %s, %s" % (vr(sm + 1), vr(sm)))
                a.e("s_nop 1")
                a.e("v_permlane%s_swap_b32 %s, %s" % (pl, vr(sm), vr(sm + 1)))
                a.e("v_add_f32 %s, %s, %s" % (vr(sm), vr(sm), vr(sm + 1)))
            a.e("v_rcp_f32 %s, %s" % (vr(sm), vr(sm)))
            a.e("s_nop 0")
            a.e("v_mov_b32 %s, %s" % (vr(sm + 1), vr(sm)))
            for ti in (range(17) if grp == 0 else range(16, -1, -1)):
                x = base + 4 * ti
                mul2(x, x, sm)
                mul2(x + 2, x + 2, sm)
                t = ti if grp == 0 else ti + 1
                j, h = t // 2, t % 2
                dst = base + 8 * j + 2 * h
                a.e("v_cvt_pk_bf16_f32 %s, %s, %s" % (vr(TM + 8), vr(x), vr(x + 1)))
                a.e("v_cvt_pk_bf16_f32 %s, %s, %s" % (vr(dst + 1), vr(x + 2), vr(x + 3)))
                a.e("v_mov_b32 %s, %s" % (vr(dst), vr(TM + 8)))
            if grp == 0:
                a.e("v_mov_b32 %s, 0" % vr(SA + 66))
                a.e("v_mov_b32 %s, 0" % vr(SA + 67))
        a.e("v_mov_b32 %s, 0" % vr(SB))
        a.e("v_mov_b32 %s, 0" % vr(SB + 1))
        stamp(a)
        a.e("s_nop 1")
        for n in range(18):
            j, d = n // 2, n % 2
            if n + 6 < 18:
                vread((n + 6) // 2, (n + 6) % 2)
            a.need(ltags=[("v", n)])
            vreg = VF + 4 * (n % 8)
            for grp in range(2):
                o = OA + 8 * grp + 4 * d
                pf = (SA if grp == 0 else SB) + 8 * j
                cin = "0" if j == 0 else vr(o, 4)
                a.e("v_mfma_f32_16x16x32_bf16 %s, %s, %s, %s" % (vr(o, 4), vr(vreg, 4), vr(pf, 4), cin))
        a.e("s_mul_i32 %s, %s, %d" % (sr(sT), sr(sM0u), NKB))
        a.e("s_add_u32 %s, %s, %s" % (sr(sT), sr(sT), sr(sHd)))
        a.e("s_lshl_b32 %s, %s, 10" % (sr(sT), sr(sT)))
        a.e("s_add_u32 %s, %s, %d" % (sr(sT + 1), sr(sT), NKB * 1024))
        a.e("s_nop 7")
        for grp in range(2):
            o = OA + 8 * grp
            for k in range(4):
                a.e("v_cvt_pk_bf16_f32 %s, %s, %s" % (vr(TM + 4 * grp + k), vr(o + 2 * k), vr(o + 2 * k + 1)))
            a.e("buffer_store_dwordx4 %s, %s, %s, %s offen sc1" % (vr(TM + 4 * grp, 4), vr(vL16), sr(SRD, 4), sr(sT + grp)))
        a.e("s_add_u32 %s, %s, 8" % (sr(sM0u), sr(sM0u)))
    stamp(a)
    signal(1)
    if STAMP:
        a.raw(";NOBAR")
        stamp_end(a, 2, 1)
        a.raw(";BAROK")
    PACE = int(os.environ.get("PACE", "64"))
    out = []; nb = 0; cnt = 0; pace = False; ok = True
    for l in a.lines:
        if l == ";BAR":
            out.append("    s_barrier"); nb += 1; cnt = 0; continue
        if l == ";PACE": pace = True; cnt = 0; continue
        if l == ";NOBAR": ok = False; continue
        if l == ";BAROK": ok = True; continue
        out.append(l)
        if pace and not l.endswith(":"):
            cnt += 1
            if ok and cnt >= PACE:
                out.append("    s_barrier"); nb += 1; cnt = 0
    sys.stderr.write("attention barriers used %d of %d\n" % (nb, NBAR))
    assert nb == 1
    g.lines += out
    g.label("K23_END")
    g.e("s_endpgm")
    return name

def main():
    hdr = []
    ref = open("cdna_kernels/%s.s.ref" % NAME).read().splitlines()
    for l in ref:
        if l.startswith(";") and "@launch" not in l:
            hdr.append(l)
        elif not l.startswith(";"):
            break
    if FUSED:
        hdr.append("; @launch kernel=%s_kernel grid=(256,1,1) block=(512,1,1) lds=163840" % NAME)
    else:
        hdr.append("; @launch kernel=k1_gemm1_kernel grid=(256,1,1) block=(512,1,1) lds=147456")
        hdr.append("; @launch kernel=k23_kernel grid=(256,1,1) block=(512,1,1) lds=163840")
    g = Gen()
    g.raw('.amdgcn_target "amdgcn-amd-amdhsa--gfx950"')
    g.raw(".text")
    k1 = gen_k1(g)
    k23 = gen_k23(g)
    out = "\n".join(hdr) + "\n" + "\n".join(g.lines) + "\n"
    sg = lambda n: 102 if STAMP else n
    out += kd(k1, 256, sg(80), 256)
    if not FUSED:
        out += kd(k23, 256, sg(72), 256)
    path = sys.argv[1] if len(sys.argv) > 1 else "cdna_kernels/%s.s" % NAME
    open(path, "w").write(out)

if __name__ == "__main__":
    main()
```
